```python
import torch

def _softmax(x, axis=-1):
    return torch.softmax(x, dim=axis)
def _gelu(x):
    return torch.nn.functional.gelu(x, approximate="tanh")
def _silu(x):
    return torch.nn.functional.silu(x)
def _sigmoid(x):
    return torch.sigmoid(x)
def _layernorm(x, axis=-1, eps=1e-5):
    m = x.mean(dim=axis, keepdim=True)
    v = x.var(dim=axis, keepdim=True, unbiased=False)
    return (x - m) / torch.sqrt(v + eps)
def _scatter_add(tgt, idx, src, axis=0):
    return tgt.clone().index_add_(axis, idx, src)
def _segment_sum(src, seg, n):
    out = torch.zeros((n,) + src.shape[1:], dtype=src.dtype)
    return out.index_add_(0, seg, src)
def _pad(x, pw):
    flat = tuple(v for pair in reversed(pw) for v in pair)
    return torch.nn.functional.pad(x, flat)

kernel_name = 'recurrent_scan__mha_block_cached__geglu_ffn__decode'

def setup_inputs():

    _w = (lambda a: (lambda t: t.to(torch.bfloat16) if t.is_floating_point() else t)(torch.as_tensor(a)))
    def _A_setup():
        B, Sq, D = 4, 1, 640
        H, Sk, Dh = 32, 4096, 192
        return {
            "x": _w((lambda *s: torch.randn(*s, dtype=torch.bfloat16) * 0.05)(B, Sq, D)),
            "k_cache": _w((lambda *s: torch.randn(*s, dtype=torch.bfloat16) * 1.6)(B, H, Sk, Dh)),
            "v_cache": _w((lambda *s: torch.randn(*s, dtype=torch.bfloat16) * 0.2)(B, H, Sk, Dh)),
            "wq": _w((lambda *s: torch.randn(*s, dtype=torch.bfloat16) * 1.6)(D, H * Dh) * (D ** -0.5)),
            "wo": _w((lambda *s: torch.randn(*s, dtype=torch.bfloat16) * 0.2)(H * Dh, D) * ((H * Dh) ** -0.5)),
        }
    _A_in = _A_setup()

    def _B_setup():
        B, S, D, F = 4, 1, 640, 1536
        return {
            "x": _w((lambda *s: torch.randn(*s, dtype=torch.bfloat16) * 0.05)(B, S, D)),
            "w_gate": _w((lambda *s: torch.randn(*s, dtype=torch.bfloat16) * 0.1)(D, F)),
            "w_up": _w((lambda *s: torch.randn(*s, dtype=torch.bfloat16) * 0.1)(D, F)),
            "w_down": _w((lambda *s: torch.randn(*s, dtype=torch.bfloat16) * 0.1)(F, D)),
        }
    _B_in = _B_setup()

    return {
        "A_x": _A_in["x"],
        "A_k_cache": _A_in["k_cache"],
        "A_v_cache": _A_in["v_cache"],
        "A_wq": _A_in["wq"],
        "A_wo": _A_in["wo"],
        "B_x": _B_in["x"],
        "B_w_gate": _B_in["w_gate"],
        "B_w_up": _B_in["w_up"],
        "B_w_down": _B_in["w_down"],
    }

def reference(A_x, A_k_cache, A_v_cache, A_wq, A_wo, B_x, B_w_gate, B_w_up, B_w_down):
    def _A_ref(x, k_cache, v_cache, wq, wo):
        B, Sq, D = x.shape
        H, Dh = 32, 192
        q = (lambda x, *d: x.permute(*d))((x @ wq).reshape(B, Sq, H, Dh), 0, 2, 1, 3)
        scores = torch.einsum("bhqd,bhkd->bhqk", q, k_cache) * (Dh ** -0.5)
        p = _softmax(scores, axis=-1)
        o = torch.einsum("bhqk,bhkd->bhqd", p, v_cache)
        return (lambda x, *d: x.permute(*d))(o, 0, 2, 1, 3).reshape(B, Sq, H * Dh) @ wo

    def _B_ref(x, w_gate, w_up, w_down):
        return (_gelu(x @ w_gate) * (x @ w_up)) @ w_down

    x = A_x
    xn = _layernorm(x, axis=-1)
    s = _A_ref(xn, A_k_cache, A_v_cache, A_wq, A_wo)
    g = _silu(_B_ref(xn, B_w_gate, B_w_up, B_w_down))
    return x + s * g
```

```python
import re

TRANS = ("v_exp_f32","v_log_f32","v_rcp_f32","v_rsq_f32","v_sqrt_f32","v_sin_f32","v_cos_f32","v_rcp_iflag_f32")

def _regs(tok):
    tok = tok.strip()
    neg = tok.lstrip('-')
    if neg.startswith('abs(') or neg.startswith('|'):
        neg = neg.replace('abs(','').replace(')','').replace('|','')
    tok = neg
    m = re.fullmatch(r'([vsa])(\d+)', tok)
    if m: return [(m.group(1), int(m.group(2)))]
    m = re.fullmatch(r'([vsa])\[(\d+):(\d+)\]', tok)
    if m: return [(m.group(1), i) for i in range(int(m.group(2)), int(m.group(3))+1)]
    if tok == 'vcc': return [('s','vcc')]
    if tok in ('vcc_lo','vcc_hi'): return [('s','vcc')]
    if tok == 'exec' or tok in ('exec_lo','exec_hi'): return [('s','exec')]
    if tok == 'm0': return [('s','m0')]
    return []

class Ins:
    def __init__(self, text):
        self.text = text
        t = text.split(';')[0].strip()
        self.is_label = t.endswith(':')
        self.is_dir = t.startswith('.') or t == ''
        self.op = ''
        self.dst = []; self.src = []
        self.dpp = False
        if self.is_label or self.is_dir: return
        parts = t.split(None, 1)
        self.op = parts[0]
        rest = parts[1] if len(parts) > 1 else ''
        ops = []; depth = 0; cur = ''
        for ch in rest:
            if ch == '[': depth += 1
            if ch == ']': depth -= 1
            if ch == ',' and depth == 0:
                ops.append(cur.strip()); cur = ''
            else: cur += ch
        if cur.strip(): ops.append(cur.strip())
        mods = ''
        if ops:
            sp = ops[-1].split(None, 1)
            if len(sp) > 1:
                ops[-1] = sp[0]; mods = sp[1]
        self.mods = mods
        self.ops = ops
        op = self.op
        self.dpp = any(k in mods for k in ('quad_perm','row_','wave_','bcast'))
        self.valu = op.startswith('v_')
        self.mfma = op.startswith('v_mfma')
        self.trans = any(op.startswith(x) for x in TRANS)
        self.dot = op.startswith('v_dot')
        self.perml = op.startswith('v_permlane')
        self.vmem = op.startswith(('buffer_','global_','flat_'))
        self.ds = op.startswith('ds_')
        self.salu = op.startswith('s_')
        R = [_regs(o) for o in ops]
        if self.valu:
            if op.startswith('v_cmp'):
                self.dst = R[0]; self.src = sum(R[1:], [])
            elif self.perml and 'swap' in op:
                self.dst = R[0]+R[1]; self.src = R[0]+R[1]
            elif op.startswith(('v_readfirstlane','v_readlane')):
                self.dst = R[0]; self.src = sum(R[1:], [])
            elif op.startswith(('v_add_co','v_sub_co','v_addc_co','v_subb_co')):
                self.dst = R[0]+R[1]; self.src = sum(R[2:], [])
            else:
                self.dst = R[0]; self.src = sum(R[1:], [])
                if op.startswith(('v_fmac','v_dot2c','v_pk_fmac','v_writelane')): self.src = self.src + R[0]
                if op.startswith('v_cndmask') and len(ops) == 3: self.src = self.src + [('s','vcc')]
                if self.dpp: self.src = self.src + R[0]
        elif self.vmem:
            if 'load' in op and 'lds' not in mods.split():
                self.dst = R[0]; self.src = sum(R[1:], [])
            elif 'atomic' in op:
                self.src = sum(R, [])
                if 'sc0' in mods.split(): self.dst = R[0]
            else:
                self.src = sum(R, [])
        elif self.ds:
            if op.startswith('ds_read') or 'permute' in op or 'swizzle' in op:
                self.dst = R[0]; self.src = sum(R[1:], [])
            else:
                self.src = sum(R, [])
        elif self.salu:
            if op.startswith(('s_cmp','s_cbranch','s_branch','s_waitcnt','s_nop','s_barrier','s_endpgm','s_sleep','s_setprio')):
                self.src = sum(R, [])
            else:
                self.dst = R[0] if R else []; self.src = sum(R[1:], [])
    def states(self):
        if self.is_label or self.is_dir: return 0
        if self.op == 's_nop': return int(self.ops[0]) + 1
        return 1

def vregs(l): return set(x for x in l if x[0] in ('v','a'))
def sregs(l): return set(x for x in l if x[0] == 's')

def required(prod, cons):
    need = 0
    pv = vregs(prod.dst); ps = sregs(prod.dst)
    cv = vregs(cons.src); cs = sregs(cons.src); cdv = vregs(cons.dst)
    if prod.valu and not prod.mfma:
        if pv & cv:
            if cons.dpp: need = max(need, 2)
            if cons.perml: need = max(need, 2)
            if cons.op.startswith(('v_readfirstlane','v_readlane')): need = max(need, 1)
            if cons.mfma: need = max(need, 2)
            if prod.trans and cons.valu and not cons.trans: need = max(need, 1)
            if prod.trans and cons.valu and cons.trans: need = max(need, 1)
            if prod.trans and (cons.vmem or cons.ds): need = max(need, 1)
        if prod.dot and (pv & (cv | cdv)):
            same = prod.op == cons.op
            if same:
                ab = set()
                if cons.op.startswith('v_dot2c'):
                    ab = vregs(sum([_regs(o) for o in cons.ops[1:]], []))
                else:
                    ab = vregs(sum([_regs(o) for o in cons.ops[1:3]], []))
                if pv & ab: need = max(need, 3)
            else:
                need = max(need, 3)
        if ps:
            if cons.valu and (ps & cs):
                if cons.op.startswith(('v_readlane','v_writelane')): need = max(need, 4)
                else: need = max(need, 2)
            if cons.vmem and (ps & cs): need = max(need, 5)
            if cons.salu and (ps & cs) and not cons.op.startswith('s_cbranch'): need = max(need, 1)
        if ('s','exec') in ps and cons.valu: need = max(need, 5)
    if prod.mfma:
        passes = 8 if '32x32' in prod.op else 4
        tbl_c = {4:0, 8:0}; tbl_ab = {4:8, 8:12}; tbl_v = {4:8, 8:12}; tbl_part = {4:6, 8:10}
        if cons.mfma:
            cC = vregs(_regs(cons.ops[3])); cAB = vregs(_regs(cons.ops[1])+_regs(cons.ops[2]))
            if pv & cAB: need = max(need, tbl_ab[passes])
            if pv & cC and pv != cC: need = max(need, tbl_part[passes])
        elif (pv & (cv | cdv)):
            need = max(need, tbl_v[passes])
        if cons.valu and not cons.mfma:
            pC = vregs(_regs(prod.ops[3]))
            if pC & cdv: need = max(need, 3 if passes == 4 else 7)
    if prod.vmem and ('store' in prod.op) and prod.op.endswith(('x3','x4')):
        data = vregs(prod.src)
        if cons.valu and (data & cdv): need = max(need, 2)
    if prod.salu and ('s','m0') in ps and cons.vmem and 'lds' in getattr(cons,'mods','').split():
        need = max(need, 1)
    return need

class Asm:
    def __init__(self):
        self.lines = []
    def __call__(self, text):
        for ln in text.split('\n'):
            if ln.strip(): self.lines.append(ln.rstrip())
    def label(self, name): self.lines.append(name + ':')
    def finalize(self):
        ins = [Ins(l) for l in self.lines]
        out = []
        nins = 0
        for x in ins:
            if not (x.is_label or x.is_dir):
                dist = 0; need = 0
                for p in reversed(out):
                    if p.is_label or p.is_dir: continue
                    r = required(p, x)
                    if r > dist: need = max(need, r - dist)
                    dist += p.states()
                    if dist >= 12: break
                if need > 0:
                    out.append(Ins(f"  s_nop {need-1}")); nins += 1
            out.append(x)
        labels = {x.text.split(';')[0].strip()[:-1]: i for i, x in enumerate(out) if x.is_label}
        problems = []
        for i, x in enumerate(out):
            if x.op.startswith(('s_cbranch','s_branch')):
                tgt = x.ops[0]
                if tgt not in labels: continue
                pre = [p for p in out[max(0,i-16):i+1] if not (p.is_label or p.is_dir)]
                post = [p for p in out[labels[tgt]:labels[tgt]+16] if not (p.is_label or p.is_dir)]
                dpost = 0
                for c in post:
                    dist = dpost
                    for p in reversed(pre):
                        r = required(p, c)
                        if r > dist: problems.append((p.text, c.text, r, dist))
                        dist += p.states()
                        if dist >= 12: break
                    dpost += c.states()
                    if dpost >= 12: break
        if problems:
            for p in problems: print("BRANCH HAZARD:", p)
            raise SystemExit("hazards across branch edges")
        self.nnops = nins
        return "\n".join(x.text for x in out) + "\n"
```

```python
import struct, sys, argparse
from asmdsl import Asm

KN = "recurrent_scan__mha_block_cached__geglu_ffn__decode_kernel"
def f32(x): return "0x%08x" % struct.unpack("<I", struct.pack("<f", x))[0]
LOG2E = f32(1.4426950408889634)
SCALE = f32(192 ** -0.5)

EPOCH = 0
STAMP = 0x10000
QP = 0x100000
AP = 0x280000
SP = 0x300000
FP = 0x3A0000
TK = 0x420000
XNT = 0
QR = 5120
QG = 17408
QB = 23552
PART = 25088
OB = 28288
WO = 30720
LDS_BYTES = 61440
FR = 5120
HIDT = 13312
FR2 = 14336

NATT = 256
NFFN = 24

class Cfg:
    R = 4
    diag = False
    nt = "nt"
    dyn = False
    S = 48
    match = False

def build(cfg):
    a = Asm()
    R = cfg.R
    NT = cfg.nt
    sW = "s3"
    sH, sX, sB, sHalf, sU = "s56", "s57", "s58", "s59", "s60"
    sOff, sStr, sCnt, sT, sT2, sT3 = "s61", "s62", "s63", "s64", "s65", "s66"
    T0, T1 = "s30", "s31"
    sOnes = "s67"
    sPermLo, sPermHi = "s68", "s69"
    srdK, srdV, srdW, srdO, srdG, srdU, srdD, srdT = 32, 36, 40, 44, 48, 52, 76, 80
    def srd(i): return f"s[{i}:{i+3}]"
    nst = [0]
    def stamp():
        if cfg.diag:
            i = 84 + 2 * nst[0]; nst[0] += 1
            assert i <= 98
            a(f"  s_memrealtime s[{i}:{i+1}]")
    vTid, vLane, vKV = 0, 1, 2
    RING = 160
    def Kr(s, j): return RING + 24 * s + 4 * j
    def Vr(s, j): return RING + 24 * s + 12 + 4 * j
    ACC = 136
    Q = 124
    vM, vL = 122, 123
    TKR = 118

    def mk_srd(i, lo, size):
        a(f"  s_mov_b32 s{i}, s{lo}")
        a(f"  s_mov_b32 s{i+1}, s{lo+1}")
        a(f"  s_mov_b32 s{i+2}, {size}")
        a(f"  s_mov_b32 s{i+3}, 0x20000")

    def allreduce64(v, t, op):
        for n in (1, 2, 4, 8):
            a(f"  {op} v{v}, v{v}, v{v} row_ror:{n} row_mask:0xf bank_mask:0xf")
        a(f"  v_mov_b32 v{t}, v{v}")
        a(f"  v_permlane16_swap_b32 v{v}, v{t}")
        a(f"  {op} v{v}, v{v}, v{t}")
        a(f"  v_mov_b32 v{t}, v{v}")
        a(f"  v_permlane32_swap_b32 v{v}, v{t}")
        a(f"  {op} v{v}, v{v}, v{t}")

    def bf16round(dst, src):
        a(f"  v_cvt_pk_bf16_f32 v{dst}, v{src}, v{src}")
        a(f"  v_lshlrev_b32 v{dst}, 16, v{dst}")

    def x_loads(vx, vo):
        a(f"  s_mul_i32 {sT}, {sW}, 1280")
        a(f"  v_lshl_add_u32 v{vo}, v{vLane}, 2, {sT}")
        for j in range(5):
            a(f"  global_load_dword v{vx+j}, v{vo}, s[4:5] offset:{j*256}")

    def layernorm(vx, tb):
        lo = [tb + 2 * j for j in range(5)]; hi = [tb + 2 * j + 1 for j in range(5)]
        d = [tb + 10 + j for j in range(10)]
        acc, t, mean, mbf, r = tb + 20, tb + 21, tb + 22, tb + 23, tb + 24
        a(f"  v_mov_b32 v{acc}, 0")
        for j in range(5):
            a(f"  v_dot2c_f32_bf16 v{acc}, {sOnes}, v{vx+j}")
        for j in range(5):
            a(f"  v_lshlrev_b32 v{lo[j]}, 16, v{vx+j}")
            a(f"  v_and_b32 v{hi[j]}, 0xffff0000, v{vx+j}")
        allreduce64(acc, t, "v_add_f32")
        a(f"  v_mul_f32 v{mean}, {f32(1.0/640)}, v{acc}")
        bf16round(mbf, mean)
        a(f"  v_mov_b32 v{acc}, 0")
        for j in range(10):
            a(f"  v_sub_f32 v{d[j]}, v{tb+j}, v{mean}")
        for j in range(10):
            a(f"  v_fmac_f32 v{acc}, v{d[j]}, v{d[j]}")
        for j in range(10):
            a(f"  v_sub_f32 v{d[j]}, v{tb+j}, v{mbf}")
        allreduce64(acc, t, "v_add_f32")
        a(f"  v_mul_f32 v{acc}, {f32(1.0/640)}, v{acc}")
        bf16round(acc, acc)
        a(f"  v_add_f32 v{acc}, {f32(1e-5)}, v{acc}")
        bf16round(acc, acc)
        a(f"  v_sqrt_f32 v{acc}, v{acc}")
        bf16round(acc, acc)
        a(f"  v_rcp_f32 v{r}, v{acc}")
        for j in range(5):
            a(f"  v_cvt_pk_bf16_f32 v{tb+j}, v{d[2*j]}, v{d[2*j+1]}")
        for j in range(5):
            a(f"  v_lshlrev_b32 v{d[2*j]}, 16, v{tb+j}")
            a(f"  v_and_b32 v{d[2*j+1]}, 0xffff0000, v{tb+j}")
        for j in range(10):
            a(f"  v_mul_f32 v{d[j]}, v{d[j]}, v{r}")
        for j in range(5):
            a(f"  v_cvt_pk_bf16_f32 v{tb+j}, v{d[2*j]}, v{d[2*j+1]}")
        a(f"  s_lshl_b32 {sT}, {sW}, 2")
        a(f"  v_lshl_add_u32 v{t}, v{vLane}, 4, {sT}")
        for j in range(5):
            a(f"  ds_write_b32 v{t}, v{tb+j} offset:{XNT + j*1024}")

    def check_tags(regs_t0, regs_t1, vflag):
        first = True
        for r in regs_t0:
            a(f"  v_xor_b32 v{vflag if first else vflag+1}, {T0}, v{r}")
            if not first: a(f"  v_or_b32 v{vflag}, v{vflag}, v{vflag+1}")
            first = False
        for r in regs_t1:
            a(f"  v_xor_b32 v{vflag+1}, {T1}, v{r}")
            a(f"  v_or_b32 v{vflag}, v{vflag}, v{vflag+1}")
        a(f"  v_cmp_ne_u32 vcc, 0, v{vflag}")

    sSpin = "s74"
    def spin_guard():
        a(f"  s_add_u32 {sSpin}, {sSpin}, 1")
        a(f"  s_cmp_gt_u32 {sSpin}, 40000")
        a("  s_cbranch_scc1 L_end")

    hdr = []
    hdr.append(f"; @launch grid=({NATT+NFFN},1,1) block=(256,1,1) lds={LDS_BYTES}")
    a('.amdgcn_target "amdgcn-amd-amdhsa--gfx950"')
    a(".text")
    a(f".globl {KN}")
    a(".p2align 8")
    a(f".type {KN},@function")
    a.label(KN)
    a(f"  s_cmp_ge_u32 s2, {NATT+NFFN}")
    a("  s_cbranch_scc1 L_end")
    stamp()
    a("  s_load_dwordx8 s[4:11], s[0:1], 0")
    a("  s_load_dwordx2 s[12:13], s[0:1], 32")
    a("  s_load_dwordx8 s[16:23], s[0:1], 48")
    a("  s_load_dwordx4 s[24:27], s[0:1], 80")
    a(f"  v_lshrrev_b32 v3, 6, v{vTid}")
    a(f"  v_and_b32 v{vLane}, 63, v{vTid}")
    a(f"  v_readfirstlane_b32 {sW}, v3")
    a(f"  s_mov_b32 {sSpin}, 0")
    a(f"  s_mov_b32 {sOnes}, 0x3f803f80")
    a(f"  s_mov_b32 {sPermLo}, 0x05040100")
    a(f"  s_mov_b32 {sPermHi}, 0x07060302")
    a(f"  s_cmp_ge_u32 s2, {NATT}")
    a("  s_cbranch_scc1 L_ffn")

    a(f"  s_lshr_b32 {sH}, s2, 3")
    a(f"  s_and_b32 {sX}, s2, 7")
    if cfg.match:
        a(f"  s_mul_i32 {sT}, {sH}, 37")
        a(f"  s_lshr_b32 {sT}, {sT}, 8")
        a(f"  s_mul_i32 {sT}, {sT}, 7")
        a(f"  s_sub_u32 {sT}, {sH}, {sT}")
        a(f"  s_add_u32 {sT2}, {sX}, 7")
        a(f"  s_sub_u32 {sT2}, {sT2}, {sT}")
        a(f"  s_cmp_ge_u32 {sT2}, 7")
        a(f"  s_cselect_b32 {sT}, 7, 0")
        a(f"  s_sub_u32 {sT2}, {sT2}, {sT}")
        a(f"  s_sub_u32 {sT}, 7, {sT2}")
        a(f"  s_min_u32 {sB}, {sT2}, {sT}")
        a(f"  s_cmp_gt_u32 {sT2}, 3")
        a(f"  s_cselect_b32 {sHalf}, 1, 0")
        a(f"  s_cmp_eq_u32 {sX}, 7")
        a(f"  s_cselect_b32 {sB}, 0, {sB}")
        a(f"  s_cselect_b32 {sHalf}, 1, {sHalf}")
        a(f"  s_lshl_b32 {sU}, {sB}, 1")
        a(f"  s_add_u32 {sU}, {sU}, {sHalf}")
    else:
        a(f"  s_lshr_b32 {sB}, {sX}, 1")
        a(f"  s_and_b32 {sHalf}, {sX}, 1")
        a(f"  s_mov_b32 {sU}, {sX}")
    vHf, vCc, vG, vC = 4, 5, 6, 7
    vXo, vWq, vXn = 8, 9, 10
    a(f"  v_lshrrev_b32 v{vHf}, 5, v{vLane}")
    a(f"  v_and_b32 v{vCc}, 31, v{vLane}")
    a(f"  v_lshrrev_b32 v{vG}, 3, v{vLane}")
    a(f"  v_and_b32 v{vC}, 7, v{vLane}")
    a(f"  v_mul_u32_u24 v{vKV}, 384, v{vG}")
    a(f"  v_lshl_add_u32 v{vKV}, v{vC}, 4, v{vKV}")
    a(f"  v_mul_u32_u24 v{vWq}, 122880, v{vHf}")
    a(f"  v_mul_u32_u24 v3, 12, v{vCc}")
    a(f"  v_add_u32 v{vWq}, v{vWq}, v3")
    a("  s_waitcnt lgkmcnt(0)")
    a("  s_load_dwordx2 s[28:29], s[26:27], 0")
    VX = 11
    x_loads(VX, vXo)
    mk_srd(srdW, 10, 7864320)
    mk_srd(srdK, 6, 201326592)
    mk_srd(srdV, 8, 201326592)
    mk_srd(srdO, 12, 7864320)
    WQ = 16
    a(f"  s_mul_i32 {sT}, {sX}, 80")
    a(f"  s_mul_i32 {sT2}, {sW}, 20")
    a(f"  s_add_u32 {sT}, {sT}, {sT2}")
    a(f"  s_mul_i32 {sT}, {sT}, 12288")
    a(f"  s_mul_i32 {sT2}, {sH}, 384")
    a(f"  s_add_u32 {sT}, {sT}, {sT2}")
    for j in range(10):
        a(f"  buffer_load_dwordx3 v[{WQ+4*j}:{WQ+4*j+2}], v{vWq}, {srd(srdW)}, {sT} offen {NT}")
        if j < 9: a(f"  s_add_u32 {sT}, {sT}, 12288")
    a(f"  s_lshl_b32 {sT}, {sB}, 5")
    a(f"  s_add_u32 {sT}, {sT}, {sH}")
    a(f"  s_mul_i32 {sOff}, {sT}, 1572864")
    if not cfg.dyn:
        a(f"  s_mul_i32 {sT}, {sHalf}, 786432")
        a(f"  s_add_u32 {sOff}, {sOff}, {sT}")
        a(f"  s_mul_i32 {sT}, {sW}, 196608")
        a(f"  s_add_u32 {sOff}, {sOff}, {sT}")
        a(f"  s_mov_b32 {sStr}, 3072")
    else:
        a(f"  s_mul_i32 {sT}, {sW}, 393216")
        a(f"  s_add_u32 {sOff}, {sOff}, {sT}")
        a(f"  s_mul_i32 {sT}, {sHalf}, {393216-3072}")
        a(f"  s_add_u32 {sOff}, {sOff}, {sT}")
        a(f"  s_cmp_eq_u32 {sHalf}, 0")
        a(f"  s_cselect_b32 {sStr}, 3072, -3072")
    def issueK(s):
        for j in range(3):
            a(f"  buffer_load_dwordx4 v[{Kr(s,j)}:{Kr(s,j)+3}], v{vKV}, {srd(srdK)}, {sOff} offen offset:{128*j} {NT}")
    def issueV(s):
        for j in range(3):
            a(f"  buffer_load_dwordx4 v[{Vr(s,j)}:{Vr(s,j)+3}], v{vKV}, {srd(srdV)}, {sOff} offen offset:{128*j} {NT}")
        a(f"  s_add_u32 {sOff}, {sOff}, {sStr}")
    NA = 2
    for s in range(NA):
        issueK(s); issueV(s)
    stamp()
    a(f"  s_waitcnt vmcnt({10 + 6*NA})")
    layernorm(VX, 56)
    a(f"  s_mul_i32 {sT}, {sX}, 40")
    a(f"  s_mul_i32 {sT2}, {sW}, 10")
    a(f"  s_add_u32 {sT}, {sT}, {sT2}")
    a(f"  v_mul_u32_u24 v{vXn}, 5, v{vHf}")
    a(f"  v_add_u32 v{vXn}, {sT}, v{vXn}")
    a(f"  v_lshlrev_b32 v{vXn}, 4, v{vXn}")
    a("  s_waitcnt lgkmcnt(0)")
    a("  s_barrier")
    XP = 56
    for i in range(5):
        a(f"  ds_read_b128 v[{XP+4*i}:{XP+4*i+3}], v{vXn} offset:{XNT+16*i}")
    QA = 76
    for t in range(24):
        a(f"  v_mov_b32 v{QA+t}, 0")
    a(f"  s_add_u32 {T0}, s28, 1")
    a(f"  s_add_u32 {T1}, s29, 1")
    a(f"  s_waitcnt vmcnt({6*NA}) lgkmcnt(0)")
    PT = 100
    for i in range(5):
        r0 = WQ + 4 * (2 * i); r1 = WQ + 4 * (2 * i + 1)
        for dw in range(3):
            a(f"  v_perm_b32 v{PT+2*dw}, v{r1+dw}, v{r0+dw}, {sPermLo}")
            a(f"  v_perm_b32 v{PT+2*dw+1}, v{r1+dw}, v{r0+dw}, {sPermHi}")
        for b in range(4):
            for cidx in range(6):
                a(f"  v_dot2c_f32_bf16 v{QA+6*b+cidx}, v{PT+cidx}, v{XP+4*i+b}")
    vA = 106
    a(f"  s_mul_i32 {sT}, {sW}, 3072")
    a(f"  v_mul_u32_u24 v{vA}, 1536, v{vHf}")
    a(f"  v_mul_u32_u24 v{vA+1}, 24, v{vCc}")
    a(f"  v_add3_u32 v{vA}, v{vA}, v{vA+1}, {sT}")
    for t in range(12):
        a(f"  v_permlane32_swap_b32 v{QA+t}, v{QA+t+12}")
    for t in range(12):
        a(f"  v_add_f32 v{QA+t}, v{QA+t}, v{QA+t+12}")
    for bp in range(2):
        for k in range(3):
            a(f"  ds_write_b64 v{vA}, v[{QA+6*bp+2*k}:{QA+6*bp+2*k+1}] offset:{QR + bp*768 + 8*k}")
    vPl, vPg = 108, 109
    a(f"  v_lshlrev_b32 v{vPl}, 3, v{vTid}")
    a(f"  s_lshl_b32 {sT}, {sH}, 3")
    a(f"  s_add_u32 {sT}, {sT}, {sX}")
    a(f"  s_mul_i32 {sT}, {sT}, 6144")
    a(f"  s_add_u32 {sT}, {sT}, {QP}")
    a(f"  v_lshl_add_u32 v{vPg}, v{vTid}, 4, {sT}")
    a("  s_waitcnt lgkmcnt(0)")
    a("  s_barrier")
    PB = 56
    def pub_round(ldsoff, goff_v):
        for w2 in range(4):
            a(f"  ds_read_b64 v[{PB+2*w2}:{PB+2*w2+1}], v{vPl} offset:{QR + ldsoff + w2*3072}")
        a("  s_waitcnt lgkmcnt(0)")
        a(f"  v_add_f32 v{PB}, v{PB}, v{PB+2}")
        a(f"  v_add_f32 v{PB+1}, v{PB+1}, v{PB+3}")
        a(f"  v_add_f32 v{PB+4}, v{PB+4}, v{PB+6}")
        a(f"  v_add_f32 v{PB+5}, v{PB+5}, v{PB+7}")
        a(f"  v_add_f32 v{PB+8}, v{PB}, v{PB+4}")
        a(f"  v_add_f32 v{PB+10}, v{PB+1}, v{PB+5}")
        a(f"  v_mov_b32 v{PB+9}, {T0}")
        a(f"  v_mov_b32 v{PB+11}, {T1}")
        a(f"  global_store_dwordx4 v{goff_v}, v[{PB+8}:{PB+11}], s[26:27] sc1")
    pub_round(0, vPg)
    a(f"  s_cmp_ge_u32 {sW}, 2")
    a("  s_cbranch_scc1 L_pub2skip")
    a(f"  v_add_u32 v{vPg}, 4096, v{vPg}")
    pub_round(2048, vPg)
    a.label("L_pub2skip")
    stamp()
    vGa, vQg = 106, 107
    a(f"  v_lshrrev_b32 v3, 5, v{vTid}")
    a(f"  v_mul_u32_u24 v{vGa}, 6144, v3")
    a(f"  v_lshl_add_u32 v{vGa}, v{vCc}, 4, v{vGa}")
    a(f"  s_mul_i32 {sT}, {sH}, {8*6144}")
    a(f"  s_mul_i32 {sT2}, {sB}, 1536")
    a(f"  s_add_u32 {sT}, {sT}, {sT2}")
    a(f"  s_add_u32 {sT}, {sT}, {QP}")
    a(f"  v_add_u32 v{vGa}, {sT}, v{vGa}")
    a(f"  v_mul_u32_u24 v{vQg}, 768, v3")
    a(f"  v_lshl_add_u32 v{vQg}, v{vCc}, 3, v{vQg}")
    GQ = 56
    def q_poll():
        for k in range(3):
            a(f"  global_load_dwordx4 v[{GQ+4*k}:{GQ+4*k+3}], v{vGa}, s[26:27] offset:{512*k} sc1")
    q_poll()
    vWo = 70
    a(f"  v_mul_u32_u24 v3, 6554, v{vLane}")
    a(f"  v_lshrrev_b32 v3, 16, v3")
    a(f"  v_mul_u32_u24 v71, 10, v3")
    a(f"  v_sub_u32 v71, v{vLane}, v71")
    a(f"  v_mul_u32_u24 v{vWo}, 1280, v3")
    a(f"  v_lshl_add_u32 v{vWo}, v71, 4, v{vWo}")
    a(f"  s_mul_i32 {sT}, {sH}, 192")
    a(f"  s_mul_i32 {sT2}, {sW}, 48")
    a(f"  s_add_u32 {sT}, {sT}, {sT2}")
    a(f"  s_mul_i32 {sT}, {sT}, 1280")
    a(f"  s_mul_i32 {sT3}, {sX}, 160")
    a(f"  s_add_u32 {sT}, {sT}, {sT3}")
    a(f"  s_mul_i32 {sT2}, {sW}, {48*160}")
    a(f"  s_add_u32 {sT2}, {sT2}, {WO}")
    a("  s_mov_b32 exec_hi, 0x0fffffff")
    for i in range(8):
        a(f"  s_mov_b32 m0, {sT2}")
        a(f"  s_add_u32 {sT2}, {sT2}, 960")
        a(f"  buffer_load_dwordx4 v{vWo}, {srd(srdO)}, {sT} offen {NT} lds")
        if i < 7: a(f"  s_add_u32 {sT}, {sT}, 7680")
    a("  s_mov_b32 exec_hi, -1")
    for s in range(NA, R):
        issueK(s); issueV(s)
    a(f"  s_waitcnt vmcnt({8 + 6*(R-NA)})")
    a.label("L_qcheck")
    check_tags([GQ+1, GQ+5, GQ+9], [GQ+3, GQ+7, GQ+11], 72)
    a("  s_cbranch_vccz L_qok")
    spin_guard()
    q_poll()
    a("  s_waitcnt vmcnt(0)")
    a("  s_branch L_qcheck")
    a.label("L_qok")
    a(f"  v_add_u32 v{vQg}, {QG}, v{vQg}")
    for k in range(3):
        a(f"  ds_write2_b32 v{vQg}, v{GQ+4*k}, v{GQ+4*k+2} offset0:{64*k} offset1:{64*k+1}")
    a(f"  v_lshlrev_b32 v3, 4, v{vLane}")
    a("  s_waitcnt lgkmcnt(0)")
    a("  s_barrier")
    SQ = 56
    for r in range(8):
        a(f"  ds_read_b128 v[{SQ+4*r}:{SQ+4*r+3}], v3 offset:{QG + 768*r}")
    a(f"  s_mul_i32 {sT}, {sW}, 384")
    a(f"  v_lshl_add_u32 v88, v{vLane}, 3, {sT}")
    a(f"  v_lshl_add_u32 v89, v{vC}, 4, {sT}")
    for t in range(24):
        a(f"  v_mov_b32 v{ACC+t}, 0")
    a(f"  v_mov_b32 v{vM}, 0xff800000")
    a(f"  v_mov_b32 v{vL}, 0")
    a("  s_waitcnt lgkmcnt(0)")
    for (x, y) in ((0,1),(2,3),(4,5),(6,7),(0,2),(4,6),(0,4)):
        for e in range(4):
            a(f"  v_add_f32 v{SQ+4*x+e}, v{SQ+4*x+e}, v{SQ+4*y+e}")
    a(f"  v_cvt_pk_bf16_f32 v90, v{SQ}, v{SQ+1}")
    a(f"  v_cvt_pk_bf16_f32 v91, v{SQ+2}, v{SQ+3}")
    a("  s_mov_b32 exec_hi, 0x0000ffff")
    a(f"  ds_write_b64 v88, v[90:91] offset:{QB}")
    a("  s_mov_b32 exec_hi, -1")
    a("  s_waitcnt lgkmcnt(0)")
    for j in range(3):
        a(f"  ds_read_b128 v[{Q+4*j}:{Q+4*j+3}], v89 offset:{QB + 128*j}")
    a("  s_waitcnt lgkmcnt(0)")
    stamp()

    NCH = 64
    t0, t1, t2, sS, mn, al, ee, pl, ph = 100, 101, 102, 103, 104, 105, 106, 107, 108
    a(f"  s_mov_b32 {sCnt}, 0")
    a.label("L_loop")
    a(f"  s_cmp_eq_u32 {sCnt}, {NCH//R - 1}")
    a(f"  s_cselect_b32 s{srdK+2}, 0, s{srdK+2}")
    a(f"  s_cselect_b32 s{srdV+2}, 0, s{srdV+2}")
    for s in range(R):
        a(f"  v_mov_b32 v{t0}, 0")
        a(f"  v_mov_b32 v{t1}, 0")
        a(f"  v_mov_b32 v{t2}, 0")
        a(f"  s_waitcnt vmcnt({3 + 6*(R-1)})")
        for i in range(4):
            for j in range(3):
                a(f"  v_dot2c_f32_bf16 v{t0+j}, v{Kr(s,j)+i}, v{Q+4*j+i}")
        issueK(s)
        a(f"  v_add_f32 v{t0}, v{t0}, v{t1}")
        a(f"  v_add_f32 v{t0}, v{t0}, v{t2}")
        a(f"  v_add_f32 v{t0}, v{t0}, v{t0} quad_perm:[1,0,3,2] row_mask:0xf bank_mask:0xf")
        a(f"  v_add_f32 v{t0}, v{t0}, v{t0} quad_perm:[2,3,0,1] row_mask:0xf bank_mask:0xf")
        a(f"  v_add_f32 v{t0}, v{t0}, v{t0} row_half_mirror row_mask:0xf bank_mask:0xf")
        bf16round(t1, t0)
        a(f"  v_mul_f32 v{t1}, {SCALE}, v{t1}")
        bf16round(sS, t1)
        a(f"  v_max_f32 v{mn}, v{vM}, v{sS}")
        a(f"  v_cmp_gt_f32 vcc, v{sS}, v{vM}")
        a(f"  v_sub_f32 v{al}, v{vM}, v{mn}")
        a(f"  v_sub_f32 v{ee}, v{sS}, v{mn}")
        a(f"  v_mul_f32 v{al}, {LOG2E}, v{al}")
        a(f"  v_mul_f32 v{ee}, {LOG2E}, v{ee}")
        a(f"  v_exp_f32 v{al}, v{al}")
        a(f"  v_exp_f32 v{ee}, v{ee}")
        a(f"  v_mov_b32 v{vM}, v{mn}")
        a(f"  v_fma_f32 v{vL}, v{vL}, v{al}, v{ee}")
        a(f"  v_cvt_pk_bf16_f32 v{pl}, v{ee}, 0")
        a(f"  v_cvt_pk_bf16_f32 v{ph}, 0, v{ee}")
        a(f"  s_cbranch_vccz L_nors{s}")
        for t in range(24):
            a(f"  v_mul_f32 v{ACC+t}, v{ACC+t}, v{al}")
        a.label(f"L_nors{s}")
        a(f"  s_waitcnt vmcnt({6*(R-1) + 3})")
        for j in range(3):
            for i in range(4):
                a(f"  v_dot2c_f32_bf16 v{ACC+8*j+2*i}, v{Vr(s,j)+i}, v{pl}")
                a(f"  v_dot2c_f32_bf16 v{ACC+8*j+2*i+1}, v{Vr(s,j)+i}, v{ph}")
        issueV(s)
    a(f"  s_add_u32 {sCnt}, {sCnt}, 1")
    a(f"  s_cmp_lt_u32 {sCnt}, {NCH//R}")
    a("  s_cbranch_scc1 L_loop")
    stamp()

    vFa, vFb = 10, 11
    FG = RING
    vSa, vSb = 12, 13
    vOi, vXv = 14, 15
    def f_poll():
        a(f"  global_load_dwordx4 v[{FG}:{FG+3}], v{vFa}, s[26:27] sc1")
        a(f"  global_load_dwordx4 v[{FG+4}:{FG+7}], v{vFa}, s[26:27] offset:32 sc1")
        a(f"  global_load_dwordx4 v[{FG+8}:{FG+11}], v{vFb}, s[26:27] sc1")
    def fin1():
        a(f"  s_cmp_lg_u32 {sW}, 0")
        a("  s_cbranch_scc1 L_nofin1")
        a(f"  s_mul_i32 {sT}, {sX}, 160")
        a(f"  s_mul_i32 {sT2}, {sH}, 5")
        a(f"  s_add_u32 {sT}, {sT}, {sT2}")
        a(f"  v_add_u32 v3, {sT}, v{vHf}")
        a(f"  v_subrev_u32 v8, 8, v{vCc}")
        a(f"  v_cmp_gt_u32 vcc, 24, v{vCc}")
        a(f"  v_cndmask_b32 v8, v8, v{vCc}, vcc")
        a(f"  v_mul_u32_u24 v8, 1280, v8")
        a(f"  v_add_u32 v8, v8, v3")
        a(f"  v_lshlrev_b32 v8, 4, v8")
        a(f"  v_add_u32 v{vFa}, {FP}, v8")
        a(f"  v_lshlrev_b32 v9, 5, v{vHf}")
        a(f"  v_sub_u32 v9, 64, v9")
        a(f"  v_add_u32 v{vFb}, v{vFa}, v9")
        f_poll()
        a(f"  s_lshl_b32 {sT3}, {sX}, 5")
        a(f"  v_add_u32 v8, {sT3}, v{vCc}")
        a(f"  v_mul_u32_u24 v8, 160, v8")
        a(f"  v_add_u32 v8, v8, v{vHf}")
        a(f"  v_add_u32 v8, {sT2}, v8")
        a(f"  v_lshlrev_b32 v8, 4, v8")
        a(f"  v_add_u32 v{vSa}, {SP}, v8")
        a(f"  v_add_u32 v{vSb}, v{vSa}, v9")
        a(f"  v_lshrrev_b32 v8, 1, v{vCc}")
        a(f"  v_lshl_add_u32 v8, v8, 1, v{vHf}")
        a(f"  v_cmp_gt_u32 s[70:71], 5, v8")
        a(f"  v_cmp_gt_u32 vcc, 6, v{vCc}")
        a(f"  s_and_b64 s[70:71], s[70:71], vcc")
        a(f"  v_add_u32 v8, {sT}, v8")
        a(f"  v_lshrrev_b32 v9, 1, v8")
        a(f"  v_and_b32 v8, 1, v8")
        a(f"  v_and_b32 v29, 1, v{vCc}")
        a(f"  v_lshl_add_u32 v8, v8, 1, v29")
        a(f"  v_mul_u32_u24 v8, 640, v8")
        a(f"  v_add_u32 v8, v8, v9")
        a(f"  v_lshlrev_b32 v{vOi}, 1, v8")
        a(f"  v_cndmask_b32 v{vOi}, 0, v{vOi}, s[70:71]")
        a(f"  global_load_ushort v{vXv}, v{vOi}, s[4:5]")
        a.label("L_nofin1")

    tA, tB = 100, 101
    a(f"  v_max_f32 v{tA}, v{vM}, v{vM} row_ror:8 row_mask:0xf bank_mask:0xf")
    a(f"  v_mov_b32 v{tB}, v{tA}")
    a(f"  v_permlane16_swap_b32 v{tA}, v{tB}")
    a(f"  v_max_f32 v{tA}, v{tA}, v{tB}")
    a(f"  v_mov_b32 v{tB}, v{tA}")
    a(f"  v_permlane32_swap_b32 v{tA}, v{tB}")
    a(f"  v_max_f32 v{tA}, v{tA}, v{tB}")
    a(f"  v_sub_f32 v{tB}, v{vM}, v{tA}")
    a(f"  v_mul_f32 v{tB}, {LOG2E}, v{tB}")
    a(f"  v_exp_f32 v{tB}, v{tB}")
    a(f"  v_lshrrev_b32 v102, 4, v{vLane}")
    a(f"  v_mul_u32_u24 v102, 6, v102")
    a(f"  v_and_b32 v103, 7, v{vLane}")
    a(f"  s_mul_i32 {sT}, {sW}, 800")
    a(f"  s_add_u32 {sT}, {sT}, {PART}")
    a(f"  v_lshl_add_u32 v103, v103, 5, {sT}")
    for k in range(3):
        a(f"  v_add_u32 v104, {2*k}, v102")
        a(f"  v_lshrrev_b32 v105, 3, v104")
        a(f"  v_and_b32 v104, 7, v104")
        a(f"  v_lshlrev_b32 v105, 8, v105")
        a(f"  v_lshl_add_u32 v105, v104, 2, v105")
        a(f"  v_add_u32 v{106+k}, v105, v103")
    a(f"  v_mul_f32 v{vL}, v{vL}, v{tB}")
    for t in range(24):
        a(f"  v_mul_f32 v{ACC+t}, v{ACC+t}, v{tB}")
    a(f"  v_add_f32 v{vL}, v{vL}, v{vL} row_ror:8 row_mask:0xf bank_mask:0xf")
    for t in range(12):
        a(f"  v_permlane32_swap_b32 v{ACC+t}, v{ACC+t+12}")
    a(f"  v_mov_b32 v{tB}, v{vL}")
    a(f"  v_permlane16_swap_b32 v{vL}, v{tB}")
    for t in range(12):
        a(f"  v_add_f32 v{ACC+t}, v{ACC+t}, v{ACC+t+12}")
    a(f"  v_add_f32 v{vL}, v{vL}, v{tB}")
    for t in range(6):
        a(f"  v_permlane16_swap_b32 v{ACC+t}, v{ACC+t+6}")
    a(f"  v_mov_b32 v{tB}, v{vL}")
    a(f"  v_permlane32_swap_b32 v{vL}, v{tB}")
    for t in range(6):
        a(f"  v_add_f32 v{ACC+t}, v{ACC+t}, v{ACC+t+6}")
    a(f"  v_add_f32 v{tB}, v{vL}, v{tB}")
    for t in range(6):
        a(f"  v_add_f32 v{ACC+t}, v{ACC+t}, v{ACC+t} row_ror:8 row_mask:0xf bank_mask:0xf")
    a(f"  v_mov_b32 v109, {sT}")
    for k in range(3):
        a(f"  ds_write_b64 v{106+k}, v[{ACC+2*k}:{ACC+2*k+1}]")
    a(f"  ds_write_b64 v109, v[{tA}:{tB}] offset:768")
    a("  s_waitcnt vmcnt(0)")
    fin1()
    a("  s_waitcnt lgkmcnt(0)")
    a("  s_barrier")
    a(f"  s_cmp_ge_u32 {sW}, 2")
    a("  s_cbranch_scc1 L_nomerge")
    MB = 100
    a(f"  v_lshlrev_b32 v3, 3, v{vTid}")
    a(f"  v_mov_b32 v8, {PART+768}")
    for w2 in range(4):
        a(f"  ds_read_b64 v[{MB+2*w2}:{MB+2*w2+1}], v3 offset:{PART+800*w2}")
        a(f"  ds_read_b64 v[{MB+8+2*w2}:{MB+8+2*w2+1}], v8 offset:{800*w2}")
    a(f"  s_lshl_b32 {sT}, {sH}, 3")
    a(f"  s_add_u32 {sT}, {sT}, {sU}")
    a(f"  s_lshl_b32 {sT}, {sT}, 11")
    a(f"  s_add_u32 {sT}, {sT}, {AP}")
    a(f"  v_lshl_add_u32 v9, v{vTid}, 4, {sT}")
    a("  s_waitcnt lgkmcnt(0)")
    mM = [MB+8+2*w2 for w2 in range(4)]; mL = [x+1 for x in mM]
    a(f"  v_max_f32 v29, v{mM[0]}, v{mM[1]}")
    a(f"  v_max3_f32 v29, v29, v{mM[2]}, v{mM[3]}")
    for w2 in range(4):
        a(f"  v_sub_f32 v{mM[w2]}, v{mM[w2]}, v29")
    for w2 in range(4):
        a(f"  v_mul_f32 v{mM[w2]}, {LOG2E}, v{mM[w2]}")
    for w2 in range(4):
        a(f"  v_exp_f32 v{mM[w2]}, v{mM[w2]}")
    a(f"  v_mul_f32 v116, v{MB}, v{mM[0]}")
    a(f"  v_mul_f32 v118, v{MB+1}, v{mM[0]}")
    a(f"  v_mul_f32 v30, v{mL[0]}, v{mM[0]}")
    for w2 in range(1, 4):
        a(f"  v_fmac_f32 v116, v{MB+2*w2}, v{mM[w2]}")
        a(f"  v_fmac_f32 v118, v{MB+2*w2+1}, v{mM[w2]}")
        a(f"  v_fmac_f32 v30, v{mL[w2]}, v{mM[w2]}")
    a(f"  v_cmp_eq_u32 vcc, 96, v{vTid}")
    a(f"  v_cndmask_b32 v116, v116, v29, vcc")
    a(f"  v_cndmask_b32 v118, v118, v30, vcc")
    a(f"  v_mov_b32 v117, {T0}")
    a(f"  v_mov_b32 v119, {T1}")
    a(f"  v_cmp_ge_u32 vcc, 96, v{vTid}")
    a(f"  s_and_saveexec_b64 s[72:73], vcc")
    a(f"  global_store_dwordx4 v9, v[116:119], s[26:27] sc1")
    a(f"  s_mov_b64 exec, s[72:73]")
    a.label("L_nomerge")
    stamp()
    vH1, vH2 = 16, 17
    HG = RING + 12
    a(f"  s_lshl_b32 {sT}, {sH}, 3")
    a(f"  s_lshl_b32 {sT2}, {sW}, 1")
    a(f"  s_add_u32 {sT}, {sT}, {sT2}")
    a(f"  s_lshl_b32 {sT}, {sT}, 11")
    a(f"  s_add_u32 {sT}, {sT}, {AP}")
    a(f"  v_lshlrev_b32 v3, 11, v{vHf}")
    a(f"  v_add_u32 v3, {sT}, v3")
    a(f"  v_lshl_add_u32 v{vH1}, v{vCc}, 4, v3")
    a(f"  v_add_u32 v{vH2}, {96*16}, v3")
    def h1_poll():
        for k in range(3):
            a(f"  global_load_dwordx4 v[{HG+4*k}:{HG+4*k+3}], v{vH1}, s[26:27] offset:{512*k} sc1")
        a(f"  global_load_dwordx4 v[{HG+12}:{HG+15}], v{vH2}, s[26:27] sc1")
    h1_poll()
    BF = RING + 32
    vTr = 18
    a(f"  v_lshrrev_b32 v3, 4, v{vLane}")
    a(f"  v_lshlrev_b32 v3, 3, v3")
    a(f"  v_bfe_u32 v8, v{vLane}, 2, 2")
    a(f"  v_add_u32 v3, v3, v8")
    a(f"  v_mul_u32_u24 v3, 160, v3")
    a(f"  v_and_b32 v8, 3, v{vLane}")
    a(f"  v_lshl_add_u32 v3, v8, 3, v3")
    a(f"  s_lshl_b32 {sT}, {sW}, 5")
    a(f"  s_add_u32 {sT}, {sT}, {WO}")
    a(f"  v_add_u32 v{vTr}, {sT}, v3")
    for s in range(6):
        a(f"  ds_read_b64_tr_b16 v[{BF+4*s}:{BF+4*s+1}], v{vTr} offset:{5120*s}")
        a(f"  ds_read_b64_tr_b16 v[{BF+4*s+2}:{BF+4*s+3}], v{vTr} offset:{5120*s+640}")
    a(f"  s_cmp_lg_u32 {sW}, 1")
    a("  s_cbranch_scc1 L_notile4a")
    for s in range(6):
        a(f"  ds_read_b64_tr_b16 v[{BF+24+4*s}:{BF+24+4*s+1}], v{vTr} offset:{5120*s+96}")
        a(f"  ds_read_b64_tr_b16 v[{BF+24+4*s+2}:{BF+24+4*s+3}], v{vTr} offset:{5120*s+640+96}")
    a.label("L_notile4a")
    vGv = 19
    def reduce32(base, n, tmp):
        for nn in (1, 2, 4, 8):
            for r in base: a(f"  v_add_f32 v{r}, v{r}, v{r} row_ror:{nn} row_mask:0xf bank_mask:0xf")
        for r in base:
            a(f"  v_mov_b32 v{tmp}, v{r}")
            a(f"  v_permlane16_swap_b32 v{r}, v{tmp}")
            a(f"  v_add_f32 v{r}, v{r}, v{tmp}")
    def select6(dst, regs):
        a(f"  v_mov_b32 v{dst}, v{regs[0]}")
        for i in range(1, 6):
            a(f"  v_cmp_eq_u32 vcc, {i}, v{vCc}")
            a(f"  v_cndmask_b32 v{dst}, v{dst}, v{regs[i]}, vcc")
    a(f"  s_cmp_lg_u32 {sW}, 0")
    a("  s_cbranch_scc1 L_nofin2")
    a("  s_waitcnt vmcnt(5)")
    a.label("L_fcheck")
    check_tags([FG+1, FG+5, FG+9], [FG+3, FG+7, FG+11], 20)
    a("  s_cbranch_vccz L_fok")
    spin_guard()
    f_poll()
    a("  s_waitcnt vmcnt(0)")
    a("  s_branch L_fcheck")
    a.label("L_fok")
    fr = [FG, FG+2, FG+4, FG+6, FG+8, FG+10]
    a(f"  v_cmp_gt_u32 vcc, 24, v{vCc}")
    for r in fr:
        a(f"  v_cndmask_b32 v{r}, 0, v{r}, vcc")
    reduce32(fr, 6, 20)
    select6(vGv, fr)
    bf16round(vGv, vGv)
    a(f"  v_mul_f32 v20, {f32(-1.4426950408889634)}, v{vGv}")
    a(f"  v_exp_f32 v20, v20")
    a(f"  v_add_f32 v20, 1.0, v20")
    a(f"  v_rcp_f32 v20, v20")
    a(f"  v_mul_f32 v{vGv}, v{vGv}, v20")
    bf16round(vGv, vGv)
    a.label("L_nofin2")
    a("  s_waitcnt vmcnt(0)")
    a.label("L_h1check")
    check_tags([HG+1, HG+5, HG+9, HG+13], [HG+3, HG+7, HG+11, HG+15], 20)
    a("  s_cbranch_vccz L_h1ok")
    spin_guard()
    h1_poll()
    a("  s_waitcnt vmcnt(0)")
    a("  s_branch L_h1check")
    a.label("L_h1ok")
    gm, gl = HG+12, HG+14
    a(f"  v_mov_b32 v20, v{gm}")
    a(f"  v_mov_b32 v21, v{gm}")
    a(f"  v_permlane32_swap_b32 v20, v21")
    a(f"  v_max_f32 v20, v20, v21")
    a(f"  v_sub_f32 v21, v{gm}, v20")
    a(f"  v_mul_f32 v21, {LOG2E}, v21")
    a(f"  v_exp_f32 v21, v21")
    a(f"  v_mul_f32 v22, v{gl}, v21")
    a(f"  v_mov_b32 v23, v22")
    a(f"  v_permlane32_swap_b32 v22, v23")
    a(f"  v_add_f32 v22, v22, v23")
    a(f"  v_rcp_f32 v22, v22")
    a(f"  v_mul_f32 v21, v21, v22")
    vals = [HG, HG+2, HG+4, HG+6, HG+8, HG+10]
    for r in vals:
        a(f"  v_mul_f32 v{r}, v{r}, v21")
    a(f"  v_permlane32_swap_b32 v{vals[0]}, v{vals[2]}")
    a(f"  v_permlane32_swap_b32 v{vals[1]}, v{vals[3]}")
    a(f"  v_mov_b32 v22, v{vals[4]}")
    a(f"  v_mov_b32 v23, v{vals[5]}")
    a(f"  v_add_f32 v{vals[0]}, v{vals[0]}, v{vals[2]}")
    a(f"  v_add_f32 v{vals[1]}, v{vals[1]}, v{vals[3]}")
    a(f"  v_permlane32_swap_b32 v{vals[4]}, v22")
    a(f"  v_permlane32_swap_b32 v{vals[5]}, v23")
    a(f"  v_cvt_pk_bf16_f32 v24, v{vals[0]}, v{vals[1]}")
    a(f"  v_add_f32 v{vals[4]}, v{vals[4]}, v22")
    a(f"  v_add_f32 v{vals[5]}, v{vals[5]}, v23")
    a(f"  s_mul_i32 {sT}, {sW}, 384")
    a(f"  v_lshl_add_u32 v26, v{vLane}, 2, {sT}")
    a(f"  v_lshl_add_u32 v27, v{vCc}, 2, {sT}")
    a(f"  v_cvt_pk_bf16_f32 v25, v{vals[4]}, v{vals[5]}")
    a(f"  ds_write_b32 v26, v24 offset:{OB}")
    a(f"  ds_write_b32 v27, v25 offset:{OB+256}")
    a(f"  v_and_b32 v3, 3, v{vLane}")
    a(f"  v_mul_u32_u24 v3, 384, v3")
    a(f"  v_lshrrev_b32 v8, 4, v{vLane}")
    a(f"  v_lshl_add_u32 v3, v8, 4, v3")
    a(f"  s_lshl_b32 {sT}, {sX}, 5")
    a(f"  s_add_u32 {sT}, {sT}, {sH}")
    a(f"  s_mul_i32 {sT}, {sT}, 2560")
    a(f"  s_lshl_b32 {sT2}, {sW}, 9")
    a(f"  s_add_u32 {sT}, {sT}, {sT2}")
    a(f"  s_add_u32 {sT}, {sT}, {SP}")
    a(f"  v_lshl_add_u32 v28, v{vLane}, 5, {sT}")
    a("  s_waitcnt lgkmcnt(0)")
    a("  s_barrier")
    AF = 24 + 8
    for s in range(6):
        a(f"  ds_read_b128 v[{AF+4*s}:{AF+4*s+3}], v3 offset:{OB+64*s}")
    D0, D1 = 60, 64
    for e in range(4):
        a(f"  v_mov_b32 v{D0+e}, 0")
        a(f"  v_mov_b32 v{D1+e}, 0")
    a("  s_waitcnt lgkmcnt(0)")
    for s in range(6):
        a(f"  v_mfma_f32_16x16x32_bf16 v[{D0}:{D0+3}], v[{AF+4*s}:{AF+4*s+3}], v[{BF+4*s}:{BF+4*s+3}], v[{D0}:{D0+3}]")
    def sp_publish(D, voff):
        a(f"  v_mov_b32 v68, v{D}")
        a(f"  v_mov_b32 v69, {T0}")
        a(f"  v_mov_b32 v70, v{D+1}")
        a(f"  v_mov_b32 v71, {T1}")
        a(f"  v_mov_b32 v72, v{D+2}")
        a(f"  v_mov_b32 v73, {T0}")
        a(f"  v_mov_b32 v74, v{D+3}")
        a(f"  v_mov_b32 v75, {T1}")
        a("  s_mov_b64 exec, 0xffff")
        a(f"  global_store_dwordx4 v28, v[68:71], s[26:27] offset:{voff} sc1")
        a(f"  global_store_dwordx4 v28, v[72:75], s[26:27] offset:{voff+16} sc1")
        a("  s_mov_b64 exec, -1")
    a(f"  s_cmp_lg_u32 {sW}, 1")
    a("  s_cbranch_scc1 L_notile4b")
    for s in range(6):
        a(f"  v_mfma_f32_16x16x32_bf16 v[{D1}:{D1+3}], v[{AF+4*s}:{AF+4*s+3}], v[{BF+24+4*s}:{BF+24+4*s+3}], v[{D1}:{D1+3}]")
    sp_publish(D0, 0)
    a("  s_nop 1")
    sp_publish(D1, 1536)
    a("  s_branch L_pubdone")
    a.label("L_notile4b")
    a("  s_nop 7")
    sp_publish(D0, 0)
    a.label("L_pubdone")
    stamp()
    a(f"  s_cmp_lg_u32 {sW}, 0")
    a("  s_cbranch_scc1 L_fin_end")
    SG = RING
    def s_poll():
        a(f"  global_load_dwordx4 v[{SG}:{SG+3}], v{vSa}, s[26:27] sc1")
        a(f"  global_load_dwordx4 v[{SG+4}:{SG+7}], v{vSa}, s[26:27] offset:32 sc1")
        a(f"  global_load_dwordx4 v[{SG+8}:{SG+11}], v{vSb}, s[26:27] sc1")
    a.label("L_spoll")
    spin_guard()
    s_poll()
    a("  s_waitcnt vmcnt(0)")
    check_tags([SG+1, SG+5, SG+9], [SG+3, SG+7, SG+11], 20)
    a("  s_cbranch_vccnz L_spoll")
    sr = [SG, SG+2, SG+4, SG+6, SG+8, SG+10]
    reduce32(sr, 6, 20)
    select6(21, sr)
    bf16round(21, 21)
    a(f"  v_mul_f32 v21, v21, v{vGv}")
    bf16round(21, 21)
    a(f"  v_lshlrev_b32 v22, 16, v{vXv}")
    a(f"  v_add_f32 v21, v21, v22")
    a(f"  v_cvt_pk_bf16_f32 v21, v21, v21")
    a("  s_mov_b64 exec, s[70:71]")
    a(f"  global_store_short v{vOi}, v21, s[22:23]")
    a("  s_mov_b64 exec, -1")
    a("  s_cmp_lg_u32 s2, 0")
    a("  s_cbranch_scc1 L_fin_end")
    a(f"  v_mov_b32 v22, {T0}")
    a(f"  v_mov_b32 v23, {T1}")
    a(f"  v_mov_b32 v24, 0")
    a("  s_mov_b64 exec, 1")
    a(f"  global_store_dwordx2 v24, v[22:23], s[26:27] sc1")
    a("  s_mov_b64 exec, -1")
    a.label("L_fin_end")
    stamp()
    a("  s_branch L_diag")

    a.label("L_ffn")
    sF = sH
    a(f"  s_sub_u32 {sF}, s2, {NATT}")
    fG, fC, fXo, fWo = 4, 5, 8, 9
    a(f"  v_lshrrev_b32 v{fG}, 3, v{vLane}")
    a(f"  v_and_b32 v{fC}, 7, v{vLane}")
    a(f"  v_mul_u32_u24 v{fWo}, {2*3072}, v{fG}")
    a(f"  v_lshl_add_u32 v{fWo}, v{fC}, 4, v{fWo}")
    a("  s_waitcnt lgkmcnt(0)")
    a("  s_load_dwordx2 s[28:29], s[26:27], 0")
    VX = 11
    x_loads(VX, fXo)
    mk_srd(srdG, 16, 1966080)
    mk_srd(srdU, 18, 1966080)
    mk_srd(srdD, 20, 1966080)
    a(f"  s_mul_i32 {sOff}, {sW}, {160*3072}")
    a(f"  s_lshl_b32 {sT}, {sF}, 7")
    a(f"  s_add_u32 {sOff}, {sOff}, {sT}")
    GW = 96
    def ffn_issue(jjs):
        for n, jj in enumerate(jjs):
            base = GW + 16 * n
            a(f"  buffer_load_dwordx4 v[{base}:{base+3}], v{fWo}, {srd(srdG)}, {sOff} offen {NT}")
            a(f"  buffer_load_dwordx4 v[{base+4}:{base+7}], v{fWo}, {srd(srdG)}, {sOff} offen offset:3072 {NT}")
            a(f"  buffer_load_dwordx4 v[{base+8}:{base+11}], v{fWo}, {srd(srdU)}, {sOff} offen {NT}")
            a(f"  buffer_load_dwordx4 v[{base+12}:{base+15}], v{fWo}, {srd(srdU)}, {sOff} offen offset:3072 {NT}")
            a(f"  s_add_u32 {sOff}, {sOff}, {16*3072}")
    ffn_issue(range(5))
    a("  s_waitcnt vmcnt(20)")
    layernorm(VX, 16)
    fXn = 10
    a(f"  s_mul_i32 {sT}, {sW}, 80")
    a(f"  v_add_u32 v{fXn}, {sT}, v{fG}")
    a(f"  v_lshlrev_b32 v{fXn}, 4, v{fXn}")
    a("  s_waitcnt lgkmcnt(0)")
    a("  s_barrier")
    FA = 176
    for t in range(64):
        a(f"  v_mov_b32 v{FA+t}, 0")
    FX = 16
    FT = 40
    def ffn_compute(half):
        for n in range(5):
            jj = 5 * half + n
            a(f"  ds_read_b128 v[{FX+4*n}:{FX+4*n+3}], v{fXn} offset:{XNT + 128*jj}")
        a("  s_waitcnt lgkmcnt(0)")
        for n in range(5):
            a(f"  s_waitcnt vmcnt({4*(4-n)})")
            base = GW + 16 * n
            for mat in range(2):
                r0 = base + 8 * mat; r1 = r0 + 4
                for dw in range(4):
                    a(f"  v_perm_b32 v{FT+2*dw}, v{r1+dw}, v{r0+dw}, {sPermLo}")
                    a(f"  v_perm_b32 v{FT+2*dw+1}, v{r1+dw}, v{r0+dw}, {sPermHi}")
                for b in range(4):
                    for e in range(8):
                        a(f"  v_dot2c_f32_bf16 v{FA+32*mat+8*b+e}, v{FT+e}, v{FX+4*n+b}")
    ffn_compute(0)
    ffn_issue(range(5, 10))
    ffn_compute(1)
    DW = 96
    a(f"  s_lshl_b32 {sT}, {sF}, 6")
    a(f"  s_lshl_b32 {sT2}, {sW}, 4")
    a(f"  s_add_u32 {sT}, {sT}, {sT2}")
    a(f"  s_mul_i32 {sT}, {sT}, 1280")
    a(f"  v_lshlrev_b32 v12, 4, v{vLane}")
    a(f"  v_lshlrev_b32 v13, 2, v{vLane}")
    for r in range(16):
        a(f"  buffer_load_dwordx4 v[{DW+4*r}:{DW+4*r+3}], v12, {srd(srdD)}, {sT} offen {NT}")
        a(f"  buffer_load_dword v{DW+64+r}, v13, {srd(srdD)}, {sT} offen offset:1024 {NT}")
        if r < 15: a(f"  s_add_u32 {sT}, {sT}, 1280")
    for t in range(32):
        a(f"  v_permlane32_swap_b32 v{FA+t}, v{FA+t+32}")
    for t in range(32):
        a(f"  v_add_f32 v{FA+t}, v{FA+t}, v{FA+t+32}")
    for t in range(16):
        a(f"  v_permlane16_swap_b32 v{FA+t}, v{FA+t+16}")
    for t in range(16):
        a(f"  v_add_f32 v{FA+t}, v{FA+t}, v{FA+t+16}")
    for t in range(16):
        a(f"  v_add_f32 v{FA+t}, v{FA+t}, v{FA+t} row_ror:8 row_mask:0xf bank_mask:0xf")
    a(f"  v_lshrrev_b32 v14, 4, v{vLane}")
    a(f"  v_lshlrev_b32 v14, 9, v14")
    a(f"  v_lshl_add_u32 v14, v{fC}, 5, v14")
    a(f"  s_lshl_b32 {sT2}, {sW}, 11")
    a(f"  v_add_u32 v14, {sT2}, v14")
    for bp in range(2):
        for q4 in range(2):
            a(f"  ds_write_b128 v14, v[{FA+8*bp+4*q4}:{FA+8*bp+4*q4+3}] offset:{FR + 256*bp + 16*q4}")
    a(f"  v_lshlrev_b32 v15, 2, v{vTid}")
    a("  s_waitcnt lgkmcnt(0)")
    a("  s_barrier")
    for w2 in range(4):
        a(f"  ds_read_b32 v{16+w2}, v15 offset:{FR + 2048*w2}")
        a(f"  ds_read_b32 v{20+w2}, v15 offset:{FR + 2048*w2 + 1024}")
    a(f"  v_lshrrev_b32 v24, 1, v{vLane}")
    a(f"  v_lshlrev_b32 v24, 4, v24")
    a(f"  v_and_b32 v25, 1, v{vLane}")
    a(f"  v_lshl_add_u32 v24, v25, 1, v24")
    a(f"  s_lshl_b32 {sT2}, {sW}, 2")
    a(f"  v_add_u32 v24, {sT2}, v24")
    a("  s_waitcnt lgkmcnt(0)")
    a("  v_add_f32 v16, v16, v17")
    a("  v_add_f32 v18, v18, v19")
    a("  v_add_f32 v20, v20, v21")
    a("  v_add_f32 v22, v22, v23")
    a("  v_add_f32 v16, v16, v18")
    a("  v_add_f32 v20, v20, v22")
    bf16round(16, 16)
    bf16round(20, 20)
    a("  v_mul_f32 v17, v16, v16")
    a("  v_mul_f32 v17, v17, v16")
    a(f"  v_mul_f32 v17, {f32(0.044715)}, v17")
    a("  v_add_f32 v17, v16, v17")
    a(f"  v_mul_f32 v17, {f32(-2.0*0.7978845608028654*1.4426950408889634)}, v17")
    a("  v_exp_f32 v17, v17")
    a("  v_add_f32 v17, 1.0, v17")
    a("  v_rcp_f32 v17, v17")
    a("  v_mul_f32 v17, v16, v17")
    bf16round(17, 17)
    a("  v_mul_f32 v17, v17, v20")
    a("  v_cvt_pk_bf16_f32 v17, v17, v17")
    a(f"  ds_write_b16 v24, v17 offset:{HIDT}")
    a("  s_waitcnt lgkmcnt(0)")
    a("  s_barrier")
    HX = 16
    a(f"  s_lshl_b32 {sT2}, {sW}, 7")
    a(f"  v_mov_b32 v15, {sT2}")
    for pp in range(8):
        a(f"  ds_read_b128 v[{HX+4*pp}:{HX+4*pp+3}], v15 offset:{HIDT + 16*pp}")
    DA = 176
    for t in range(40):
        a(f"  v_mov_b32 v{DA+t}, 0")
    a("  s_waitcnt vmcnt(0) lgkmcnt(0)")
    PT2 = 48
    for pp in range(8):
        r0, r1 = 2 * pp, 2 * pp + 1
        for dw in range(4):
            a(f"  v_perm_b32 v{PT2+2*dw}, v{DW+4*r1+dw}, v{DW+4*r0+dw}, {sPermLo}")
            a(f"  v_perm_b32 v{PT2+2*dw+1}, v{DW+4*r1+dw}, v{DW+4*r0+dw}, {sPermHi}")
        a(f"  v_perm_b32 v{PT2+8}, v{DW+64+r1}, v{DW+64+r0}, {sPermLo}")
        a(f"  v_perm_b32 v{PT2+9}, v{DW+64+r1}, v{DW+64+r0}, {sPermHi}")
        for b in range(4):
            for cidx in range(10):
                a(f"  v_dot2c_f32_bf16 v{DA+4*cidx+b}, v{PT2+cidx}, v{HX+4*pp+b}")
    a(f"  s_mul_i32 {sT2}, {sW}, 10240")
    a(f"  v_lshl_add_u32 v12, v{vLane}, 7, {sT2}")
    a(f"  v_lshl_add_u32 v13, v{vLane}, 5, {sT2}")
    a("  s_nop 1")
    for cidx in range(8):
        a(f"  ds_write_b128 v12, v[{DA+4*cidx}:{DA+4*cidx+3}] offset:{FR2 + 16*cidx}")
    for cidx in range(2):
        a(f"  ds_write_b128 v13, v[{DA+32+4*cidx}:{DA+32+4*cidx+3}] offset:{FR2 + 8192 + 16*cidx}")
    a(f"  s_add_u32 {T0}, s28, 1")
    a(f"  s_add_u32 {T1}, s29, 1")
    a(f"  v_lshlrev_b32 v14, 3, v{vTid}")
    a(f"  s_mul_i32 {sT}, {sF}, 20480")
    a(f"  s_add_u32 {sT}, {sT}, {FP}")
    a(f"  v_lshl_add_u32 v15, v{vTid}, 4, {sT}")
    a("  s_waitcnt lgkmcnt(0)")
    a("  s_barrier")
    for i in range(5):
        for w2 in range(4):
            a(f"  ds_read_b64 v[{16+2*w2}:{16+2*w2+1}], v14 offset:{FR2 + 10240*w2 + 2048*i}")
        a("  s_waitcnt lgkmcnt(0)")
        a("  v_add_f32 v16, v16, v18")
        a("  v_add_f32 v17, v17, v19")
        a("  v_add_f32 v20, v20, v22")
        a("  v_add_f32 v21, v21, v23")
        a(f"  v_add_f32 v{24+4*i}, v16, v20")
        a(f"  v_add_f32 v{26+4*i}, v17, v21")
        a(f"  v_mov_b32 v{25+4*i}, {T0}")
        a(f"  v_mov_b32 v{27+4*i}, {T1}")
        a(f"  global_store_dwordx4 v15, v[{24+4*i}:{27+4*i}], s[26:27] sc1")
        if i < 4: a(f"  v_add_u32 v15, 4096, v15")
    a.label("L_diag")
    if cfg.diag:
        n = nst[0]
        a("  s_waitcnt lgkmcnt(0)")
        a(f"  s_lshl_b32 {sT}, s2, 2")
        a(f"  s_add_u32 {sT}, {sT}, {sW}")
        a(f"  s_lshl_b32 {sT}, {sT}, 7")
        a(f"  s_add_u32 {sT}, {sT}, {STAMP}")
        a(f"  v_mov_b32 v3, {sT}")
        a("  s_mov_b64 exec, 1")
        for i in range(8):
            a(f"  v_mov_b32 v4, s{84+2*i}")
            a(f"  v_mov_b32 v5, s{85+2*i}")
            a(f"  global_store_dwordx2 v3, v[4:5], s[26:27] offset:{8*i}")
            a("  s_nop 1")
    a.label("L_end")
    a("  s_endpgm")
    a('.section .rodata,"a"')
    a(".p2align 6")
    a(f".amdhsa_kernel {KN}")
    a("  .amdhsa_next_free_vgpr 256")
    a("  .amdhsa_next_free_sgpr 102")
    a("  .amdhsa_accum_offset 256")
    a("  .amdhsa_group_segment_fixed_size 0")
    a("  .amdhsa_kernarg_size 96")
    a("  .amdhsa_user_sgpr_count 2")
    a("  .amdhsa_user_sgpr_kernarg_segment_ptr 1")
    a("  .amdhsa_system_sgpr_workgroup_id_x 1")
    a(".end_amdhsa_kernel")
    body = a.finalize()
    return "\n".join(hdr) + "\n" + body

if __name__ == "__main__":
    ap = argparse.ArgumentParser()
    ap.add_argument("-o", default="recurrent_scan__mha_block_cached__geglu_ffn__decode.s")
    ap.add_argument("--diag", action="store_true")
    ap.add_argument("--match", action="store_true")
    ap.add_argument("--R", type=int, default=4)
    args = ap.parse_args()
    cfg = Cfg(); cfg.diag = args.diag; cfg.match = args.match; cfg.R = args.R
    open(args.o, "w").write(build(cfg))
    print("wrote", args.o)
```

```python
import struct, sys, argparse
from asmdsl import Asm

KN = "recurrent_scan__mha_block_cached__geglu_ffn__decode_kernel"
def f32(x): return "0x%08x" % struct.unpack("<I", struct.pack("<f", x))[0]
LOG2E = f32(1.4426950408889634)
SCALE = f32(192 ** -0.5)

STAMP = 0x10000
QP3 = 0x100000
AP  = 0x180000
SP3 = 0x200000
G1  = 0x2A0000
F1  = 0x300000
G2  = 0x301000
FP3 = 0x308000
F3  = 0x344000
TK  = 0x350000
XN  = 0
QB  = 5120
HID = 5632
GV  = 6144
PART = 6400
OB  = 9600
WQS = 11264
F1S = WQS
F2S = WQS + 20480
WO  = WQS + 40960
LA  = WO + 49152

class Cfg:
    R = 2; NL = 0; NA = 1; diag = ''; nt = "nt"; dyn = True; S = 56; match = 2
    sleep = 1; fsleep = 32; hst = "sc1 nt"; hld = "sc1 nt"; qst = "sc1"; qld = "sc1"; tst = "sc1"; tld = "sc1"
    pst = "sc1"; pld = "sc1"; fsleep3 = 120
    noffn = False

def build(cfg):
    a = Asm()
    R, NL, NT = cfg.R, cfg.NL, cfg.nt
    LDS_BYTES = LA + NL * 4 * 6144
    assert LDS_BYTES <= 163840, LDS_BYTES
    sW = "s3"
    sAlive, sNval = "s14", "s15"
    T0, T1 = "s30", "s31"
    srdK, srdV, srdW, srdO, srdG, srdU, srdD, srdT = 32, 36, 40, 44, 48, 52, 76, 80
    sH, sX, sB, sHalf, sU = "s56", "s57", "s58", "s59", "s60"
    sOff, sStr, sI, sT, sT2, sT3 = "s61", "s62", "s63", "s64", "s65", "s66"
    sOnes, sPermLo, sFirst = "s67", "s68", "s69"
    sSpin, sC0 = "s74", "s75"
    sCj = "s100"
    def srd(i): return f"s[{i}:{i+3}]"
    nst = [0]; names = []
    def stamp(name=None, sets="main"):
        if cfg.diag and cfg.diag in sets.split(","):
            i = 84 + 2 * nst[0]; nst[0] += 1
            assert i <= 98, name
            names.append(name)
            a(f"  s_memrealtime s[{i}:{i+1}]")
    vTid, vLane, vKV = 0, 1, 2
    vHf, vCc, vG, vC = 4, 5, 6, 7
    RING = 160
    def Kr(s, j): return RING + 24 * s + 4 * j
    def Vr(s, j): return RING + 24 * s + 12 + 4 * j
    ACC, Q, vM, vL, TKR, vTKo = 136, 124, 122, 123, 118, 116

    def mk_srd(i, lo, size):
        a(f"  s_mov_b32 s{i}, s{lo}")
        a(f"  s_mov_b32 s{i+1}, s{lo+1}")
        a(f"  s_mov_b32 s{i+2}, {size}")
        a(f"  s_mov_b32 s{i+3}, 0x20000")
    def dpp(op, v, ctrl): a(f"  {op} v{v}, v{v}, v{v} {ctrl} row_mask:0xf bank_mask:0xf")
    def allreduce64(v, t, op):
        for n in (1, 2, 4, 8): dpp(op, v, f"row_ror:{n}")
        for sw in ("16", "32"):
            a(f"  v_mov_b32 v{t}, v{v}")
            a(f"  v_permlane{sw}_swap_b32 v{v}, v{t}")
            a(f"  {op} v{v}, v{v}, v{t}")
    def reduce_hi(regs, tmps, rors=(8,)):
        for n in rors:
            for r in regs: dpp("v_add_f32", r, f"row_ror:{n}")
        for sw in ("16", "32"):
            for r, t in zip(regs, tmps): a(f"  v_mov_b32 v{t}, v{r}")
            for r, t in zip(regs, tmps): a(f"  v_permlane{sw}_swap_b32 v{r}, v{t}")
            for r, t in zip(regs, tmps): a(f"  v_add_f32 v{r}, v{r}, v{t}")
    def bf16round(dst, src):
        a(f"  v_cvt_pk_bf16_f32 v{dst}, v{src}, v{src}")
        a(f"  v_lshlrev_b32 v{dst}, 16, v{dst}")
    def check_tags(bases, vflag):
        first = True
        for r in bases:
            a(f"  v_xor_b32 v{vflag if first else vflag+1}, {T0}, v{r+1}")
            if not first: a(f"  v_or_b32 v{vflag}, v{vflag}, v{vflag+1}")
            first = False
            a(f"  v_xor_b32 v{vflag+1}, {T1}, v{r+3}")
            a(f"  v_or_b32 v{vflag}, v{vflag}, v{vflag+1}")
        a(f"  v_cmp_ne_u32 vcc, 0, v{vflag}")
    def spin_guard(sleep=0):
        a(f"  s_add_u32 {sSpin}, {sSpin}, 1")
        a(f"  s_cmp_gt_u32 {sSpin}, 100000")
        a("  s_cbranch_scc1 L_end")
        if sleep: a(f"  s_sleep {sleep}")
    def select4(dst, r0, r1, r2, r3, masks):
        a(f"  v_cndmask_b32 v{dst}, v{r0}, v{r1}, {masks[0]}")
        a(f"  v_cndmask_b32 v{dst}, v{dst}, v{r2}, {masks[1]}")
        a(f"  v_cndmask_b32 v{dst}, v{dst}, v{r3}, {masks[2]}")
    def quarter_masks(vsel, masks):
        for i, m in enumerate(masks): a(f"  v_cmp_eq_u32 {m}, {i+1}, v{vsel}")

    def layernorm(vx, tb):
        d = [tb + 10 + j for j in range(10)]
        acc, t, mean, mbf, r = tb + 20, tb + 21, tb + 22, tb + 23, tb + 24
        a(f"  v_mov_b32 v{acc}, 0")
        for j in range(5): a(f"  v_dot2c_f32_bf16 v{acc}, {sOnes}, v{vx+j}")
        for j in range(5):
            a(f"  v_lshlrev_b32 v{tb+2*j}, 16, v{vx+j}")
            a(f"  v_and_b32 v{tb+2*j+1}, 0xffff0000, v{vx+j}")
        allreduce64(acc, t, "v_add_f32")
        a(f"  v_mul_f32 v{mean}, {f32(1.0/640)}, v{acc}")
        bf16round(mbf, mean)
        a(f"  v_mov_b32 v{acc}, 0")
        for j in range(10): a(f"  v_sub_f32 v{d[j]}, v{tb+j}, v{mean}")
        for j in range(10): a(f"  v_fmac_f32 v{acc}, v{d[j]}, v{d[j]}")
        for j in range(10): a(f"  v_sub_f32 v{d[j]}, v{tb+j}, v{mbf}")
        allreduce64(acc, t, "v_add_f32")
        a(f"  v_mul_f32 v{acc}, {f32(1.0/640)}, v{acc}")
        bf16round(acc, acc)
        a(f"  v_add_f32 v{acc}, {f32(1e-5)}, v{acc}")
        bf16round(acc, acc)
        a(f"  v_sqrt_f32 v{acc}, v{acc}")
        bf16round(acc, acc)
        a(f"  v_rcp_f32 v{r}, v{acc}")
        for j in range(5): a(f"  v_cvt_pk_bf16_f32 v{tb+j}, v{d[2*j]}, v{d[2*j+1]}")
        for j in range(5):
            a(f"  v_lshlrev_b32 v{d[2*j]}, 16, v{tb+j}")
            a(f"  v_and_b32 v{d[2*j+1]}, 0xffff0000, v{tb+j}")
        for j in range(10): a(f"  v_mul_f32 v{d[j]}, v{d[j]}, v{r}")
        for j in range(5): a(f"  v_cvt_pk_bf16_f32 v{tb+j}, v{d[2*j]}, v{d[2*j+1]}")
        a(f"  s_mul_i32 {sT}, {sW}, 1280")
        a(f"  v_lshl_add_u32 v{t}, v{vLane}, 2, {sT}")
        for j in range(5): a(f"  ds_write_b32 v{t}, v{tb+j} offset:{XN + j*256}")

    hdr = [f"; @launch grid=(256,1,1) block=(320,1,1) lds={LDS_BYTES}"]
    a('.amdgcn_target "amdgcn-amd-amdhsa--gfx950"')
    a(".text")
    a(f".globl {KN}")
    a(".p2align 8")
    a(f".type {KN},@function")
    a.label(KN)
    a("  s_cmp_ge_u32 s2, 256")
    a("  s_cbranch_scc1 L_end")
    if cfg.diag:
        for i in range(84, 100): a(f"  s_mov_b32 s{i}, 0")
    stamp("start", "main,pro,tail,ffn")
    a("  s_load_dwordx8 s[4:11], s[0:1], 0")
    a("  s_load_dwordx2 s[12:13], s[0:1], 32")
    a("  s_load_dwordx8 s[16:23], s[0:1], 48")
    a("  s_load_dwordx4 s[24:27], s[0:1], 80")
    a(f"  v_lshrrev_b32 v3, 6, v{vTid}")
    a(f"  v_and_b32 v{vLane}, 63, v{vTid}")
    a(f"  v_readfirstlane_b32 {sW}, v3")
    a(f"  s_mov_b32 {sSpin}, 0")
    a(f"  s_mov_b32 {sOnes}, 0x3f803f80")
    a(f"  s_mov_b32 {sPermLo}, 0x05040100")
    a(f"  s_lshr_b32 {sH}, s2, 3")
    a(f"  s_and_b32 {sX}, s2, 7")
    a(f"  v_lshrrev_b32 v{vHf}, 5, v{vLane}")
    a(f"  v_and_b32 v{vCc}, 31, v{vLane}")
    a(f"  v_lshrrev_b32 v{vG}, 3, v{vLane}")
    a(f"  v_and_b32 v{vC}, 7, v{vLane}")
    if cfg.match == 2:
        a(f"  s_and_b32 {sT}, {sH}, 1")
        a(f"  s_lshl_b32 {sT}, {sT}, 1")
        a(f"  s_add_u32 {sT}, {sT}, 3")
        a(f"  s_and_b32 {sHalf}, {sX}, 1")
        a(f"  s_mul_i32 {sT}, {sT}, {sHalf}")
        a(f"  s_xor_b32 {sT}, {sT}, {sX}")
        a(f"  s_lshr_b32 {sB}, {sT}, 1")
    else:
        a(f"  s_lshr_b32 {sB}, {sX}, 1")
        a(f"  s_and_b32 {sHalf}, {sX}, 1")
    a(f"  s_lshl_b32 {sU}, {sB}, 1")
    a(f"  s_add_u32 {sU}, {sU}, {sHalf}")
    a(f"  s_cmp_eq_u32 {sHalf}, 0")
    a(f"  s_cselect_b32 {sCj}, {sB}, 8")
    a(f"  s_cmp_eq_u32 {sU}, 7")
    a(f"  s_cselect_b32 {sCj}, 4, {sCj}")
    a(f"  s_cmp_eq_u32 {sW}, 4")
    a("  s_cbranch_scc1 L_svc")

    vXo, vWq = 8, 9
    a(f"  v_mul_u32_u24 v{vKV}, 384, v{vG}")
    a(f"  v_lshl_add_u32 v{vKV}, v{vC}, 4, v{vKV}")
    a(f"  v_mul_u32_u24 v{vWq}, 12288, v{vG}")
    a(f"  v_lshl_add_u32 v{vWq}, v{vC}, 4, v{vWq}")
    a(f"  s_mul_i32 {sT}, {sW}, 1280")
    a(f"  v_lshl_add_u32 v{vXo}, v{vLane}, 2, {sT}")
    a("  s_waitcnt lgkmcnt(0)")
    stamp("karg", "pro")
    a("  s_load_dwordx2 s[28:29], s[26:27], 0")
    VX = 11
    for j in range(5):
        a(f"  global_load_dword v{VX+j}, v{vXo}, s[4:5] offset:{j*256}")
    mk_srd(srdW, 10, 7864320)
    a(f"  s_cmp_ge_u32 {sU}, 6")
    a("  s_cbranch_scc1 L_nowq")
    a(f"  s_mul_i32 {sT}, {sHalf}, 320")
    a(f"  s_mul_i32 {sT2}, {sW}, 80")
    a(f"  s_add_u32 {sT}, {sT}, {sT2}")
    a(f"  s_mul_i32 {sT}, {sT}, 12288")
    a(f"  s_mul_i32 {sT3}, {sH}, 384")
    a(f"  s_add_u32 {sT}, {sT}, {sT3}")
    a(f"  s_lshl_b32 {sT3}, {sB}, 7")
    a(f"  s_add_u32 {sT}, {sT}, {sT3}")
    a(f"  s_lshl_b32 {sT2}, {sT2}, 7")
    a(f"  s_add_u32 {sT2}, {sT2}, {WQS}")
    for i in range(10):
        a(f"  s_add_u32 m0, {sT2}, {1024*i}")
        a(f"  buffer_load_dwordx4 v{vWq}, {srd(srdW)}, {sT} offen {NT} lds")
        if i < 9: a(f"  s_add_u32 {sT}, {sT}, {8*12288}")
    a.label("L_nowq")
    mk_srd(srdK, 6, 201326592)
    mk_srd(srdV, 8, 201326592)
    mk_srd(srdO, 12, 7864320)
    CH = 7 if cfg.dyn else 6
    nb = 1 if cfg.dyn else 0
    if cfg.dyn:
        a(f"  s_lshl_b32 {sT}, {sH}, 2")
        a(f"  s_add_u32 {sT}, {sT}, {sB}")
        a(f"  s_lshl_b32 {sT}, {sT}, 2")
        a(f"  s_add_u32 {sT}, {sT}, {sW}")
        a(f"  s_lshl_b32 {sT}, {sT}, 7")
        a(f"  v_mov_b32 v{vTKo}, 0x7ffffff0")
        a(f"  v_mov_b32 v3, {sT}")
        a(f"  v_cmp_eq_u32 vcc, 0, v{vLane}")
        a(f"  v_cndmask_b32 v{vTKo}, v{vTKo}, v3, vcc")
        a(f"  s_add_u32 s{srdT}, s26, {TK}")
        a(f"  s_addc_u32 s{srdT+1}, s27, 0")
        a(f"  s_mov_b32 s{srdT+2}, 65536")
        a(f"  s_mov_b32 s{srdT+3}, 0x20000")
        a(f"  buffer_load_dword v117, v{vTKo}, {srd(srdT)}, 0 offen sc1")
        a(f"  s_mov_b32 s{srdT+2}, 0")
    a(f"  s_lshl_b32 {sT}, {sB}, 5")
    a(f"  s_add_u32 {sT}, {sT}, {sH}")
    a(f"  s_mul_i32 {sOff}, {sT}, 1572864")
    if not cfg.dyn:
        a(f"  s_mul_i32 {sT}, {sHalf}, 786432")
        a(f"  s_add_u32 {sOff}, {sOff}, {sT}")
        a(f"  s_mul_i32 {sT}, {sW}, 196608")
        a(f"  s_add_u32 {sOff}, {sOff}, {sT}")
        a(f"  s_mov_b32 {sStr}, 3072")
    else:
        a(f"  s_mul_i32 {sT}, {sW}, 393216")
        a(f"  s_add_u32 {sOff}, {sOff}, {sT}")
        a(f"  s_mul_i32 {sT}, {sHalf}, {393216-3072}")
        a(f"  s_add_u32 {sOff}, {sOff}, {sT}")
        a(f"  s_mul_i32 {sStr}, {sHalf}, -6144")
        a(f"  s_add_u32 {sStr}, {sStr}, 3072")
    def issueT(s):
        if cfg.dyn:
            a(f"  v_mov_b32 v{TKR+s}, 1")
            a(f"  buffer_atomic_add v{TKR+s}, v{vTKo}, {srd(srdT)}, 0 offen sc0 sc1")
    def issueK(s):
        for j in range(3):
            a(f"  buffer_load_dwordx4 v[{Kr(s,j)}:{Kr(s,j)+3}], v{vKV}, {srd(srdK)}, {sOff} offen offset:{128*j} {NT}")
    def issueV(s):
        for j in range(3):
            a(f"  buffer_load_dwordx4 v[{Vr(s,j)}:{Vr(s,j)+3}], v{vKV}, {srd(srdV)}, {sOff} offen offset:{128*j} {NT}")
        a(f"  s_add_u32 {sOff}, {sOff}, {sStr}")
    sLb = "s101"
    def issueL(k):
        for srdx, o in ((srdK, 0), (srdV, 3072)):
            for j in range(3):
                a(f"  s_add_u32 m0, {sLb}, {6144*k + o + 896*j}")
                a(f"  buffer_load_dwordx4 v{vKV}, {srd(srdx)}, {sOff} offen offset:{128*j} {NT} lds")
        a(f"  s_add_u32 {sOff}, {sOff}, {sStr}")
    NA = cfg.NA
    for s in range(NA):
        issueT(s); issueK(s); issueV(s)
    stamp("issued", "main")
    a(f"  s_cmp_ge_u32 {sU}, 6")
    a("  s_cbranch_scc1 L_xw2")
    a(f"  s_waitcnt vmcnt({10 + nb + CH*NA})")
    a("  s_branch L_xw3")
    a.label("L_xw2")
    a(f"  s_waitcnt vmcnt({nb + CH*NA})")
    a.label("L_xw3")
    stamp("xarr", "pro")
    layernorm(VX, 16)
    vQa, vQb, vQp = 10, 44, 45
    a(f"  v_lshrrev_b32 v3, 4, v{vLane}")
    a(f"  v_and_b32 v47, 3, v{vLane}")
    a(f"  v_mul_u32_u24 v{vQa}, 1280, v47")
    a(f"  v_lshl_add_u32 v{vQa}, v3, 4, v{vQa}")
    a(f"  s_mul_i32 {sT}, {sHalf}, 640")
    a(f"  v_add_u32 v{vQa}, {sT}, v{vQa}")
    a(f"  v_bfe_u32 v50, v{vLane}, 2, 2")
    a(f"  v_lshl_add_u32 v48, v3, 3, v50")
    a(f"  v_lshlrev_b32 v48, 7, v48")
    a(f"  v_lshl_add_u32 v48, v47, 3, v48")
    a(f"  s_lshl_b32 {sT}, {sW}, 5")
    a(f"  s_add_u32 {sT}, {sT}, {WQS}")
    a(f"  v_add_u32 v{vQb}, {sT}, v48")
    a(f"  s_mul_i32 {sT}, {sH}, 6")
    a(f"  s_add_u32 {sT}, {sT}, {sU}")
    a(f"  s_lshl_b32 {sT}, {sT}, 11")
    a(f"  s_lshl_b32 {sT2}, {sW}, 7")
    a(f"  s_add_u32 {sT}, {sT}, {sT2}")
    a(f"  s_add_u32 {sT}, {sT}, {QP3}")
    a(f"  v_lshlrev_b32 v{vQp}, 9, v3")
    a(f"  v_bfe_u32 v49, v{vLane}, 1, 3")
    a(f"  v_lshl_add_u32 v{vQp}, v49, 4, v{vQp}")
    a(f"  v_add_u32 v{vQp}, {sT}, v{vQp}")
    MQ = ("s[72:73]", "s[70:71]", "s[24:25]")
    quarter_masks(3, MQ)
    a(f"  s_waitcnt vmcnt({CH*NA}) lgkmcnt(0)")
    if cfg.dyn:
        a(f"  v_readfirstlane_b32 {sC0}, v117")
    a(f"  s_add_u32 {T0}, s28, 1")
    a(f"  s_add_u32 {T1}, s29, 1")
    a("  s_barrier")
    stamp("bar1", "pro")
    a(f"  s_cmp_ge_u32 {sU}, 6")
    a("  s_cbranch_scc1 L_noq")
    QD0, QD1 = 96, 100
    for e in range(8): a(f"  v_mov_b32 v{QD0+e}, 0")
    def breg(st):
        if st < 5: return 76 + 4*st
        return (104, 108, 112, 36, 40)[st-5]
    def areg(st): return (16 + 4*st) if st < 5 else (56 + 4*(st-5))
    for st in range(10):
        a(f"  ds_read_b128 v[{areg(st)}:{areg(st)+3}], v{vQa} offset:{XN + 64*st}")
        a(f"  ds_read_b64_tr_b16 v[{breg(st)}:{breg(st)+1}], v{vQb} offset:{4096*st}")
        a(f"  ds_read_b64_tr_b16 v[{breg(st)+2}:{breg(st)+3}], v{vQb} offset:{4096*st + 512}")
    for st in range(10):
        if st % 2 == 0: a(f"  s_waitcnt lgkmcnt({min(15, 3*(10-st-2))})") if st < 8 else a("  s_waitcnt lgkmcnt(0)")
        D = QD0 if st % 2 == 0 else QD1
        a(f"  v_mfma_f32_16x16x32_bf16 v[{D}:{D+3}], v[{areg(st)}:{areg(st)+3}], v[{breg(st)}:{breg(st)+3}], v[{D}:{D+3}]")
    for e in range(4): a(f"  v_add_f32 v{QD0+e}, v{QD0+e}, v{QD1+e}")
    GP = 48
    a(f"  v_mov_b32 v{GP+1}, {T0}")
    a(f"  v_mov_b32 v{GP+3}, {T1}")
    select4(GP, QD0, QD0+1, QD0+2, QD0+3, MQ)
    a(f"  v_mov_b32 v{GP+2}, v{GP} quad_perm:[1,0,3,2] row_mask:0xf bank_mask:0xf")
    a("  s_mov_b32 exec_lo, 0x55555555")
    a("  s_mov_b32 exec_hi, 0x55555555")
    a(f"  global_store_dwordx4 v{vQp}, v[{GP}:{GP+3}], s[26:27] {cfg.qst}")
    a("  s_mov_b64 exec, -1")
    a.label("L_noq")
    stamp("qpub", "main,pro")
    a(f"  s_cmp_ge_u32 {sCj}, 8")
    a("  s_cbranch_scc1 L_nowo")
    vWo = 41
    a(f"  v_lshrrev_b32 v3, 4, v{vLane}")
    a(f"  v_mul_u32_u24 v{vWo}, 1280, v3")
    a(f"  v_and_b32 v42, 15, v{vLane}")
    a(f"  v_lshl_add_u32 v{vWo}, v42, 4, v{vWo}")
    a(f"  s_mul_i32 {sT}, {sH}, 192")
    a(f"  s_mul_i32 {sT2}, {sW}, 48")
    a(f"  s_add_u32 {sT}, {sT}, {sT2}")
    a(f"  s_mul_i32 {sT}, {sT}, 1280")
    a(f"  s_lshl_b32 {sT3}, {sCj}, 8")
    a(f"  s_add_u32 {sT}, {sT}, {sT3}")
    a(f"  s_mul_i32 {sT2}, {sW}, {48*256}")
    a(f"  s_add_u32 {sT2}, {sT2}, {WO}")
    def wo_dma():
        for i in range(12):
            a(f"  s_add_u32 m0, {sT2}, {1024*i}")
            a(f"  buffer_load_dwordx4 v{vWo}, {srd(srdO)}, {sT} offen {NT} lds")
            if i < 11: a(f"  s_add_u32 {sT}, {sT}, {4*1280}")
    if not cfg.wo_late: wo_dma()
    a.label("L_nowo")
    for s in range(NA, R):
        issueT(s); issueK(s); issueV(s)
    a(f"  s_mul_i32 {sLb}, {sW}, {NL*6144}")
    a(f"  s_add_u32 {sLb}, {sLb}, {LA}")
    for k in range(NL): issueL(k)
    if cfg.wo_late:
        a(f"  s_cmp_ge_u32 {sCj}, 8")
        a("  s_cbranch_scc1 L_nowo2")
        wo_dma()
        a.label("L_nowo2")
    a(f"  v_lshlrev_b32 v3, 4, v{vC}")
    for t in range(24): a(f"  v_mov_b32 v{ACC+t}, 0")
    a(f"  v_mov_b32 v{vM}, 0xff800000")
    a(f"  v_mov_b32 v{vL}, 0")
    a("  s_barrier")
    for j in range(3):
        a(f"  ds_read_b128 v[{Q+4*j}:{Q+4*j+3}], v3 offset:{QB + 128*j}")
    LIM = (cfg.S if cfg.dyn else 64) - R - NL
    if cfg.dyn:
        P = 128 - 2 * cfg.S
        assert cfg.S - NL >= 2 * R
    a(f"  s_mov_b32 {sI}, 0")
    a(f"  s_mov_b32 {sNval}, {R}")
    a(f"  s_mov_b32 {sAlive}, 1")
    a(f"  s_mov_b32 {sFirst}, {1 if NL else 0}")
    a("  s_waitcnt lgkmcnt(0)")
    stamp("qready", "main,pro")

    t0, t1, t2, sS, mn, al, ee, pl, ph = 100, 101, 102, 103, 104, 105, 106, 107, 108
    def scores(K0):
        for i in range(4):
            for j in range(3):
                a(f"  v_dot2c_f32_bf16 v{t0+j}, v{K0+4*j+i}, v{Q+4*j+i}")
    def softmax(tag):
        a(f"  v_add_f32 v{t0}, v{t0}, v{t1}")
        a(f"  v_add_f32 v{t0}, v{t0}, v{t2}")
        dpp("v_add_f32", t0, "quad_perm:[1,0,3,2]")
        dpp("v_add_f32", t0, "quad_perm:[2,3,0,1]")
        dpp("v_add_f32", t0, "row_half_mirror")
        bf16round(t1, t0)
        a(f"  v_mul_f32 v{t1}, {SCALE}, v{t1}")
        bf16round(sS, t1)
        a(f"  v_max_f32 v{mn}, v{vM}, v{sS}")
        a(f"  v_cmp_gt_f32 vcc, v{sS}, v{vM}")
        a(f"  v_sub_f32 v{al}, v{vM}, v{mn}")
        a(f"  v_sub_f32 v{ee}, v{sS}, v{mn}")
        a(f"  v_mul_f32 v{al}, {LOG2E}, v{al}")
        a(f"  v_mul_f32 v{ee}, {LOG2E}, v{ee}")
        a(f"  v_exp_f32 v{al}, v{al}")
        a(f"  v_exp_f32 v{ee}, v{ee}")
        a(f"  v_mov_b32 v{vM}, v{mn}")
        a(f"  v_fma_f32 v{vL}, v{vL}, v{al}, v{ee}")
        a(f"  v_cvt_pk_bf16_f32 v{pl}, v{ee}, 0")
        a(f"  v_cvt_pk_bf16_f32 v{ph}, 0, v{ee}")
        a(f"  s_cbranch_vccz L_nors{tag}")
        for t in range(24): a(f"  v_mul_f32 v{ACC+t}, v{ACC+t}, v{al}")
        a.label(f"L_nors{tag}")
    def pv(V0):
        for j in range(3):
            for i in range(4):
                a(f"  v_dot2c_f32_bf16 v{ACC+8*j+2*i}, v{V0+4*j+i}, v{pl}")
                a(f"  v_dot2c_f32_bf16 v{ACC+8*j+2*i+1}, v{V0+4*j+i}, v{ph}")
    def zero_t():
        for t in (t0, t1, t2): a(f"  v_mov_b32 v{t}, 0")
    a.label("L_loop")
    for s in range(R):
        zero_t()
        a(f"  s_waitcnt vmcnt({3 + CH*(R-1)})")
        if cfg.dyn:
            a(f"  v_readfirstlane_b32 {sT}, v{TKR+s}")
        scores(Kr(s, 0))
        if cfg.dyn:
            a(f"  s_sub_u32 {sT}, {sT}, {sC0}")
            a(f"  s_cmp_lt_u32 {sT}, {P}")
            a(f"  s_cselect_b32 {sT}, {sAlive}, 0")
            a(f"  s_cmp_lt_u32 {sI}, {LIM}")
            a(f"  s_cselect_b32 {sAlive}, 1, {sT}")
        else:
            a(f"  s_cmp_lt_u32 {sI}, {LIM}")
            a(f"  s_cselect_b32 {sAlive}, 1, 0")
        a(f"  s_add_u32 {sNval}, {sNval}, {sAlive}")
        a(f"  s_cmp_eq_u32 {sAlive}, 0")
        a(f"  s_cselect_b32 s{srdK+2}, 0, s{srdK+2}")
        a(f"  s_cselect_b32 s{srdV+2}, 0, s{srdV+2}")
        if cfg.dyn:
            a(f"  s_cmp_ge_u32 {sI}, {LIM - R}")
            a(f"  s_cselect_b32 {sT}, {sAlive}, 0")
            a(f"  s_lshl_b32 s{srdT+2}, {sT}, 16")
            issueT(s)
        issueK(s)
        softmax(s)
        a(f"  s_waitcnt vmcnt({CH*(R-1) + (4 if cfg.dyn else 3)})")
        pv(Vr(s, 0))
        issueV(s)
        a(f"  s_add_u32 {sI}, {sI}, 1")
        a(f"  s_cmp_lt_u32 {sI}, {sNval}")
        if s < R - 1 or NL:
            a("  s_cbranch_scc0 L_tail")
        else:
            a("  s_cbranch_scc1 L_loop")
    if NL:
        a(f"  s_cmp_eq_u32 {sFirst}, 0")
        a("  s_cbranch_scc1 L_loop")
        LK = 16
        a(f"  s_mov_b32 {sFirst}, 0")
        a(f"  v_lshl_add_u32 v3, v{vLane}, 4, {sLb}")
        a(f"  s_waitcnt vmcnt({CH*R})")
        a(f"  s_mov_b32 {sT2}, 0")
        a.label("L_lds")
        for j in range(6):
            a(f"  ds_read_b128 v[{LK+4*j}:{LK+4*j+3}], v3 offset:{1024*j}")
        zero_t()
        a(f"  v_add_u32 v3, 6144, v3")
        a("  s_waitcnt lgkmcnt(3)")
        scores(LK)
        softmax("L")
        a("  s_waitcnt lgkmcnt(0)")
        pv(LK + 12)
        a(f"  s_add_u32 {sT2}, {sT2}, 1")
        a(f"  s_cmp_lt_u32 {sT2}, {NL}")
        a("  s_cbranch_scc1 L_lds")
        a("  s_branch L_loop")
    a.label("L_tail")
    stamp("loopend", "main,tail")

    vSa, vOi, vXv, vGv = 12, 14, 15, 19
    tA, tB = 100, 101
    a(f"  v_max_f32 v{tA}, v{vM}, v{vM} row_ror:8 row_mask:0xf bank_mask:0xf")
    for sw in ("16", "32"):
        a(f"  v_mov_b32 v{tB}, v{tA}")
        a(f"  v_permlane{sw}_swap_b32 v{tA}, v{tB}")
        a(f"  v_max_f32 v{tA}, v{tA}, v{tB}")
    a(f"  v_sub_f32 v{tB}, v{vM}, v{tA}")
    a(f"  v_mul_f32 v{tB}, {LOG2E}, v{tB}")
    a(f"  v_exp_f32 v{tB}, v{tB}")
    a(f"  v_lshrrev_b32 v102, 4, v{vLane}")
    a(f"  v_mul_u32_u24 v102, 6, v102")
    a(f"  s_mul_i32 {sT}, {sW}, 800")
    a(f"  s_add_u32 {sT}, {sT}, {PART}")
    a(f"  v_lshl_add_u32 v103, v{vC}, 5, {sT}")
    for k in range(3):
        a(f"  v_add_u32 v104, {2*k}, v102")
        a(f"  v_lshrrev_b32 v105, 3, v104")
        a(f"  v_and_b32 v104, 7, v104")
        a(f"  v_lshlrev_b32 v105, 8, v105")
        a(f"  v_lshl_add_u32 v105, v104, 2, v105")
        a(f"  v_add_u32 v{106+k}, v105, v103")
    a(f"  v_mul_f32 v{vL}, v{vL}, v{tB}")
    for t in range(24): a(f"  v_mul_f32 v{ACC+t}, v{ACC+t}, v{tB}")
    dpp("v_add_f32", vL, "row_ror:8")
    for t in range(12): a(f"  v_permlane32_swap_b32 v{ACC+t}, v{ACC+t+12}")
    a(f"  v_mov_b32 v{tB}, v{vL}")
    a(f"  v_permlane16_swap_b32 v{vL}, v{tB}")
    for t in range(12): a(f"  v_add_f32 v{ACC+t}, v{ACC+t}, v{ACC+t+12}")
    a(f"  v_add_f32 v{vL}, v{vL}, v{tB}")
    for t in range(6): a(f"  v_permlane16_swap_b32 v{ACC+t}, v{ACC+t+6}")
    a(f"  v_mov_b32 v{tB}, v{vL}")
    a(f"  v_permlane32_swap_b32 v{vL}, v{tB}")
    for t in range(6): a(f"  v_add_f32 v{ACC+t}, v{ACC+t}, v{ACC+t+6}")
    a(f"  v_add_f32 v{tB}, v{vL}, v{tB}")
    for t in range(6): dpp("v_add_f32", ACC+t, "row_ror:8")
    a(f"  v_mov_b32 v109, {sT}")
    for k in range(3):
        a(f"  ds_write_b64 v{106+k}, v[{ACC+2*k}:{ACC+2*k+1}]")
    a(f"  ds_write_b64 v109, v[{tA}:{tB}] offset:768")
    a("  s_waitcnt vmcnt(0) lgkmcnt(0)")
    a("  s_barrier")
    stamp("tbar1", "tail")
    a(f"  s_cmp_ge_u32 {sW}, 2")
    a("  s_cbranch_scc1 L_nomerge")
    MB = 100
    a(f"  v_lshlrev_b32 v3, 3, v{vTid}")
    a(f"  v_mov_b32 v8, {PART+768}")
    for w2 in range(4):
        a(f"  ds_read_b64 v[{MB+2*w2}:{MB+2*w2+1}], v3 offset:{PART+800*w2}")
        a(f"  ds_read_b64 v[{MB+8+2*w2}:{MB+8+2*w2+1}], v8 offset:{800*w2}")
    a(f"  s_lshl_b32 {sT}, {sH}, 3")
    a(f"  s_add_u32 {sT}, {sT}, {sU}")
    a(f"  s_lshl_b32 {sT}, {sT}, 11")
    a(f"  s_add_u32 {sT}, {sT}, {AP}")
    a(f"  v_lshl_add_u32 v9, v{vTid}, 4, {sT}")
    a("  s_waitcnt lgkmcnt(0)")
    mM = [MB+8+2*w2 for w2 in range(4)]; mL = [x+1 for x in mM]
    a(f"  v_max_f32 v29, v{mM[0]}, v{mM[1]}")
    a(f"  v_max3_f32 v29, v29, v{mM[2]}, v{mM[3]}")
    for w2 in range(4): a(f"  v_sub_f32 v{mM[w2]}, v{mM[w2]}, v29")
    for w2 in range(4): a(f"  v_mul_f32 v{mM[w2]}, {LOG2E}, v{mM[w2]}")
    for w2 in range(4): a(f"  v_exp_f32 v{mM[w2]}, v{mM[w2]}")
    a(f"  v_mul_f32 v116, v{MB}, v{mM[0]}")
    a(f"  v_mul_f32 v118, v{MB+1}, v{mM[0]}")
    a(f"  v_mul_f32 v30, v{mL[0]}, v{mM[0]}")
    for w2 in range(1, 4):
        a(f"  v_fmac_f32 v116, v{MB+2*w2}, v{mM[w2]}")
        a(f"  v_fmac_f32 v118, v{MB+2*w2+1}, v{mM[w2]}")
        a(f"  v_fmac_f32 v30, v{mL[w2]}, v{mM[w2]}")
    a(f"  v_cmp_eq_u32 vcc, 96, v{vTid}")
    a(f"  v_cndmask_b32 v116, v116, v29, vcc")
    a(f"  v_cndmask_b32 v118, v118, v30, vcc")
    a(f"  v_mov_b32 v117, {T0}")
    a(f"  v_mov_b32 v119, {T1}")
    a(f"  v_cmp_ge_u32 vcc, 96, v{vTid}")
    a(f"  s_and_saveexec_b64 s[72:73], vcc")
    a(f"  global_store_dwordx4 v9, v[116:119], s[26:27] {cfg.tst}")
    a(f"  s_mov_b64 exec, s[72:73]")
    a.label("L_nomerge")
    stamp("apub", "main,tail")
    a(f"  s_cmp_ge_u32 {sCj}, 8")
    a("  s_cbranch_scc1 L_diag")
    vH1, vH2 = 16, 17
    HG = RING
    a(f"  s_lshl_b32 {sT}, {sH}, 3")
    a(f"  s_lshl_b32 {sT2}, {sW}, 1")
    a(f"  s_add_u32 {sT}, {sT}, {sT2}")
    a(f"  s_lshl_b32 {sT}, {sT}, 11")
    a(f"  s_add_u32 {sT}, {sT}, {AP}")
    a(f"  v_lshlrev_b32 v3, 11, v{vHf}")
    a(f"  v_add_u32 v3, {sT}, v3")
    a(f"  v_lshl_add_u32 v{vH1}, v{vCc}, 4, v3")
    a(f"  v_add_u32 v{vH2}, {96*16}, v3")
    def h1_data():
        for k in range(3):
            a(f"  global_load_dwordx4 v[{HG+4*k}:{HG+4*k+3}], v{vH1}, s[26:27] offset:{512*k} {cfg.tld}")
    def h1_head():
        a(f"  global_load_dwordx4 v[{HG+12}:{HG+15}], v{vH2}, s[26:27] {cfg.tld}")
    h1_head(); h1_data()
    BF = 32
    vTr = 18
    a(f"  v_lshrrev_b32 v3, 4, v{vLane}")
    a(f"  v_lshlrev_b32 v3, 3, v3")
    a(f"  v_bfe_u32 v8, v{vLane}, 2, 2")
    a(f"  v_add_u32 v3, v3, v8")
    a(f"  v_lshlrev_b32 v3, 8, v3")
    a(f"  v_and_b32 v8, 3, v{vLane}")
    a(f"  v_lshl_add_u32 v3, v8, 3, v3")
    a(f"  s_lshl_b32 {sT}, {sW}, 6")
    a(f"  s_add_u32 {sT}, {sT}, {WO}")
    a(f"  v_add_u32 v{vTr}, {sT}, v3")
    for tt in range(2):
        for s in range(6):
            r = BF + 24*tt + 4*s
            a(f"  ds_read_b64_tr_b16 v[{r}:{r+1}], v{vTr} offset:{8192*s + 32*tt}")
            a(f"  ds_read_b64_tr_b16 v[{r+2}:{r+3}], v{vTr} offset:{8192*s + 32*tt + 1024}")
    vP0 = 22
    a(f"  v_bfe_u32 v8, v{vLane}, 2, 2")
    a(f"  v_lshlrev_b32 v8, 12, v8")
    a(f"  v_bfe_u32 v9, v{vLane}, 4, 1")
    a(f"  v_lshl_add_u32 v8, v9, 6, v8")
    a(f"  v_and_b32 v9, 3, v{vLane}")
    a(f"  v_lshl_add_u32 v8, v9, 4, v8")
    a(f"  s_lshl_b32 {sT}, {sCj}, 5")
    a(f"  s_lshl_b32 {sT2}, {sW}, 3")
    a(f"  s_add_u32 {sT}, {sT}, {sT2}")
    a(f"  s_lshl_b32 {sT}, {sT}, 12")
    a(f"  s_lshl_b32 {sT2}, {sH}, 7")
    a(f"  s_add_u32 {sT}, {sT}, {sT2}")
    a(f"  s_add_u32 {sT}, {sT}, {SP3}")
    a(f"  v_add_u32 v{vP0}, {sT}, v8")
    a(f"  v_add_u32 v{vP0+1}, {4*4096}, v{vP0}")
    a(f"  s_cmp_lg_u32 {sW}, 0")
    a("  s_cbranch_scc1 L_nofin1")
    a(f"  s_lshl_b32 {sT}, {sCj}, 5")
    a(f"  s_add_u32 {sT}, {sT}, {sH}")
    a(f"  s_lshl_b32 {sT}, {sT}, 12")
    a(f"  s_add_u32 {sT}, {sT}, {SP3}")
    a(f"  v_lshl_add_u32 v{vSa}, v{vLane}, 4, {sT}")
    a(f"  v_bfe_u32 v8, v{vLane}, 2, 1")
    a(f"  v_and_b32 v9, 1, v{vG}")
    a(f"  v_lshl_add_u32 v8, v8, 1, v9")
    a(f"  v_and_b32 v9, 3, v{vLane}")
    a(f"  v_lshlrev_b32 v29, 4, v9")
    a(f"  v_lshl_add_u32 v29, v8, 2, v29")
    a(f"  ds_read_b32 v{vGv}, v29 offset:{GV}")
    a(f"  v_mul_u32_u24 v8, 640, v8")
    a(f"  s_lshl_b32 {sT}, {sCj}, 7")
    a(f"  s_lshl_b32 {sT2}, {sH}, 2")
    a(f"  s_add_u32 {sT}, {sT}, {sT2}")
    a(f"  v_add3_u32 v8, v8, v9, {sT}")
    a(f"  v_lshlrev_b32 v{vOi}, 1, v8")
    a(f"  global_load_ushort v{vXv}, v{vOi}, s[4:5]")
    a.label("L_nofin1")
    a("  s_waitcnt vmcnt(0)")
    check_tags([HG, HG+4, HG+8, HG+12], 20)
    a("  s_cbranch_vccz L_h1ok")
    a.label("L_h1hdr")
    spin_guard(cfg.sleep)
    h1_head()
    a("  s_waitcnt vmcnt(0)")
    check_tags([HG+12], 20)
    a("  s_cbranch_vccnz L_h1hdr")
    h1_data()
    a("  s_waitcnt vmcnt(0)")
    check_tags([HG, HG+4, HG+8], 20)
    a("  s_cbranch_vccnz L_h1hdr")
    a.label("L_h1ok")
    stamp("h1ok", "tail")
    gm, gl = HG+12, HG+14
    a(f"  v_mov_b32 v20, v{gm}")
    a(f"  v_mov_b32 v21, v{gm}")
    a(f"  v_permlane32_swap_b32 v20, v21")
    a(f"  v_max_f32 v20, v20, v21")
    a(f"  v_sub_f32 v21, v{gm}, v20")
    a(f"  v_mul_f32 v21, {LOG2E}, v21")
    a(f"  v_exp_f32 v21, v21")
    a(f"  v_mul_f32 v24, v{gl}, v21")
    a(f"  v_mov_b32 v25, v24")
    a(f"  v_permlane32_swap_b32 v24, v25")
    a(f"  v_add_f32 v24, v24, v25")
    a(f"  v_rcp_f32 v24, v24")
    a(f"  v_mul_f32 v21, v21, v24")
    vals = [HG, HG+2, HG+4, HG+6, HG+8, HG+10]
    for r in vals: a(f"  v_mul_f32 v{r}, v{r}, v21")
    a(f"  v_permlane32_swap_b32 v{vals[0]}, v{vals[2]}")
    a(f"  v_permlane32_swap_b32 v{vals[1]}, v{vals[3]}")
    a(f"  v_mov_b32 v24, v{vals[4]}")
    a(f"  v_mov_b32 v25, v{vals[5]}")
    a(f"  v_add_f32 v{vals[0]}, v{vals[0]}, v{vals[2]}")
    a(f"  v_add_f32 v{vals[1]}, v{vals[1]}, v{vals[3]}")
    a(f"  v_permlane32_swap_b32 v{vals[4]}, v24")
    a(f"  v_permlane32_swap_b32 v{vals[5]}, v25")
    a(f"  v_cvt_pk_bf16_f32 v26, v{vals[0]}, v{vals[1]}")
    a(f"  v_add_f32 v{vals[4]}, v{vals[4]}, v24")
    a(f"  v_add_f32 v{vals[5]}, v{vals[5]}, v25")
    a(f"  s_mul_i32 {sT}, {sW}, 384")
    a(f"  v_lshl_add_u32 v28, v{vLane}, 2, {sT}")
    a(f"  v_lshl_add_u32 v29, v{vCc}, 2, {sT}")
    a(f"  v_cvt_pk_bf16_f32 v27, v{vals[4]}, v{vals[5]}")
    a(f"  ds_write_b32 v28, v26 offset:{OB}")
    a(f"  ds_write_b32 v29, v27 offset:{OB+256}")
    a(f"  v_and_b32 v3, 3, v{vLane}")
    a(f"  v_mul_u32_u24 v3, 384, v3")
    a(f"  v_lshrrev_b32 v8, 4, v{vLane}")
    a(f"  v_lshl_add_u32 v3, v8, 4, v3")
    a(f"  v_and_b32 v8, 16, v{vLane}")
    a(f"  v_cmp_ne_u32 s[72:73], 0, v8")
    a("  s_waitcnt lgkmcnt(0)")
    a("  s_barrier")
    AF = RING + 32
    for s in range(6):
        a(f"  ds_read_b128 v[{AF+4*s}:{AF+4*s+3}], v3 offset:{OB+64*s}")
    D0, D1 = 80, 84
    for e in range(8): a(f"  v_mov_b32 v{D0+e}, 0")
    a(f"  v_mov_b32 v89, {T0}")
    a(f"  v_mov_b32 v91, {T1}")
    a(f"  v_mov_b32 v93, {T0}")
    a(f"  v_mov_b32 v95, {T1}")
    a("  s_waitcnt lgkmcnt(0)")
    for s in range(6):
        for tt, D in ((0, D0), (1, D1)):
            r = BF + 24*tt + 4*s
            a(f"  v_mfma_f32_16x16x32_bf16 v[{D}:{D+3}], v[{AF+4*s}:{AF+4*s+3}], v[{r}:{r+3}], v[{D}:{D+3}]")
    for tt, D in ((0, D0), (1, D1)):
        g = 88 + 4*tt
        a(f"  v_cndmask_b32 v{g}, v{D}, v{D+2}, s[72:73]")
        a(f"  v_cndmask_b32 v{g+2}, v{D+1}, v{D+3}, s[72:73]")
    a("  s_mov_b32 exec_hi, 0")
    a(f"  global_store_dwordx4 v{vP0}, v[88:91], s[26:27] {cfg.tst}")
    a(f"  global_store_dwordx4 v{vP0+1}, v[92:95], s[26:27] {cfg.tst}")
    a("  s_mov_b32 exec_hi, -1")
    stamp("spub", "main,tail")
    a(f"  s_cmp_lg_u32 {sW}, 0")
    a("  s_cbranch_scc1 L_fin_end")
    SG = RING
    a.label("L_spoll")
    for i in range(4):
        a(f"  global_load_dwordx4 v[{SG+4*i}:{SG+4*i+3}], v{vSa}, s[26:27] offset:{1024*i} {cfg.tld}")
    a("  s_waitcnt vmcnt(0)")
    check_tags([SG, SG+4, SG+8, SG+12], 20)
    a("  s_cbranch_vccz L_sok")
    spin_guard(cfg.sleep)
    a("  s_branch L_spoll")
    a.label("L_sok")
    stamp("h2ok", "tail")
    for i in range(1, 4):
        a(f"  v_add_f32 v{SG}, v{SG}, v{SG+4*i}")
        a(f"  v_add_f32 v{SG+2}, v{SG+2}, v{SG+4*i+2}")
    reduce_hi([SG, SG+2], [20, 21])
    a(f"  v_and_b32 v20, 8, v{vLane}")
    a(f"  v_cmp_ne_u32 vcc, 0, v20")
    a(f"  v_cndmask_b32 v21, v{SG}, v{SG+2}, vcc")
    bf16round(21, 21)
    a(f"  v_mul_f32 v21, v21, v{vGv}")
    bf16round(21, 21)
    a(f"  v_lshlrev_b32 v22, 16, v{vXv}")
    a(f"  v_add_f32 v21, v21, v22")
    a(f"  v_cvt_pk_bf16_f32 v21, v21, v21")
    a("  s_mov_b64 exec, 0xffff")
    a(f"  global_store_short v{vOi}, v21, s[22:23]")
    a("  s_mov_b64 exec, -1")
    a(f"  s_add_u32 {sT}, {sH}, {sCj}")
    a(f"  s_cmp_lg_u32 {sT}, 0")
    a("  s_cbranch_scc1 L_fin_end")
    a(f"  v_mov_b32 v22, {T0}")
    a(f"  v_mov_b32 v23, {T1}")
    a(f"  v_mov_b32 v24, 0")
    a("  s_mov_b64 exec, 1")
    a(f"  global_store_dwordx2 v24, v[22:23], s[26:27] sc1")
    a("  s_mov_b64 exec, -1")
    a.label("L_fin_end")
    stamp("end", "main,tail")
    a("  s_branch L_diag")

    a.label("L_svc")
    sCb, sS_ = "s61", "s62"
    qA = 8
    a(f"  v_lshlrev_b32 v3, 11, v{vHf}")
    a(f"  v_lshl_add_u32 v3, v{vCc}, 4, v3")
    a(f"  s_mul_i32 {sT}, {sH}, {6*2048}")
    a(f"  s_lshl_b32 {sT2}, {sB}, 9")
    a(f"  s_add_u32 {sT}, {sT}, {sT2}")
    a(f"  s_add_u32 {sT}, {sT}, {QP3}")
    a(f"  v_add_u32 v{qA}, {sT}, v3")
    a(f"  v_add_u32 v{qA+1}, 4096, v{qA}")
    a(f"  v_add_u32 v{qA+2}, 8192, v{qA}")
    a(f"  v_lshlrev_b32 v11, 2, v{vCc}")
    a("  s_waitcnt lgkmcnt(0)")
    a("  s_load_dwordx2 s[28:29], s[26:27], 0")
    mk_srd(srdG, 16, 1966080)
    mk_srd(srdU, 18, 1966080)
    mk_srd(srdD, 20, 1966080)
    a("  s_waitcnt lgkmcnt(0)")
    a(f"  s_add_u32 {T0}, s28, 1")
    a(f"  s_add_u32 {T1}, s29, 1")
    a("  s_barrier")
    GQ = 16
    a.label("L_qpoll")
    for k in range(3):
        a(f"  global_load_dwordx4 v[{GQ+4*k}:{GQ+4*k+3}], v{qA+k}, s[26:27] {cfg.qld}")
    a("  s_waitcnt vmcnt(0)")
    check_tags([GQ, GQ+4, GQ+8], 28)
    a("  s_cbranch_vccz L_qgot")
    spin_guard()
    a("  s_branch L_qpoll")
    a.label("L_qgot")
    qv = [GQ, GQ+2, GQ+4, GQ+6, GQ+8, GQ+10]
    for r, t in zip(qv, range(28, 34)): a(f"  v_mov_b32 v{t}, v{r}")
    for r, t in zip(qv, range(28, 34)): a(f"  v_permlane32_swap_b32 v{r}, v{t}")
    for r, t in zip(qv, range(28, 34)): a(f"  v_add_f32 v{r}, v{r}, v{t}")
    for k in range(3): a(f"  v_cvt_pk_bf16_f32 v{28+k}, v{GQ+4*k}, v{GQ+4*k+2}")
    for k in range(3): a(f"  ds_write_b32 v11, v{28+k} offset:{QB + 128*k}")
    a("  s_waitcnt lgkmcnt(0)")
    a("  s_barrier")
    stamp("fstart", "ffn")
    if cfg.noffn:
        a(f"  v_mov_b32 v8, 1.0")
        a(f"  v_mov_b32 v9, 1.0")
        a(f"  v_mov_b32 v10, 1.0")
        a(f"  v_mov_b32 v11, 1.0")
        a(f"  v_lshlrev_b32 v3, 4, v{vLane}")
        a("  s_mov_b64 exec, 0xf")
        a(f"  ds_write_b128 v3, v[8:11] offset:{GV}")
        a("  s_waitcnt lgkmcnt(0)")
        a("  s_branch L_end")
    fW, fD, fA, fB, fB2 = 8, 9, 10, 11, 12
    a(f"  v_lshrrev_b32 v3, 4, v{vLane}")
    a(f"  v_and_b32 v13, 3, v{vLane}")
    a(f"  v_bfe_u32 v14, v{vLane}, 2, 2")
    a(f"  s_cmp_ge_u32 {sCj}, 8")
    a("  s_cbranch_scc1 L_nof2dma")
    a(f"  s_cmp_ge_u32 {sH}, 24")
    a("  s_cbranch_scc1 L_nof2dma")
    a(f"  v_mul_u32_u24 v{fD}, 1280, v3")
    a(f"  v_and_b32 v15, 15, v{vLane}")
    a(f"  v_lshl_add_u32 v{fD}, v15, 4, v{fD}")
    a(f"  s_mul_i32 {sT}, {sH}, {64*1280}")
    a(f"  s_lshl_b32 {sT2}, {sCj}, 8")
    a(f"  s_add_u32 {sT}, {sT}, {sT2}")
    for i in range(16):
        a(f"  s_mov_b32 m0, {F2S + 1024*i}")
        a(f"  buffer_load_dwordx4 v{fD}, {srd(srdD)}, {sT} offen {NT} lds")
        if i < 15: a(f"  s_add_u32 {sT}, {sT}, {4*1280}")
    a.label("L_nof2dma")
    a(f"  s_cmp_ge_u32 {sU}, 6")
    a("  s_cbranch_scc1 L_nof1")
    a(f"  s_mul_i32 {sT}, {sH}, 6")
    a(f"  s_add_u32 {sT}, {sT}, {sU}")
    a(f"  s_lshr_b32 {sCb}, {sT}, 3")
    a(f"  s_and_b32 {sS_}, {sT}, 7")
    a(f"  v_mul_u32_u24 v{fW}, 3072, v{vG}")
    a(f"  v_lshl_add_u32 v{fW}, v{vC}, 4, v{fW}")
    a(f"  s_mul_i32 {sT}, {sS_}, {80*3072}")
    a(f"  s_lshl_b32 {sT2}, {sCb}, 7")
    a(f"  s_add_u32 {sT}, {sT}, {sT2}")
    for i in range(10):
        a(f"  s_mov_b32 m0, {F1S + 1024*i}")
        a(f"  buffer_load_dwordx4 v{fW}, {srd(srdG)}, {sT} offen {NT} lds")
        a(f"  s_mov_b32 m0, {F1S + 10240 + 1024*i}")
        a(f"  buffer_load_dwordx4 v{fW}, {srd(srdU)}, {sT} offen {NT} lds")
        if i < 9: a(f"  s_add_u32 {sT}, {sT}, {8*3072}")
    a(f"  v_mul_u32_u24 v{fA}, 1280, v13")
    a(f"  v_lshl_add_u32 v{fA}, v3, 3, v{fA}")
    a(f"  s_mul_i32 {sT}, {sS_}, 160")
    a(f"  v_add_u32 v{fA}, {sT}, v{fA}")
    a(f"  v_lshl_add_u32 v15, v3, 2, v14")
    a(f"  v_lshlrev_b32 v15, 7, v15")
    a(f"  v_lshl_add_u32 v{fB}, v13, 3, v15")
    a(f"  v_add_u32 v{fB}, {F1S}, v{fB}")
    FA, FB, FDd = 16, 32, 112
    for st in range(5):
        a(f"  ds_read_b64 v[{FA+2*st}:{FA+2*st+1}], v{fA} offset:{XN + 32*st}")
    for t in range(32): a(f"  v_mov_b32 v{FDd+t}, 0")
    quarter_masks(3, MQ)
    a("  s_waitcnt vmcnt(0) lgkmcnt(0)")
    for mat in range(2):
        for t in range(4):
            for st in range(5):
                r = FB + 2*(20*mat + 5*t + st)
                a(f"  ds_read_b64_tr_b16 v[{r}:{r+1}], v{fB} offset:{10240*mat + 2048*st + 32*t}")
            if t % 2 == 1: a("  s_waitcnt lgkmcnt(0)")
    for st in range(5):
        for mat in range(2):
            for t in range(4):
                r = FB + 2*(20*mat + 5*t + st); D = FDd + 4*(4*mat + t)
                a(f"  v_mfma_f32_16x16x16_bf16 v[{D}:{D+3}], v[{FA+2*st}:{FA+2*st+1}], v[{r}:{r+1}], v[{D}:{D+3}]")
    a(f"  s_lshl_b32 {sI}, {sCb}, 3")
    a(f"  s_add_u32 {sI}, {sI}, {sS_}")
    a(f"  s_lshl_b32 {sT}, {sI}, 11")
    a(f"  s_add_u32 {sT}, {sT}, {G1}")
    a(f"  v_lshl_add_u32 v13, v{vLane}, 4, {sT}")
    for mat in range(2):
        g = 32 + 4*mat
        for i in range(4):
            Dm = FDd + 16*mat + i
            select4(g+i, Dm, Dm+4, Dm+8, Dm+12, MQ)
        a(f"  global_store_dwordx4 v13, v[{g}:{g+3}], s[26:27] offset:{1024*mat} {cfg.hst}")
    def flag_store(vaddr):
        a("  v_mov_b32 v40, 0")
        a(f"  v_mov_b32 v41, {T0}")
        a("  v_mov_b32 v42, 0")
        a(f"  v_mov_b32 v43, {T1}")
        a("  s_waitcnt vmcnt(0)")
        a("  s_mov_b64 exec, 1")
        a(f"  global_store_dwordx4 v{vaddr}, v[40:43], s[26:27] {cfg.pst}")
        a("  s_mov_b64 exec, -1")
    a(f"  s_lshl_b32 {sT}, {sI}, 4")
    a(f"  s_add_u32 {sT}, {sT}, {F1}")
    a(f"  v_mov_b32 v14, {sT}")
    flag_store(14)
    stamp("f1pub", "ffn")
    a(f"  s_lshl_b32 {sT}, {sCb}, 7")
    a(f"  s_add_u32 {sT}, {sT}, {F1}")
    a(f"  v_lshl_add_u32 v15, v{vC}, 4, {sT}")
    a.label("L_f1poll")
    a(f"  s_sleep {cfg.fsleep}")
    a(f"  global_load_dwordx4 v[44:47], v15, s[26:27] {cfg.pld}")
    a("  s_waitcnt vmcnt(0)")
    check_tags([44], 64)
    a("  s_cbranch_vccz L_f1ok")
    spin_guard()
    a("  s_branch L_f1poll")
    a.label("L_f1ok")
    a(f"  s_lshl_b32 {sT}, {sCb}, 14")
    a(f"  s_lshl_b32 {sT2}, {sS_}, 7")
    a(f"  s_add_u32 {sT}, {sT}, {sT2}")
    a(f"  s_add_u32 {sT}, {sT}, {G1}")
    a(f"  v_lshlrev_b32 v14, 11, v{vG}")
    a(f"  v_lshl_add_u32 v14, v{vC}, 4, v14")
    a(f"  v_add_u32 v14, {sT}, v14")
    FGg = 48
    for mat in range(2):
        a(f"  global_load_dwordx4 v[{FGg+4*mat}:{FGg+4*mat+3}], v14, s[26:27] offset:{1024*mat} {cfg.hld}")
    a(f"  v_and_b32 v3, 3, v{vG}")
    quarter_masks(3, MQ)
    a("  s_waitcnt vmcnt(0)")
    stamp("f1ok", "ffn")
    fv = list(range(FGg, FGg+8))
    reduce_hi(fv, list(range(64, 72)))
    select4(72, FGg, FGg+1, FGg+2, FGg+3, MQ)
    select4(73, FGg+4, FGg+5, FGg+6, FGg+7, MQ)
    bf16round(72, 72)
    bf16round(73, 73)
    a("  v_mul_f32 v74, v72, v72")
    a("  v_mul_f32 v74, v74, v72")
    a(f"  v_mul_f32 v74, {f32(0.044715)}, v74")
    a("  v_add_f32 v74, v72, v74")
    a(f"  v_mul_f32 v74, {f32(-2.0*0.7978845608028654*1.4426950408889634)}, v74")
    a("  v_exp_f32 v74, v74")
    a("  v_add_f32 v74, 1.0, v74")
    a("  v_rcp_f32 v74, v74")
    a("  v_mul_f32 v74, v72, v74")
    bf16round(74, 74)
    a("  v_mul_f32 v74, v74, v73")
    a("  v_cvt_pk_bf16_f32 v74, v74, v74")
    a("  v_mov_b32 v75, v74 quad_perm:[1,0,3,2] row_mask:0xf bank_mask:0xf")
    a(f"  v_perm_b32 v76, v75, v74, {sPermLo}")
    a("  v_mov_b32 v78, v76 row_ror:8 row_mask:0xf bank_mask:0xf")
    a(f"  v_mov_b32 v77, {T0}")
    a(f"  v_mov_b32 v79, {T1}")
    a(f"  s_lshl_b32 {sT}, {sI}, 7")
    a(f"  s_add_u32 {sT}, {sT}, {G2}")
    a(f"  v_lshrrev_b32 v3, 4, v{vLane}")
    a(f"  v_lshlrev_b32 v3, 6, v3")
    a(f"  v_lshl_add_u32 v3, v{vC}, 3, v3")
    a(f"  v_add_u32 v3, {sT}, v3")
    a("  s_mov_b32 exec_lo, 0x00550055")
    a("  s_mov_b32 exec_hi, 0")
    a(f"  global_store_dwordx4 v3, v[76:79], s[26:27] {cfg.pst}")
    a("  s_mov_b64 exec, -1")
    a.label("L_nof1")
    stamp("f15pub", "ffn")
    a(f"  s_cmp_ge_u32 {sCj}, 8")
    a("  s_cbranch_scc1 L_diag")
    a(f"  s_cmp_ge_u32 {sH}, 24")
    a("  s_cbranch_scc1 L_nof2")
    a(f"  s_lshl_b32 {sT}, {sH}, 10")
    a(f"  s_add_u32 {sT}, {sT}, {G2}")
    a(f"  v_lshl_add_u32 v14, v{vLane}, 4, {sT}")
    a(f"  v_lshrrev_b32 v3, 4, v{vLane}")
    a(f"  v_bfe_u32 v15, v{vLane}, 2, 2")
    a(f"  v_lshl_add_u32 v15, v3, 3, v15")
    a(f"  v_lshlrev_b32 v15, 8, v15")
    a(f"  v_and_b32 v13, 3, v{vLane}")
    a(f"  v_lshl_add_u32 v{fB2}, v13, 3, v15")
    a(f"  v_add_u32 v{fB2}, {F2S}, v{fB2}")
    a.label("L_f2poll")
    a(f"  global_load_dwordx4 v[48:51], v14, s[26:27] {cfg.pld}")
    a("  s_waitcnt vmcnt(0)")
    check_tags([48], 64)
    a("  s_cbranch_vccz L_f2ok")
    spin_guard(cfg.fsleep)
    a("  s_branch L_f2poll")
    a.label("L_f2ok")
    stamp("f2ok", "ffn")
    F2B = 80
    for t in range(8):
        for st in range(2):
            r = F2B + 8*t + 4*st
            a(f"  ds_read_b64_tr_b16 v[{r}:{r+1}], v{fB2} offset:{8192*st + 32*t}")
            a(f"  ds_read_b64_tr_b16 v[{r+2}:{r+3}], v{fB2} offset:{8192*st + 32*t + 1024}")
        if t % 2 == 1: a("  s_waitcnt lgkmcnt(0)")
    a(f"  v_bfe_u32 v3, v{vLane}, 2, 1")
    a(f"  v_lshlrev_b32 v3, 8, v3")
    a(f"  v_lshl_add_u32 v3, v{vG}, 4, v3")
    a(f"  v_lshl_add_u32 v3, v13, 2, v3")
    a(f"  ds_write_b32 v3, v48 offset:{HID}")
    a(f"  ds_write_b32 v3, v50 offset:{HID+128}")
    a(f"  v_lshlrev_b32 v3, 7, v13")
    a(f"  v_lshrrev_b32 v14, 4, v{vLane}")
    a(f"  v_lshl_add_u32 v3, v14, 4, v3")
    a("  s_waitcnt lgkmcnt(0)")
    a(f"  ds_read_b128 v[52:55], v3 offset:{HID}")
    a(f"  ds_read_b128 v[56:59], v3 offset:{HID+64}")
    F2D = 144
    for t in range(32): a(f"  v_mov_b32 v{F2D+t}, 0")
    quarter_masks(14, MQ)
    a(f"  s_mul_i32 {sI}, {sCj}, 24")
    a(f"  s_add_u32 {sI}, {sI}, {sH}")
    a(f"  s_lshl_b32 {sT}, {sI}, 11")
    a(f"  s_add_u32 {sT}, {sT}, {FP3}")
    a(f"  v_lshl_add_u32 v13, v{vLane}, 4, {sT}")
    a("  s_waitcnt lgkmcnt(0)")
    for st in range(2):
        for t in range(8):
            r = F2B + 8*t + 4*st; D = F2D + 4*t
            a(f"  v_mfma_f32_16x16x32_bf16 v[{D}:{D+3}], v[{52+4*st}:{55+4*st}], v[{r}:{r+3}], v[{D}:{D+3}]")
    for rr in range(2):
        g = 32 + 4*rr
        for i in range(4):
            Dm = F2D + 16*rr + i
            select4(g+i, Dm, Dm+4, Dm+8, Dm+12, MQ)
        a(f"  global_store_dwordx4 v13, v[{g}:{g+3}], s[26:27] offset:{1024*rr} {cfg.hst}")
    a(f"  s_lshl_b32 {sT}, {sCj}, 9")
    a(f"  s_lshl_b32 {sT2}, {sH}, 4")
    a(f"  s_add_u32 {sT}, {sT}, {sT2}")
    a(f"  s_add_u32 {sT}, {sT}, {F3}")
    a(f"  v_mov_b32 v14, {sT}")
    flag_store(14)
    a.label("L_nof2")
    stamp("f2pub", "ffn")
    a(f"  s_lshl_b32 {sT}, {sCj}, 9")
    a(f"  s_add_u32 {sT}, {sT}, {F3}")
    a(f"  v_min_u32 v3, 23, v{vLane}")
    a(f"  v_lshl_add_u32 v15, v3, 4, {sT}")
    a.label("L_f3poll")
    a(f"  global_load_dwordx4 v[44:47], v15, s[26:27] {cfg.pld}")
    a("  s_waitcnt vmcnt(0)")
    check_tags([44], 64)
    a("  s_cbranch_vccz L_f3ok")
    spin_guard(cfg.fsleep3)
    a("  s_branch L_f3poll")
    a.label("L_f3ok")
    a(f"  s_mul_i32 {sT}, {sCj}, {24*2048}")
    a(f"  s_lshl_b32 {sT2}, {sH}, 6")
    a(f"  s_add_u32 {sT}, {sT}, {sT2}")
    a(f"  s_add_u32 {sT}, {sT}, {FP3}")
    a(f"  v_lshrrev_b32 v3, 2, v{vLane}")
    a(f"  v_lshlrev_b32 v3, 11, v3")
    a(f"  v_and_b32 v13, 3, v{vLane}")
    a(f"  v_lshl_add_u32 v3, v13, 4, v3")
    a(f"  v_add_u32 v14, {sT}, v3")
    a(f"  v_add_u32 v15, {16*2048}, v14")
    for e in range(4): a(f"  v_mov_b32 v{52+e}, 0")
    a(f"  global_load_dwordx4 v[48:51], v14, s[26:27] {cfg.hld}")
    a("  s_mov_b32 exec_hi, 0")
    a(f"  global_load_dwordx4 v[52:55], v15, s[26:27] {cfg.hld}")
    a("  s_mov_b32 exec_hi, -1")
    a("  s_waitcnt vmcnt(0)")
    for e in range(4): a(f"  v_add_f32 v{48+e}, v{48+e}, v{52+e}")
    reduce_hi([48, 49, 50, 51], [56, 57, 58, 59], rors=(4, 8))
    for e in range(4):
        r = 48 + e
        bf16round(r, r)
        a(f"  v_mul_f32 v{56+e}, {f32(-1.4426950408889634)}, v{r}")
    for e in range(4): a(f"  v_exp_f32 v{56+e}, v{56+e}")
    for e in range(4): a(f"  v_add_f32 v{56+e}, 1.0, v{56+e}")
    for e in range(4): a(f"  v_rcp_f32 v{56+e}, v{56+e}")
    for e in range(4): a(f"  v_mul_f32 v{48+e}, v{48+e}, v{56+e}")
    for e in range(4): bf16round(48+e, 48+e)
    a(f"  v_lshlrev_b32 v3, 4, v13")
    a("  s_mov_b64 exec, 0xf")
    a(f"  ds_write_b128 v3, v[48:51] offset:{GV}")
    a("  s_mov_b64 exec, -1")
    a("  s_waitcnt lgkmcnt(0)")
    stamp("fend", "ffn")
    a.label("L_diag")
    if cfg.diag:
        a("  s_waitcnt lgkmcnt(0)")
        a(f"  s_mul_i32 {sT}, s2, 5")
        a(f"  s_add_u32 {sT}, {sT}, {sW}")
        a(f"  s_lshl_b32 {sT}, {sT}, 7")
        a(f"  s_add_u32 {sT}, {sT}, {STAMP}")
        a(f"  v_mov_b32 v3, {sT}")
        a("  s_mov_b64 exec, 1")
        for i in range(8):
            a(f"  v_mov_b32 v4, s{84+2*i}")
            a(f"  v_mov_b32 v5, s{85+2*i}")
            a(f"  global_store_dwordx2 v3, v[4:5], s[26:27] offset:{8*i}")
            a("  s_nop 1")
        a("  s_getreg_b32 s84, hwreg(HW_REG_HW_ID)")
        a("  s_getreg_b32 s85, hwreg(HW_REG_XCC_ID)")
        a(f"  v_mov_b32 v4, s84")
        a(f"  v_mov_b32 v5, s85")
        a(f"  global_store_dwordx2 v3, v[4:5], s[26:27] offset:64")
        a("  s_nop 1")
        a(f"  v_mov_b32 v4, {sNval}")
        a(f"  v_mov_b32 v5, {sU}")
        a(f"  global_store_dwordx2 v3, v[4:5], s[26:27] offset:72")
    a.label("L_end")
    a("  s_endpgm")
    a('.section .rodata,"a"')
    a(".p2align 6")
    a(f".amdhsa_kernel {KN}")
    a("  .amdhsa_next_free_vgpr 256")
    a("  .amdhsa_next_free_sgpr 102")
    a("  .amdhsa_accum_offset 256")
    a("  .amdhsa_group_segment_fixed_size 0")
    a("  .amdhsa_kernarg_size 96")
    a("  .amdhsa_user_sgpr_count 2")
    a("  .amdhsa_user_sgpr_kernarg_segment_ptr 1")
    a("  .amdhsa_system_sgpr_workgroup_id_x 1")
    a(".end_amdhsa_kernel")
    body = a.finalize()
    if cfg.diag: hdr.append("; stamps: " + ",".join(names))
    return "\n".join(hdr) + "\n" + body

if __name__ == "__main__":
    ap = argparse.ArgumentParser()
    ap.add_argument("-o", default="recurrent_scan__mha_block_cached__geglu_ffn__decode.s")
    for k, v in vars(Cfg).items():
        if k.startswith("_"): continue
        if isinstance(v, bool): ap.add_argument("--" + k, type=int, default=int(v))
        else: ap.add_argument("--" + k, type=type(v), default=v)
    ap.add_argument("--wo_late", type=int, default=0)
    args = ap.parse_args()
    cfg = Cfg()
    for k, v in vars(args).items(): setattr(cfg, k, v)
    open(args.o, "w").write(build(cfg))
    print("wrote", args.o)
```

```python
import struct, sys, argparse
from asmdsl import Asm

KN = "recurrent_scan__mha_block_cached__geglu_ffn__decode_kernel"
def f32(x): return "0x%08x" % struct.unpack("<I", struct.pack("<f", x))[0]
LOG2E = f32(1.4426950408889634)
SCALE = f32(192 ** -0.5)

STAMP = 0x10000
QP3 = 0x100000
AP  = 0x180000
SP3 = 0x200000
G1  = 0x2A0000
F1  = 0x300000
G2  = 0x301000
FP3 = 0x308000
F3  = 0x344000
TK  = 0x350000
RD  = 0x360000
XN  = 0
QB  = 5120
HID = 5632
GV  = 6144
PART = 6400
OB  = 9600
WQS = 11264
F1S = WQS
F2S = WQS + 20480
WO  = WQS + 40960
LA  = WO + 49152

class Cfg:
    R = 2; NL = 0; NA = 1; diag = ''; nt = "nt"; dyn = 2; S = 56; match = 2
    sleep = 1; fsleep = 32; hst = "sc1 nt"; hld = "sc1 nt"; qst = "sc1"; qld = "sc1"; tst = "sc1"; tld = "sc1"
    pst = "sc1"; pld = "sc1"; fsleep3 = 120
    noffn = False
    wsbase = 0
    h1full = 0
    wmax = 0

def build(cfg):
    global QP3, AP, SP3, G1, F1, G2, FP3, F3, TK, RD
    QP3, AP, SP3, G1, F1, G2, FP3, F3, TK, RD = [x + cfg.wsbase for x in (0x100000, 0x180000, 0x200000, 0x2A0000, 0x300000, 0x301000, 0x308000, 0x344000, 0x350000, 0x360000)]
    a = Asm()
    R, NL, NT = cfg.R, cfg.NL, cfg.nt
    LDS_BYTES = LA + NL * 4 * 6144
    assert LDS_BYTES <= 163840, LDS_BYTES
    sW = "s3"
    sAlive, sNval = "s14", "s15"
    T0, T1 = "s30", "s31"
    srdK, srdV, srdW, srdO, srdG, srdU, srdD, srdT = 32, 36, 40, 44, 48, 52, 76, 80
    sH, sX, sB, sHalf, sU = "s56", "s57", "s58", "s59", "s60"
    sOff, sStr, sI, sT, sT2, sT3 = "s61", "s62", "s63", "s64", "s65", "s66"
    sOnes, sPermLo, sFirst = "s67", "s68", "s69"
    sSpin, sC0 = "s74", "s75"
    sCj = "s100"
    def srd(i): return f"s[{i}:{i+3}]"
    nst = [0]; names = []
    def stamp(name=None, sets="main"):
        if cfg.diag and cfg.diag in sets.split(","):
            i = 84 + 2 * nst[0]; nst[0] += 1
            assert i <= 98, name
            names.append(name)
            a(f"  s_memrealtime s[{i}:{i+1}]")
    slots = {}
    def restamp(name, sets):
        if cfg.diag and cfg.diag in sets.split(","):
            if name not in slots:
                slots[name] = 84 + 2 * nst[0]; nst[0] += 1; names.append(name)
                assert slots[name] <= 98
            i = slots[name]
            a(f"  s_memrealtime s[{i}:{i+1}]")
    vTid, vLane, vKV = 0, 1, 2
    vHf, vCc, vG, vC = 4, 5, 6, 7
    RING = 160
    def Kr(s, j): return RING + 24 * s + 4 * j
    def Vr(s, j): return RING + 24 * s + 12 + 4 * j
    ACC, Q, vM, vL, TKR, vTKo = 136, 124, 122, 123, 118, 116

    def mk_srd(i, lo, size):
        a(f"  s_mov_b32 s{i}, s{lo}")
        a(f"  s_mov_b32 s{i+1}, s{lo+1}")
        a(f"  s_mov_b32 s{i+2}, {size}")
        a(f"  s_mov_b32 s{i+3}, 0x20000")
    def dpp(op, v, ctrl): a(f"  {op} v{v}, v{v}, v{v} {ctrl} row_mask:0xf bank_mask:0xf")
    def allreduce64(v, t, op):
        for n in (1, 2, 4, 8): dpp(op, v, f"row_ror:{n}")
        for sw in ("16", "32"):
            a(f"  v_mov_b32 v{t}, v{v}")
            a(f"  v_permlane{sw}_swap_b32 v{v}, v{t}")
            a(f"  {op} v{v}, v{v}, v{t}")
    def reduce_hi(regs, tmps, rors=(8,)):
        for n in rors:
            for r in regs: dpp("v_add_f32", r, f"row_ror:{n}")
        for sw in ("16", "32"):
            for r, t in zip(regs, tmps): a(f"  v_mov_b32 v{t}, v{r}")
            for r, t in zip(regs, tmps): a(f"  v_permlane{sw}_swap_b32 v{r}, v{t}")
            for r, t in zip(regs, tmps): a(f"  v_add_f32 v{r}, v{r}, v{t}")
    def bf16round(dst, src):
        a(f"  v_cvt_pk_bf16_f32 v{dst}, v{src}, v{src}")
        a(f"  v_lshlrev_b32 v{dst}, 16, v{dst}")
    def check_tags(bases, vflag):
        first = True
        for r in bases:
            a(f"  v_xor_b32 v{vflag if first else vflag+1}, {T0}, v{r+1}")
            if not first: a(f"  v_or_b32 v{vflag}, v{vflag}, v{vflag+1}")
            first = False
            a(f"  v_xor_b32 v{vflag+1}, {T1}, v{r+3}")
            a(f"  v_or_b32 v{vflag}, v{vflag}, v{vflag+1}")
        a(f"  v_cmp_ne_u32 vcc, 0, v{vflag}")
    def spin_guard(sleep=0):
        a(f"  s_add_u32 {sSpin}, {sSpin}, 1")
        a(f"  s_cmp_gt_u32 {sSpin}, 100000")
        a("  s_cbranch_scc1 L_end")
        if sleep: a(f"  s_sleep {sleep}")
    def select4(dst, r0, r1, r2, r3, masks):
        a(f"  v_cndmask_b32 v{dst}, v{r0}, v{r1}, {masks[0]}")
        a(f"  v_cndmask_b32 v{dst}, v{dst}, v{r2}, {masks[1]}")
        a(f"  v_cndmask_b32 v{dst}, v{dst}, v{r3}, {masks[2]}")
    def quarter_masks(vsel, masks):
        for i, m in enumerate(masks): a(f"  v_cmp_eq_u32 {m}, {i+1}, v{vsel}")

    def layernorm(vx, tb):
        d = [tb + 10 + j for j in range(10)]
        acc, t, mean, mbf, r = tb + 20, tb + 21, tb + 22, tb + 23, tb + 24
        a(f"  v_mov_b32 v{acc}, 0")
        for j in range(5): a(f"  v_dot2c_f32_bf16 v{acc}, {sOnes}, v{vx+j}")
        for j in range(5):
            a(f"  v_lshlrev_b32 v{tb+2*j}, 16, v{vx+j}")
            a(f"  v_and_b32 v{tb+2*j+1}, 0xffff0000, v{vx+j}")
        allreduce64(acc, t, "v_add_f32")
        a(f"  v_mul_f32 v{mean}, {f32(1.0/640)}, v{acc}")
        bf16round(mbf, mean)
        a(f"  v_mov_b32 v{acc}, 0")
        for j in range(10): a(f"  v_sub_f32 v{d[j]}, v{tb+j}, v{mean}")
        for j in range(10): a(f"  v_fmac_f32 v{acc}, v{d[j]}, v{d[j]}")
        for j in range(10): a(f"  v_sub_f32 v{d[j]}, v{tb+j}, v{mbf}")
        allreduce64(acc, t, "v_add_f32")
        a(f"  v_mul_f32 v{acc}, {f32(1.0/640)}, v{acc}")
        bf16round(acc, acc)
        a(f"  v_add_f32 v{acc}, {f32(1e-5)}, v{acc}")
        bf16round(acc, acc)
        a(f"  v_sqrt_f32 v{acc}, v{acc}")
        bf16round(acc, acc)
        a(f"  v_rcp_f32 v{r}, v{acc}")
        for j in range(5): a(f"  v_cvt_pk_bf16_f32 v{tb+j}, v{d[2*j]}, v{d[2*j+1]}")
        for j in range(5):
            a(f"  v_lshlrev_b32 v{d[2*j]}, 16, v{tb+j}")
            a(f"  v_and_b32 v{d[2*j+1]}, 0xffff0000, v{tb+j}")
        for j in range(10): a(f"  v_mul_f32 v{d[j]}, v{d[j]}, v{r}")
        for j in range(5): a(f"  v_cvt_pk_bf16_f32 v{tb+j}, v{d[2*j]}, v{d[2*j+1]}")
        a(f"  s_mul_i32 {sT}, {sW}, 1280")
        a(f"  v_lshl_add_u32 v{t}, v{vLane}, 2, {sT}")
        for j in range(5): a(f"  ds_write_b32 v{t}, v{tb+j} offset:{XN + j*256}")

    hdr = [f"; @launch grid=(256,1,1) block=(320,1,1) lds={LDS_BYTES}"]
    a('.amdgcn_target "amdgcn-amd-amdhsa--gfx950"')
    a(".text")
    a(f".globl {KN}")
    a(".p2align 8")
    a(f".type {KN},@function")
    a.label(KN)
    a("  s_cmp_ge_u32 s2, 256")
    a("  s_cbranch_scc1 L_end")
    if cfg.diag:
        for i in range(84, 100): a(f"  s_mov_b32 s{i}, 0")
    stamp("start", "main,pro,tail,ffn,tail2,tail3")
    a("  s_load_dwordx8 s[4:11], s[0:1], 0")
    a("  s_load_dwordx2 s[12:13], s[0:1], 32")
    a("  s_load_dwordx8 s[16:23], s[0:1], 48")
    a("  s_load_dwordx4 s[24:27], s[0:1], 80")
    a(f"  v_lshrrev_b32 v3, 6, v{vTid}")
    a(f"  v_and_b32 v{vLane}, 63, v{vTid}")
    a(f"  v_readfirstlane_b32 {sW}, v3")
    a(f"  s_mov_b32 {sSpin}, 0")
    a(f"  s_mov_b32 {sOnes}, 0x3f803f80")
    a(f"  s_mov_b32 {sPermLo}, 0x05040100")
    a(f"  s_lshr_b32 {sH}, s2, 3")
    a(f"  s_and_b32 {sX}, s2, 7")
    a(f"  v_lshrrev_b32 v{vHf}, 5, v{vLane}")
    a(f"  v_and_b32 v{vCc}, 31, v{vLane}")
    a(f"  v_lshrrev_b32 v{vG}, 3, v{vLane}")
    a(f"  v_and_b32 v{vC}, 7, v{vLane}")
    if cfg.match == 2:
        a(f"  s_and_b32 {sT}, {sH}, 1")
        a(f"  s_lshl_b32 {sT}, {sT}, 1")
        a(f"  s_add_u32 {sT}, {sT}, 3")
        a(f"  s_and_b32 {sHalf}, {sX}, 1")
        a(f"  s_mul_i32 {sT}, {sT}, {sHalf}")
        a(f"  s_xor_b32 {sT}, {sT}, {sX}")
        a(f"  s_lshr_b32 {sB}, {sT}, 1")
    else:
        a(f"  s_lshr_b32 {sB}, {sX}, 1")
        a(f"  s_and_b32 {sHalf}, {sX}, 1")
    a(f"  s_lshl_b32 {sU}, {sB}, 1")
    a(f"  s_add_u32 {sU}, {sU}, {sHalf}")
    a(f"  s_cmp_eq_u32 {sHalf}, 0")
    a(f"  s_cselect_b32 {sCj}, {sB}, 8")
    a(f"  s_cmp_eq_u32 {sU}, 7")
    a(f"  s_cselect_b32 {sCj}, 4, {sCj}")
    a(f"  s_cmp_eq_u32 {sW}, 4")
    a("  s_cbranch_scc1 L_svc")

    vXo, vWq = 8, 9
    a(f"  v_mul_u32_u24 v{vKV}, 384, v{vG}")
    a(f"  v_lshl_add_u32 v{vKV}, v{vC}, 4, v{vKV}")
    a(f"  v_mul_u32_u24 v{vWq}, 12288, v{vG}")
    a(f"  v_lshl_add_u32 v{vWq}, v{vC}, 4, v{vWq}")
    a(f"  s_mul_i32 {sT}, {sW}, 1280")
    a(f"  v_lshl_add_u32 v{vXo}, v{vLane}, 2, {sT}")
    a("  s_waitcnt lgkmcnt(0)")
    stamp("karg", "pro")
    a("  s_load_dwordx2 s[28:29], s[26:27], 0")
    VX = 11
    for j in range(5):
        a(f"  global_load_dword v{VX+j}, v{vXo}, s[4:5] offset:{j*256}")
    mk_srd(srdW, 10, 7864320)
    a(f"  s_cmp_ge_u32 {sU}, 6")
    a("  s_cbranch_scc1 L_nowq")
    a(f"  s_mul_i32 {sT}, {sHalf}, 320")
    a(f"  s_mul_i32 {sT2}, {sW}, 80")
    a(f"  s_add_u32 {sT}, {sT}, {sT2}")
    a(f"  s_mul_i32 {sT}, {sT}, 12288")
    a(f"  s_mul_i32 {sT3}, {sH}, 384")
    a(f"  s_add_u32 {sT}, {sT}, {sT3}")
    a(f"  s_lshl_b32 {sT3}, {sB}, 7")
    a(f"  s_add_u32 {sT}, {sT}, {sT3}")
    a(f"  s_lshl_b32 {sT2}, {sT2}, 7")
    a(f"  s_add_u32 {sT2}, {sT2}, {WQS}")
    for i in range(10):
        a(f"  s_add_u32 m0, {sT2}, {1024*i}")
        a(f"  buffer_load_dwordx4 v{vWq}, {srd(srdW)}, {sT} offen {NT} lds")
        if i < 9: a(f"  s_add_u32 {sT}, {sT}, {8*12288}")
    a.label("L_nowq")
    mk_srd(srdK, 6, 201326592)
    mk_srd(srdV, 8, 201326592)
    mk_srd(srdO, 12, 7864320)
    CH = 7 if cfg.dyn else 6
    nb = 1 if cfg.dyn else 0
    if cfg.dyn:
        a(f"  s_lshl_b32 {sT}, {sH}, 2")
        a(f"  s_add_u32 {sT}, {sT}, {sB}")
        if cfg.dyn == 1:
            a(f"  s_lshl_b32 {sT}, {sT}, 2")
            a(f"  s_add_u32 {sT}, {sT}, {sW}")
            a(f"  s_lshl_b32 {sT}, {sT}, 7")
        else:
            a(f"  s_lshl_b32 {sT}, {sT}, 9")
        a(f"  v_mov_b32 v{vTKo}, 0x7ffffff0")
        a(f"  v_mov_b32 v3, {sT}")
        a(f"  v_cmp_eq_u32 vcc, 0, v{vLane}")
        a(f"  v_cndmask_b32 v{vTKo}, v{vTKo}, v3, vcc")
        a(f"  s_add_u32 s{srdT}, s26, {TK}")
        a(f"  s_addc_u32 s{srdT+1}, s27, 0")
        a(f"  s_mov_b32 s{srdT+2}, 65536")
        a(f"  s_mov_b32 s{srdT+3}, 0x20000")
        a(f"  buffer_load_dword v117, v{vTKo}, {srd(srdT)}, 0 offen sc1")
        a(f"  s_mov_b32 s{srdT+2}, 0")
    a(f"  s_lshl_b32 {sT}, {sB}, 5")
    a(f"  s_add_u32 {sT}, {sT}, {sH}")
    a(f"  s_mul_i32 {sOff}, {sT}, 1572864")
    sPool = "s69"
    if cfg.dyn == 2:
        a(f"  s_add_u32 {sPool}, {sOff}, {8*cfg.S*3072}")
        a(f"  s_lshl_b32 {sT}, {sHalf}, 2")
        a(f"  s_add_u32 {sT}, {sT}, {sW}")
        a(f"  s_mul_i32 {sT}, {sT}, {cfg.S*3072}")
        a(f"  s_add_u32 {sOff}, {sOff}, {sT}")
        a(f"  s_mov_b32 {sStr}, 3072")
    elif not cfg.dyn:
        a(f"  s_mul_i32 {sT}, {sHalf}, 786432")
        a(f"  s_add_u32 {sOff}, {sOff}, {sT}")
        a(f"  s_mul_i32 {sT}, {sW}, 196608")
        a(f"  s_add_u32 {sOff}, {sOff}, {sT}")
        a(f"  s_mov_b32 {sStr}, 3072")
    else:
        a(f"  s_mul_i32 {sT}, {sW}, 393216")
        a(f"  s_add_u32 {sOff}, {sOff}, {sT}")
        a(f"  s_mul_i32 {sT}, {sHalf}, {393216-3072}")
        a(f"  s_add_u32 {sOff}, {sOff}, {sT}")
        a(f"  s_mul_i32 {sStr}, {sHalf}, -6144")
        a(f"  s_add_u32 {sStr}, {sStr}, 3072")
    def issueT(s):
        if cfg.dyn:
            a(f"  v_mov_b32 v{TKR+s}, 1")
            a(f"  buffer_atomic_add v{TKR+s}, v{vTKo}, {srd(srdT)}, 0 offen sc0 sc1")
    def issueK(s):
        for j in range(3):
            a(f"  buffer_load_dwordx4 v[{Kr(s,j)}:{Kr(s,j)+3}], v{vKV}, {srd(srdK)}, {sOff} offen offset:{128*j} {NT}")
    def issueV(s):
        for j in range(3):
            a(f"  buffer_load_dwordx4 v[{Vr(s,j)}:{Vr(s,j)+3}], v{vKV}, {srd(srdV)}, {sOff} offen offset:{128*j} {NT}")
        a(f"  s_add_u32 {sOff}, {sOff}, {sStr}")
    sLb = "s101"
    def issueL(k):
        for srdx, o in ((srdK, 0), (srdV, 3072)):
            for j in range(3):
                a(f"  s_add_u32 m0, {sLb}, {6144*k + o + 896*j}")
                a(f"  buffer_load_dwordx4 v{vKV}, {srd(srdx)}, {sOff} offen offset:{128*j} {NT} lds")
        a(f"  s_add_u32 {sOff}, {sOff}, {sStr}")
    NA = cfg.NA
    for s in range(NA):
        issueT(s); issueK(s); issueV(s)
    stamp("issued", "main")
    a(f"  s_cmp_ge_u32 {sU}, 6")
    a("  s_cbranch_scc1 L_xw2")
    a(f"  s_waitcnt vmcnt({10 + nb + CH*NA})")
    a("  s_branch L_xw3")
    a.label("L_xw2")
    a(f"  s_waitcnt vmcnt({nb + CH*NA})")
    a.label("L_xw3")
    stamp("xarr", "pro")
    layernorm(VX, 16)
    vQa, vQb, vQp = 10, 44, 45
    a(f"  v_lshrrev_b32 v3, 4, v{vLane}")
    a(f"  v_and_b32 v47, 3, v{vLane}")
    a(f"  v_mul_u32_u24 v{vQa}, 1280, v47")
    a(f"  v_lshl_add_u32 v{vQa}, v3, 4, v{vQa}")
    a(f"  s_mul_i32 {sT}, {sHalf}, 640")
    a(f"  v_add_u32 v{vQa}, {sT}, v{vQa}")
    a(f"  v_bfe_u32 v50, v{vLane}, 2, 2")
    a(f"  v_lshl_add_u32 v48, v3, 3, v50")
    a(f"  v_lshlrev_b32 v48, 7, v48")
    a(f"  v_lshl_add_u32 v48, v47, 3, v48")
    a(f"  s_lshl_b32 {sT}, {sW}, 5")
    a(f"  s_add_u32 {sT}, {sT}, {WQS}")
    a(f"  v_add_u32 v{vQb}, {sT}, v48")
    a(f"  s_mul_i32 {sT}, {sH}, 6")
    a(f"  s_add_u32 {sT}, {sT}, {sU}")
    a(f"  s_lshl_b32 {sT}, {sT}, 11")
    a(f"  s_lshl_b32 {sT2}, {sW}, 7")
    a(f"  s_add_u32 {sT}, {sT}, {sT2}")
    a(f"  s_add_u32 {sT}, {sT}, {QP3}")
    a(f"  v_lshlrev_b32 v{vQp}, 9, v3")
    a(f"  v_bfe_u32 v49, v{vLane}, 1, 3")
    a(f"  v_lshl_add_u32 v{vQp}, v49, 4, v{vQp}")
    a(f"  v_add_u32 v{vQp}, {sT}, v{vQp}")
    MQ = ("s[72:73]", "s[70:71]", "s[24:25]")
    quarter_masks(3, MQ)
    a(f"  s_waitcnt vmcnt({CH*NA}) lgkmcnt(0)")
    if cfg.dyn:
        a(f"  v_readfirstlane_b32 {sC0}, v117")
    a(f"  s_add_u32 {T0}, s28, 1")
    a(f"  s_add_u32 {T1}, s29, 1")
    a("  s_barrier")
    stamp("bar1", "pro")
    a(f"  s_cmp_ge_u32 {sU}, 6")
    a("  s_cbranch_scc1 L_noq")
    QD0, QD1 = 96, 100
    for e in range(8): a(f"  v_mov_b32 v{QD0+e}, 0")
    def breg(st):
        if st < 5: return 76 + 4*st
        return (104, 108, 112, 36, 40)[st-5]
    def areg(st): return (16 + 4*st) if st < 5 else (56 + 4*(st-5))
    for st in range(10):
        a(f"  ds_read_b128 v[{areg(st)}:{areg(st)+3}], v{vQa} offset:{XN + 64*st}")
        a(f"  ds_read_b64_tr_b16 v[{breg(st)}:{breg(st)+1}], v{vQb} offset:{4096*st}")
        a(f"  ds_read_b64_tr_b16 v[{breg(st)+2}:{breg(st)+3}], v{vQb} offset:{4096*st + 512}")
    for st in range(10):
        if st % 2 == 0: a(f"  s_waitcnt lgkmcnt({min(15, 3*(10-st-2))})") if st < 8 else a("  s_waitcnt lgkmcnt(0)")
        D = QD0 if st % 2 == 0 else QD1
        a(f"  v_mfma_f32_16x16x32_bf16 v[{D}:{D+3}], v[{areg(st)}:{areg(st)+3}], v[{breg(st)}:{breg(st)+3}], v[{D}:{D+3}]")
    for e in range(4): a(f"  v_add_f32 v{QD0+e}, v{QD0+e}, v{QD1+e}")
    GP = 48
    a(f"  v_mov_b32 v{GP+1}, {T0}")
    a(f"  v_mov_b32 v{GP+3}, {T1}")
    select4(GP, QD0, QD0+1, QD0+2, QD0+3, MQ)
    a(f"  v_mov_b32 v{GP+2}, v{GP} quad_perm:[1,0,3,2] row_mask:0xf bank_mask:0xf")
    a("  s_mov_b32 exec_lo, 0x55555555")
    a("  s_mov_b32 exec_hi, 0x55555555")
    a(f"  global_store_dwordx4 v{vQp}, v[{GP}:{GP+3}], s[26:27] {cfg.qst}")
    a("  s_mov_b64 exec, -1")
    a.label("L_noq")
    stamp("qpub", "main,pro")
    a(f"  s_cmp_ge_u32 {sCj}, 8")
    a("  s_cbranch_scc1 L_nowo")
    vWo = 41
    a(f"  v_lshrrev_b32 v3, 4, v{vLane}")
    a(f"  v_mul_u32_u24 v{vWo}, 1280, v3")
    a(f"  v_and_b32 v42, 15, v{vLane}")
    a(f"  v_lshl_add_u32 v{vWo}, v42, 4, v{vWo}")
    a(f"  s_mul_i32 {sT}, {sH}, 192")
    a(f"  s_mul_i32 {sT2}, {sW}, 48")
    a(f"  s_add_u32 {sT}, {sT}, {sT2}")
    a(f"  s_mul_i32 {sT}, {sT}, 1280")
    a(f"  s_lshl_b32 {sT3}, {sCj}, 8")
    a(f"  s_add_u32 {sT}, {sT}, {sT3}")
    a(f"  s_mul_i32 {sT2}, {sW}, {48*256}")
    a(f"  s_add_u32 {sT2}, {sT2}, {WO}")
    def wo_dma():
        for i in range(12):
            a(f"  s_add_u32 m0, {sT2}, {1024*i}")
            a(f"  buffer_load_dwordx4 v{vWo}, {srd(srdO)}, {sT} offen {NT} lds")
            if i < 11: a(f"  s_add_u32 {sT}, {sT}, {4*1280}")
    if not cfg.wo_late: wo_dma()
    a.label("L_nowo")
    for s in range(NA, R):
        issueT(s); issueK(s); issueV(s)
    a(f"  s_mul_i32 {sLb}, {sW}, {NL*6144}")
    a(f"  s_add_u32 {sLb}, {sLb}, {LA}")
    for k in range(NL): issueL(k)
    if cfg.wo_late:
        a(f"  s_cmp_ge_u32 {sCj}, 8")
        a("  s_cbranch_scc1 L_nowo2")
        wo_dma()
        a.label("L_nowo2")
    a(f"  v_lshlrev_b32 v3, 4, v{vC}")
    for t in range(24): a(f"  v_mov_b32 v{ACC+t}, 0")
    a(f"  v_mov_b32 v{vM}, 0xff800000")
    a(f"  v_mov_b32 v{vL}, 0")
    a("  s_barrier")
    for j in range(3):
        a(f"  ds_read_b128 v[{Q+4*j}:{Q+4*j+3}], v3 offset:{QB + 128*j}")
    LIM = (cfg.S if cfg.dyn else 64) - R - NL
    if cfg.dyn:
        P = 128 - 2 * cfg.S if cfg.dyn == 1 else 512 - 8 * cfg.S
        assert cfg.S - NL >= 2 * R
        assert not (cfg.dyn == 2 and NL)
    a(f"  s_mov_b32 {sI}, 0")
    a(f"  s_mov_b32 {sNval}, {R}")
    a(f"  s_mov_b32 {sAlive}, 1")
    if NL: a(f"  s_mov_b32 {sFirst}, 1")
    a("  s_waitcnt lgkmcnt(0)")
    stamp("qready", "main,pro")

    t0, t1, t2, sS, mn, al, ee, pl, ph = 100, 101, 102, 103, 104, 105, 106, 107, 108
    def scores(K0):
        for i in range(4):
            for j in range(3):
                a(f"  v_dot2c_f32_bf16 v{t0+j}, v{K0+4*j+i}, v{Q+4*j+i}")
    def softmax(tag):
        a(f"  v_add_f32 v{t0}, v{t0}, v{t1}")
        a(f"  v_add_f32 v{t0}, v{t0}, v{t2}")
        dpp("v_add_f32", t0, "quad_perm:[1,0,3,2]")
        dpp("v_add_f32", t0, "quad_perm:[2,3,0,1]")
        dpp("v_add_f32", t0, "row_half_mirror")
        bf16round(t1, t0)
        a(f"  v_mul_f32 v{t1}, {SCALE}, v{t1}")
        bf16round(sS, t1)
        if cfg.wmax:
            a(f"  v_max_f32 v{mn}, v{sS}, v{sS} row_ror:8 row_mask:0xf bank_mask:0xf")
            for sw in ("16", "32"):
                a(f"  v_mov_b32 v{al}, v{mn}")
                a(f"  v_permlane{sw}_swap_b32 v{mn}, v{al}")
                a(f"  v_max_f32 v{mn}, v{mn}, v{al}")
            a(f"  v_cmp_gt_f32 vcc, v{mn}, v{vM}")
            a(f"  v_max_f32 v{mn}, v{vM}, v{mn}")
        else:
            a(f"  v_max_f32 v{mn}, v{vM}, v{sS}")
            a(f"  v_cmp_gt_f32 vcc, v{sS}, v{vM}")
        a(f"  v_sub_f32 v{al}, v{vM}, v{mn}")
        a(f"  v_sub_f32 v{ee}, v{sS}, v{mn}")
        a(f"  v_mul_f32 v{al}, {LOG2E}, v{al}")
        a(f"  v_mul_f32 v{ee}, {LOG2E}, v{ee}")
        a(f"  v_exp_f32 v{al}, v{al}")
        a(f"  v_exp_f32 v{ee}, v{ee}")
        a(f"  v_mov_b32 v{vM}, v{mn}")
        a(f"  v_fma_f32 v{vL}, v{vL}, v{al}, v{ee}")
        a(f"  v_cvt_pk_bf16_f32 v{pl}, v{ee}, 0")
        a(f"  v_cvt_pk_bf16_f32 v{ph}, 0, v{ee}")
        a(f"  s_cbranch_vccz L_nors{tag}")
        for t in range(24): a(f"  v_mul_f32 v{ACC+t}, v{ACC+t}, v{al}")
        a.label(f"L_nors{tag}")
    def pv(V0):
        for j in range(3):
            for i in range(4):
                a(f"  v_dot2c_f32_bf16 v{ACC+8*j+2*i}, v{V0+4*j+i}, v{pl}")
                a(f"  v_dot2c_f32_bf16 v{ACC+8*j+2*i+1}, v{V0+4*j+i}, v{ph}")
    def zero_t():
        for t in (t0, t1, t2): a(f"  v_mov_b32 v{t}, 0")
    a.label("L_loop")
    for s in range(R):
        zero_t()
        a(f"  s_waitcnt vmcnt({3 + CH*(R-1)})")
        if cfg.dyn:
            a(f"  v_readfirstlane_b32 {sT}, v{TKR+s}")
        scores(Kr(s, 0))
        if cfg.dyn:
            a(f"  s_sub_u32 {sT}, {sT}, {sC0}")
            if cfg.dyn == 2:
                a(f"  s_mul_i32 {sT2}, {sT}, 3072")
                a(f"  s_add_u32 {sT2}, {sT2}, {sPool}")
            a(f"  s_cmp_lt_u32 {sT}, {P}")
            a(f"  s_cselect_b32 {sT}, {sAlive}, 0")
            a(f"  s_cmp_lt_u32 {sI}, {LIM}")
            a(f"  s_cselect_b32 {sAlive}, 1, {sT}")
            if cfg.dyn == 2:
                a(f"  s_cselect_b32 {sOff}, {sOff}, {sT2}")
        else:
            a(f"  s_cmp_lt_u32 {sI}, {LIM}")
            a(f"  s_cselect_b32 {sAlive}, 1, 0")
        a(f"  s_add_u32 {sNval}, {sNval}, {sAlive}")
        a(f"  s_cmp_eq_u32 {sAlive}, 0")
        a(f"  s_cselect_b32 s{srdK+2}, 0, s{srdK+2}")
        a(f"  s_cselect_b32 s{srdV+2}, 0, s{srdV+2}")
        if cfg.dyn:
            a(f"  s_cmp_ge_u32 {sI}, {LIM - R}")
            a(f"  s_cselect_b32 {sT}, {sAlive}, 0")
            a(f"  s_lshl_b32 s{srdT+2}, {sT}, 16")
            issueT(s)
        issueK(s)
        softmax(s)
        a(f"  s_waitcnt vmcnt({CH*(R-1) + (4 if cfg.dyn else 3)})")
        pv(Vr(s, 0))
        issueV(s)
        a(f"  s_add_u32 {sI}, {sI}, 1")
        a(f"  s_cmp_lt_u32 {sI}, {sNval}")
        if s < R - 1 or NL:
            a("  s_cbranch_scc0 L_tail")
        else:
            a("  s_cbranch_scc1 L_loop")
    if NL:
        a(f"  s_cmp_eq_u32 {sFirst}, 0")
        a("  s_cbranch_scc1 L_loop")
        LK = 16
        a(f"  s_mov_b32 {sFirst}, 0")
        a(f"  v_lshl_add_u32 v3, v{vLane}, 4, {sLb}")
        a(f"  s_waitcnt vmcnt({CH*R})")
        a(f"  s_mov_b32 {sT2}, 0")
        a.label("L_lds")
        for j in range(6):
            a(f"  ds_read_b128 v[{LK+4*j}:{LK+4*j+3}], v3 offset:{1024*j}")
        zero_t()
        a(f"  v_add_u32 v3, 6144, v3")
        a("  s_waitcnt lgkmcnt(3)")
        scores(LK)
        softmax("L")
        a("  s_waitcnt lgkmcnt(0)")
        pv(LK + 12)
        a(f"  s_add_u32 {sT2}, {sT2}, 1")
        a(f"  s_cmp_lt_u32 {sT2}, {NL}")
        a("  s_cbranch_scc1 L_lds")
        a("  s_branch L_loop")
    a.label("L_tail")
    stamp("loopend", "main,tail,tail2,tail3")

    vSa, vOi, vXv, vGv = 12, 14, 15, 19
    tA, tB = 100, 101
    if cfg.wmax:
        a(f"  v_mov_b32 v{tA}, v{vM}")
    else:
        a(f"  v_max_f32 v{tA}, v{vM}, v{vM} row_ror:8 row_mask:0xf bank_mask:0xf")
        for sw in ("16", "32"):
            a(f"  v_mov_b32 v{tB}, v{tA}")
            a(f"  v_permlane{sw}_swap_b32 v{tA}, v{tB}")
            a(f"  v_max_f32 v{tA}, v{tA}, v{tB}")
        a(f"  v_sub_f32 v{tB}, v{vM}, v{tA}")
        a(f"  v_mul_f32 v{tB}, {LOG2E}, v{tB}")
        a(f"  v_exp_f32 v{tB}, v{tB}")
    a(f"  v_lshrrev_b32 v102, 4, v{vLane}")
    a(f"  v_mul_u32_u24 v102, 6, v102")
    a(f"  s_mul_i32 {sT}, {sW}, 800")
    a(f"  s_add_u32 {sT}, {sT}, {PART}")
    a(f"  v_lshl_add_u32 v103, v{vC}, 5, {sT}")
    for k in range(3):
        a(f"  v_add_u32 v104, {2*k}, v102")
        a(f"  v_lshrrev_b32 v105, 3, v104")
        a(f"  v_and_b32 v104, 7, v104")
        a(f"  v_lshlrev_b32 v105, 8, v105")
        a(f"  v_lshl_add_u32 v105, v104, 2, v105")
        a(f"  v_add_u32 v{106+k}, v105, v103")
    if not cfg.wmax:
        a(f"  v_mul_f32 v{vL}, v{vL}, v{tB}")
        for t in range(24): a(f"  v_mul_f32 v{ACC+t}, v{ACC+t}, v{tB}")
    dpp("v_add_f32", vL, "row_ror:8")
    for t in range(12): a(f"  v_permlane32_swap_b32 v{ACC+t}, v{ACC+t+12}")
    a(f"  v_mov_b32 v{tB}, v{vL}")
    a(f"  v_permlane16_swap_b32 v{vL}, v{tB}")
    for t in range(12): a(f"  v_add_f32 v{ACC+t}, v{ACC+t}, v{ACC+t+12}")
    a(f"  v_add_f32 v{vL}, v{vL}, v{tB}")
    for t in range(6): a(f"  v_permlane16_swap_b32 v{ACC+t}, v{ACC+t+6}")
    a(f"  v_mov_b32 v{tB}, v{vL}")
    a(f"  v_permlane32_swap_b32 v{vL}, v{tB}")
    for t in range(6): a(f"  v_add_f32 v{ACC+t}, v{ACC+t}, v{ACC+t+6}")
    a(f"  v_add_f32 v{tB}, v{vL}, v{tB}")
    for t in range(6): dpp("v_add_f32", ACC+t, "row_ror:8")
    a(f"  v_mov_b32 v109, {sT}")
    for k in range(3):
        a(f"  ds_write_b64 v{106+k}, v[{ACC+2*k}:{ACC+2*k+1}]")
    a(f"  ds_write_b64 v109, v[{tA}:{tB}] offset:768")
    a("  s_waitcnt vmcnt(0) lgkmcnt(0)")
    a("  s_barrier")
    stamp("tbar1", "tail")
    a(f"  s_cmp_ge_u32 {sW}, 2")
    a("  s_cbranch_scc1 L_nomerge")
    MB = 100
    a(f"  v_lshlrev_b32 v3, 3, v{vTid}")
    a(f"  v_mov_b32 v8, {PART+768}")
    for w2 in range(4):
        a(f"  ds_read_b64 v[{MB+2*w2}:{MB+2*w2+1}], v3 offset:{PART+800*w2}")
        a(f"  ds_read_b64 v[{MB+8+2*w2}:{MB+8+2*w2+1}], v8 offset:{800*w2}")
    a(f"  s_lshl_b32 {sT}, {sH}, 3")
    a(f"  s_add_u32 {sT}, {sT}, {sU}")
    a(f"  s_lshl_b32 {sT}, {sT}, 11")
    a(f"  s_add_u32 {sT}, {sT}, {AP}")
    a(f"  v_lshl_add_u32 v9, v{vTid}, 4, {sT}")
    a("  s_waitcnt lgkmcnt(0)")
    mM = [MB+8+2*w2 for w2 in range(4)]; mL = [x+1 for x in mM]
    a(f"  v_max_f32 v29, v{mM[0]}, v{mM[1]}")
    a(f"  v_max3_f32 v29, v29, v{mM[2]}, v{mM[3]}")
    for w2 in range(4): a(f"  v_sub_f32 v{mM[w2]}, v{mM[w2]}, v29")
    for w2 in range(4): a(f"  v_mul_f32 v{mM[w2]}, {LOG2E}, v{mM[w2]}")
    for w2 in range(4): a(f"  v_exp_f32 v{mM[w2]}, v{mM[w2]}")
    a(f"  v_mul_f32 v116, v{MB}, v{mM[0]}")
    a(f"  v_mul_f32 v118, v{MB+1}, v{mM[0]}")
    a(f"  v_mul_f32 v30, v{mL[0]}, v{mM[0]}")
    for w2 in range(1, 4):
        a(f"  v_fmac_f32 v116, v{MB+2*w2}, v{mM[w2]}")
        a(f"  v_fmac_f32 v118, v{MB+2*w2+1}, v{mM[w2]}")
        a(f"  v_fmac_f32 v30, v{mL[w2]}, v{mM[w2]}")
    a(f"  v_cmp_eq_u32 vcc, 96, v{vTid}")
    a(f"  v_cndmask_b32 v116, v116, v29, vcc")
    a(f"  v_cndmask_b32 v118, v118, v30, vcc")
    a(f"  v_mov_b32 v117, {T0}")
    a(f"  v_mov_b32 v119, {T1}")
    a(f"  v_cmp_ge_u32 vcc, 96, v{vTid}")
    a(f"  s_and_saveexec_b64 s[72:73], vcc")
    restamp("stiss", "tail3")
    a(f"  global_store_dwordx4 v9, v[116:119], s[26:27] {cfg.tst}")
    if cfg.diag == "tail3":
        a("  s_waitcnt vmcnt(0)")
        restamp("stack", "tail3")
    a(f"  s_mov_b64 exec, s[72:73]")
    a.label("L_nomerge")
    stamp("apub", "main,tail,tail2")
    a(f"  s_cmp_ge_u32 {sCj}, 8")
    a("  s_cbranch_scc1 L_diag")
    vH1, vH2 = 16, 17
    HG = RING
    a(f"  s_lshl_b32 {sT}, {sH}, 3")
    a(f"  s_lshl_b32 {sT2}, {sW}, 1")
    a(f"  s_add_u32 {sT}, {sT}, {sT2}")
    a(f"  s_lshl_b32 {sT}, {sT}, 11")
    a(f"  s_add_u32 {sT}, {sT}, {AP}")
    a(f"  v_lshlrev_b32 v3, 11, v{vHf}")
    a(f"  v_add_u32 v3, {sT}, v3")
    a(f"  v_lshl_add_u32 v{vH1}, v{vCc}, 4, v3")
    a(f"  v_add_u32 v{vH2}, {96*16}, v3")
    def h1_data():
        for k in range(3):
            a(f"  global_load_dwordx4 v[{HG+4*k}:{HG+4*k+3}], v{vH1}, s[26:27] offset:{512*k} {cfg.tld}")
    def h1_head():
        a(f"  global_load_dwordx4 v[{HG+12}:{HG+15}], v{vH2}, s[26:27] {cfg.tld}")
    restamp("h1iss", "tail2")
    h1_head(); h1_data()
    BF = 32
    vTr = 18
    a(f"  v_lshrrev_b32 v3, 4, v{vLane}")
    a(f"  v_lshlrev_b32 v3, 3, v3")
    a(f"  v_bfe_u32 v8, v{vLane}, 2, 2")
    a(f"  v_add_u32 v3, v3, v8")
    a(f"  v_lshlrev_b32 v3, 8, v3")
    a(f"  v_and_b32 v8, 3, v{vLane}")
    a(f"  v_lshl_add_u32 v3, v8, 3, v3")
    a(f"  s_lshl_b32 {sT}, {sW}, 6")
    a(f"  s_add_u32 {sT}, {sT}, {WO}")
    a(f"  v_add_u32 v{vTr}, {sT}, v3")
    for tt in range(2):
        for s in range(6):
            r = BF + 24*tt + 4*s
            a(f"  ds_read_b64_tr_b16 v[{r}:{r+1}], v{vTr} offset:{8192*s + 32*tt}")
            a(f"  ds_read_b64_tr_b16 v[{r+2}:{r+3}], v{vTr} offset:{8192*s + 32*tt + 1024}")
    vP0 = 22
    a(f"  v_bfe_u32 v8, v{vLane}, 2, 2")
    a(f"  v_lshlrev_b32 v8, 12, v8")
    a(f"  v_bfe_u32 v9, v{vLane}, 4, 1")
    a(f"  v_lshl_add_u32 v8, v9, 6, v8")
    a(f"  v_and_b32 v9, 3, v{vLane}")
    a(f"  v_lshl_add_u32 v8, v9, 4, v8")
    a(f"  s_lshl_b32 {sT}, {sCj}, 5")
    a(f"  s_lshl_b32 {sT2}, {sW}, 3")
    a(f"  s_add_u32 {sT}, {sT}, {sT2}")
    a(f"  s_lshl_b32 {sT}, {sT}, 12")
    a(f"  s_lshl_b32 {sT2}, {sH}, 7")
    a(f"  s_add_u32 {sT}, {sT}, {sT2}")
    a(f"  s_add_u32 {sT}, {sT}, {SP3}")
    a(f"  v_add_u32 v{vP0}, {sT}, v8")
    a(f"  v_add_u32 v{vP0+1}, {4*4096}, v{vP0}")
    a(f"  s_cmp_lg_u32 {sW}, 0")
    a("  s_cbranch_scc1 L_nofin1")
    a(f"  s_lshl_b32 {sT}, {sCj}, 5")
    a(f"  s_add_u32 {sT}, {sT}, {sH}")
    a(f"  s_lshl_b32 {sT}, {sT}, 12")
    a(f"  s_add_u32 {sT}, {sT}, {SP3}")
    a(f"  v_lshl_add_u32 v{vSa}, v{vLane}, 4, {sT}")
    a(f"  v_bfe_u32 v8, v{vLane}, 2, 1")
    a(f"  v_and_b32 v9, 1, v{vG}")
    a(f"  v_lshl_add_u32 v8, v8, 1, v9")
    a(f"  v_and_b32 v9, 3, v{vLane}")
    a(f"  v_lshlrev_b32 v29, 4, v9")
    a(f"  v_lshl_add_u32 v29, v8, 2, v29")
    a(f"  ds_read_b32 v{vGv}, v29 offset:{GV}")
    a(f"  v_mul_u32_u24 v8, 640, v8")
    a(f"  s_lshl_b32 {sT}, {sCj}, 7")
    a(f"  s_lshl_b32 {sT2}, {sH}, 2")
    a(f"  s_add_u32 {sT}, {sT}, {sT2}")
    a(f"  v_add3_u32 v8, v8, v9, {sT}")
    a(f"  v_lshlrev_b32 v{vOi}, 1, v8")
    a(f"  global_load_ushort v{vXv}, v{vOi}, s[4:5]")
    a.label("L_nofin1")
    a("  s_waitcnt vmcnt(0)")
    check_tags([HG, HG+4, HG+8, HG+12], 20)
    a("  s_cbranch_vccz L_h1ok")
    a.label("L_h1hdr")
    spin_guard(cfg.sleep)
    if cfg.h1full:
        restamp("h1iss", "tail2")
        h1_head(); h1_data()
        a("  s_waitcnt vmcnt(0)")
        check_tags([HG, HG+4, HG+8, HG+12], 20)
        a("  s_cbranch_vccnz L_h1hdr")
    else:
        h1_head()
        a("  s_waitcnt vmcnt(0)")
        check_tags([HG+12], 20)
        a("  s_cbranch_vccnz L_h1hdr")
        h1_data()
        a("  s_waitcnt vmcnt(0)")
        check_tags([HG, HG+4, HG+8], 20)
        a("  s_cbranch_vccnz L_h1hdr")
    a.label("L_h1ok")
    stamp("h1ok", "tail,tail2")
    gm, gl = HG+12, HG+14
    a(f"  v_mov_b32 v20, v{gm}")
    a(f"  v_mov_b32 v21, v{gm}")
    a(f"  v_permlane32_swap_b32 v20, v21")
    a(f"  v_max_f32 v20, v20, v21")
    a(f"  v_sub_f32 v21, v{gm}, v20")
    a(f"  v_mul_f32 v21, {LOG2E}, v21")
    a(f"  v_exp_f32 v21, v21")
    a(f"  v_mul_f32 v24, v{gl}, v21")
    a(f"  v_mov_b32 v25, v24")
    a(f"  v_permlane32_swap_b32 v24, v25")
    a(f"  v_add_f32 v24, v24, v25")
    a(f"  v_rcp_f32 v24, v24")
    a(f"  v_mul_f32 v21, v21, v24")
    vals = [HG, HG+2, HG+4, HG+6, HG+8, HG+10]
    for r in vals: a(f"  v_mul_f32 v{r}, v{r}, v21")
    a(f"  v_permlane32_swap_b32 v{vals[0]}, v{vals[2]}")
    a(f"  v_permlane32_swap_b32 v{vals[1]}, v{vals[3]}")
    a(f"  v_mov_b32 v24, v{vals[4]}")
    a(f"  v_mov_b32 v25, v{vals[5]}")
    a(f"  v_add_f32 v{vals[0]}, v{vals[0]}, v{vals[2]}")
    a(f"  v_add_f32 v{vals[1]}, v{vals[1]}, v{vals[3]}")
    a(f"  v_permlane32_swap_b32 v{vals[4]}, v24")
    a(f"  v_permlane32_swap_b32 v{vals[5]}, v25")
    a(f"  v_cvt_pk_bf16_f32 v26, v{vals[0]}, v{vals[1]}")
    a(f"  v_add_f32 v{vals[4]}, v{vals[4]}, v24")
    a(f"  v_add_f32 v{vals[5]}, v{vals[5]}, v25")
    a(f"  s_mul_i32 {sT}, {sW}, 384")
    a(f"  v_lshl_add_u32 v28, v{vLane}, 2, {sT}")
    a(f"  v_lshl_add_u32 v29, v{vCc}, 2, {sT}")
    a(f"  v_cvt_pk_bf16_f32 v27, v{vals[4]}, v{vals[5]}")
    a(f"  ds_write_b32 v28, v26 offset:{OB}")
    a(f"  ds_write_b32 v29, v27 offset:{OB+256}")
    a(f"  v_and_b32 v3, 3, v{vLane}")
    a(f"  v_mul_u32_u24 v3, 384, v3")
    a(f"  v_lshrrev_b32 v8, 4, v{vLane}")
    a(f"  v_lshl_add_u32 v3, v8, 4, v3")
    a(f"  v_and_b32 v8, 16, v{vLane}")
    a(f"  v_cmp_ne_u32 s[72:73], 0, v8")
    a("  s_waitcnt lgkmcnt(0)")
    a("  s_barrier")
    AF = RING + 32
    for s in range(6):
        a(f"  ds_read_b128 v[{AF+4*s}:{AF+4*s+3}], v3 offset:{OB+64*s}")
    D0, D1 = 80, 84
    for e in range(8): a(f"  v_mov_b32 v{D0+e}, 0")
    a(f"  v_mov_b32 v89, {T0}")
    a(f"  v_mov_b32 v91, {T1}")
    a(f"  v_mov_b32 v93, {T0}")
    a(f"  v_mov_b32 v95, {T1}")
    a("  s_waitcnt lgkmcnt(0)")
    for s in range(6):
        for tt, D in ((0, D0), (1, D1)):
            r = BF + 24*tt + 4*s
            a(f"  v_mfma_f32_16x16x32_bf16 v[{D}:{D+3}], v[{AF+4*s}:{AF+4*s+3}], v[{r}:{r+3}], v[{D}:{D+3}]")
    for tt, D in ((0, D0), (1, D1)):
        g = 88 + 4*tt
        a(f"  v_cndmask_b32 v{g}, v{D}, v{D+2}, s[72:73]")
        a(f"  v_cndmask_b32 v{g+2}, v{D+1}, v{D+3}, s[72:73]")
    a("  s_mov_b32 exec_hi, 0")
    a(f"  global_store_dwordx4 v{vP0}, v[88:91], s[26:27] {cfg.tst}")
    a(f"  global_store_dwordx4 v{vP0+1}, v[92:95], s[26:27] {cfg.tst}")
    if cfg.diag == "tail3":
        restamp("st2iss", "tail3")
        a("  s_waitcnt vmcnt(0)")
        restamp("st2ack", "tail3")
    a("  s_mov_b32 exec_hi, -1")
    stamp("spub", "main,tail,tail2")
    a(f"  s_cmp_lg_u32 {sW}, 0")
    a("  s_cbranch_scc1 L_fin_end")
    SG = RING
    a.label("L_spoll")
    restamp("h2iss", "tail2")
    for i in range(4):
        a(f"  global_load_dwordx4 v[{SG+4*i}:{SG+4*i+3}], v{vSa}, s[26:27] offset:{1024*i} {cfg.tld}")
    a("  s_waitcnt vmcnt(0)")
    check_tags([SG, SG+4, SG+8, SG+12], 20)
    a("  s_cbranch_vccz L_sok")
    spin_guard(cfg.sleep)
    a("  s_branch L_spoll")
    a.label("L_sok")
    stamp("h2ok", "tail,tail2")
    for i in range(1, 4):
        a(f"  v_add_f32 v{SG}, v{SG}, v{SG+4*i}")
        a(f"  v_add_f32 v{SG+2}, v{SG+2}, v{SG+4*i+2}")
    reduce_hi([SG, SG+2], [20, 21])
    a(f"  v_and_b32 v20, 8, v{vLane}")
    a(f"  v_cmp_ne_u32 vcc, 0, v20")
    a(f"  v_cndmask_b32 v21, v{SG}, v{SG+2}, vcc")
    bf16round(21, 21)
    a(f"  v_mul_f32 v21, v21, v{vGv}")
    bf16round(21, 21)
    a(f"  v_lshlrev_b32 v22, 16, v{vXv}")
    a(f"  v_add_f32 v21, v21, v22")
    a(f"  v_cvt_pk_bf16_f32 v21, v21, v21")
    a("  s_mov_b64 exec, 0xffff")
    a(f"  global_store_short v{vOi}, v21, s[22:23]")
    a("  s_mov_b64 exec, -1")
    a(f"  s_add_u32 {sT}, {sH}, {sCj}")
    a(f"  s_cmp_lg_u32 {sT}, 0")
    a("  s_cbranch_scc1 L_fin_end")
    a(f"  v_mov_b32 v22, {T0}")
    a(f"  v_mov_b32 v23, {T1}")
    a(f"  v_mov_b32 v24, 0")
    a("  s_mov_b64 exec, 1")
    a(f"  global_store_dwordx2 v24, v[22:23], s[26:27] sc1")
    a("  s_mov_b64 exec, -1")
    a.label("L_fin_end")
    stamp("end", "main,tail")
    a("  s_branch L_diag")

    a.label("L_svc")
    sCb, sS_ = "s61", "s62"
    qA = 8
    a(f"  v_lshlrev_b32 v3, 11, v{vHf}")
    a(f"  v_lshl_add_u32 v3, v{vCc}, 4, v3")
    a(f"  s_mul_i32 {sT}, {sH}, {6*2048}")
    a(f"  s_lshl_b32 {sT2}, {sB}, 9")
    a(f"  s_add_u32 {sT}, {sT}, {sT2}")
    a(f"  s_add_u32 {sT}, {sT}, {QP3}")
    a(f"  v_add_u32 v{qA}, {sT}, v3")
    a(f"  v_add_u32 v{qA+1}, 4096, v{qA}")
    a(f"  v_add_u32 v{qA+2}, 8192, v{qA}")
    a(f"  v_lshlrev_b32 v11, 2, v{vCc}")
    a("  s_waitcnt lgkmcnt(0)")
    a("  s_load_dwordx2 s[28:29], s[26:27], 0")
    mk_srd(srdG, 16, 1966080)
    mk_srd(srdU, 18, 1966080)
    mk_srd(srdD, 20, 1966080)
    a("  s_waitcnt lgkmcnt(0)")
    a(f"  s_add_u32 {T0}, s28, 1")
    a(f"  s_add_u32 {T1}, s29, 1")
    a("  s_barrier")
    GQ = 16
    if cfg.dyn:
        a(f"  s_lshl_b32 {sT}, {sH}, 3")
        a(f"  s_add_u32 {sT2}, {sT}, {sU}")
        a(f"  s_lshl_b32 {sT2}, {sT2}, 4")
        a(f"  s_add_u32 {sT2}, {sT2}, {RD}")
        a(f"  v_mov_b32 v12, {sT2}")
        a(f"  v_mov_b32 v40, 0")
        a(f"  v_mov_b32 v41, {T0}")
        a(f"  v_mov_b32 v42, 0")
        a(f"  v_mov_b32 v43, {T1}")
        a("  s_mov_b64 exec, 1")
        a(f"  global_store_dwordx4 v12, v[40:43], s[26:27] sc1")
        a("  s_mov_b64 exec, -1")
        a(f"  s_xor_b32 {sT2}, {sU}, 1")
        a(f"  s_add_u32 {sT2}, {sT2}, {sT}")
        a(f"  s_lshl_b32 {sT2}, {sT2}, 4")
        a(f"  s_add_u32 {sT2}, {sT2}, {RD}")
        a(f"  v_mov_b32 v12, {sT2}")
    a.label("L_qpoll")
    for k in range(3):
        a(f"  global_load_dwordx4 v[{GQ+4*k}:{GQ+4*k+3}], v{qA+k}, s[26:27] {cfg.qld}")
    if cfg.dyn:
        a(f"  global_load_dwordx4 v[{GQ+12}:{GQ+15}], v12, s[26:27] sc1")
    a("  s_waitcnt vmcnt(0)")
    check_tags([GQ, GQ+4, GQ+8] + ([GQ+12] if cfg.dyn else []), 34)
    a("  s_cbranch_vccz L_qgot")
    spin_guard()
    a("  s_branch L_qpoll")
    a.label("L_qgot")
    qv = [GQ, GQ+2, GQ+4, GQ+6, GQ+8, GQ+10]
    for r, t in zip(qv, range(34, 40)): a(f"  v_mov_b32 v{t}, v{r}")
    for r, t in zip(qv, range(34, 40)): a(f"  v_permlane32_swap_b32 v{r}, v{t}")
    for r, t in zip(qv, range(34, 40)): a(f"  v_add_f32 v{r}, v{r}, v{t}")
    for k in range(3): a(f"  v_cvt_pk_bf16_f32 v{34+k}, v{GQ+4*k}, v{GQ+4*k+2}")
    for k in range(3): a(f"  ds_write_b32 v11, v{34+k} offset:{QB + 128*k}")
    a("  s_waitcnt lgkmcnt(0)")
    a("  s_barrier")
    stamp("fstart", "ffn")
    if cfg.noffn:
        a(f"  v_mov_b32 v8, 1.0")
        a(f"  v_mov_b32 v9, 1.0")
        a(f"  v_mov_b32 v10, 1.0")
        a(f"  v_mov_b32 v11, 1.0")
        a(f"  v_lshlrev_b32 v3, 4, v{vLane}")
        a("  s_mov_b64 exec, 0xf")
        a(f"  ds_write_b128 v3, v[8:11] offset:{GV}")
        a("  s_waitcnt lgkmcnt(0)")
        a("  s_branch L_end")
    fW, fD, fA, fB, fB2 = 8, 9, 10, 11, 12
    a(f"  v_lshrrev_b32 v3, 4, v{vLane}")
    a(f"  v_and_b32 v13, 3, v{vLane}")
    a(f"  v_bfe_u32 v14, v{vLane}, 2, 2")
    a(f"  s_cmp_ge_u32 {sCj}, 8")
    a("  s_cbranch_scc1 L_nof2dma")
    a(f"  s_cmp_ge_u32 {sH}, 24")
    a("  s_cbranch_scc1 L_nof2dma")
    a(f"  v_mul_u32_u24 v{fD}, 1280, v3")
    a(f"  v_and_b32 v15, 15, v{vLane}")
    a(f"  v_lshl_add_u32 v{fD}, v15, 4, v{fD}")
    a(f"  s_mul_i32 {sT}, {sH}, {64*1280}")
    a(f"  s_lshl_b32 {sT2}, {sCj}, 8")
    a(f"  s_add_u32 {sT}, {sT}, {sT2}")
    for i in range(16):
        a(f"  s_mov_b32 m0, {F2S + 1024*i}")
        a(f"  buffer_load_dwordx4 v{fD}, {srd(srdD)}, {sT} offen {NT} lds")
        if i < 15: a(f"  s_add_u32 {sT}, {sT}, {4*1280}")
    a.label("L_nof2dma")
    a(f"  s_cmp_ge_u32 {sU}, 6")
    a("  s_cbranch_scc1 L_nof1")
    a(f"  s_mul_i32 {sT}, {sH}, 6")
    a(f"  s_add_u32 {sT}, {sT}, {sU}")
    a(f"  s_lshr_b32 {sCb}, {sT}, 3")
    a(f"  s_and_b32 {sS_}, {sT}, 7")
    a(f"  v_mul_u32_u24 v{fW}, 3072, v{vG}")
    a(f"  v_lshl_add_u32 v{fW}, v{vC}, 4, v{fW}")
    a(f"  s_mul_i32 {sT}, {sS_}, {80*3072}")
    a(f"  s_lshl_b32 {sT2}, {sCb}, 7")
    a(f"  s_add_u32 {sT}, {sT}, {sT2}")
    for i in range(10):
        a(f"  s_mov_b32 m0, {F1S + 1024*i}")
        a(f"  buffer_load_dwordx4 v{fW}, {srd(srdG)}, {sT} offen {NT} lds")
        a(f"  s_mov_b32 m0, {F1S + 10240 + 1024*i}")
        a(f"  buffer_load_dwordx4 v{fW}, {srd(srdU)}, {sT} offen {NT} lds")
        if i < 9: a(f"  s_add_u32 {sT}, {sT}, {8*3072}")
    a(f"  v_mul_u32_u24 v{fA}, 1280, v13")
    a(f"  v_lshl_add_u32 v{fA}, v3, 3, v{fA}")
    a(f"  s_mul_i32 {sT}, {sS_}, 160")
    a(f"  v_add_u32 v{fA}, {sT}, v{fA}")
    a(f"  v_lshl_add_u32 v15, v3, 2, v14")
    a(f"  v_lshlrev_b32 v15, 7, v15")
    a(f"  v_lshl_add_u32 v{fB}, v13, 3, v15")
    a(f"  v_add_u32 v{fB}, {F1S}, v{fB}")
    FA, FB, FDd = 16, 32, 112
    for st in range(5):
        a(f"  ds_read_b64 v[{FA+2*st}:{FA+2*st+1}], v{fA} offset:{XN + 32*st}")
    for t in range(32): a(f"  v_mov_b32 v{FDd+t}, 0")
    quarter_masks(3, MQ)
    a("  s_waitcnt vmcnt(0) lgkmcnt(0)")
    for mat in range(2):
        for t in range(4):
            for st in range(5):
                r = FB + 2*(20*mat + 5*t + st)
                a(f"  ds_read_b64_tr_b16 v[{r}:{r+1}], v{fB} offset:{10240*mat + 2048*st + 32*t}")
            if t % 2 == 1: a("  s_waitcnt lgkmcnt(0)")
    for st in range(5):
        for mat in range(2):
            for t in range(4):
                r = FB + 2*(20*mat + 5*t + st); D = FDd + 4*(4*mat + t)
                a(f"  v_mfma_f32_16x16x16_bf16 v[{D}:{D+3}], v[{FA+2*st}:{FA+2*st+1}], v[{r}:{r+1}], v[{D}:{D+3}]")
    a(f"  s_lshl_b32 {sI}, {sCb}, 3")
    a(f"  s_add_u32 {sI}, {sI}, {sS_}")
    a(f"  s_lshl_b32 {sT}, {sI}, 11")
    a(f"  s_add_u32 {sT}, {sT}, {G1}")
    a(f"  v_lshl_add_u32 v13, v{vLane}, 4, {sT}")
    for mat in range(2):
        g = 32 + 4*mat
        for i in range(4):
            Dm = FDd + 16*mat + i
            select4(g+i, Dm, Dm+4, Dm+8, Dm+12, MQ)
        a(f"  global_store_dwordx4 v13, v[{g}:{g+3}], s[26:27] offset:{1024*mat} {cfg.hst}")
    def flag_store(vaddr):
        a("  v_mov_b32 v40, 0")
        a(f"  v_mov_b32 v41, {T0}")
        a("  v_mov_b32 v42, 0")
        a(f"  v_mov_b32 v43, {T1}")
        a("  s_waitcnt vmcnt(0)")
        a("  s_mov_b64 exec, 1")
        a(f"  global_store_dwordx4 v{vaddr}, v[40:43], s[26:27] {cfg.pst}")
        a("  s_mov_b64 exec, -1")
    a(f"  s_lshl_b32 {sT}, {sI}, 4")
    a(f"  s_add_u32 {sT}, {sT}, {F1}")
    a(f"  v_mov_b32 v14, {sT}")
    flag_store(14)
    stamp("f1pub", "ffn")
    a(f"  s_lshl_b32 {sT}, {sCb}, 7")
    a(f"  s_add_u32 {sT}, {sT}, {F1}")
    a(f"  v_lshl_add_u32 v15, v{vC}, 4, {sT}")
    a.label("L_f1poll")
    a(f"  s_sleep {cfg.fsleep}")
    a(f"  global_load_dwordx4 v[44:47], v15, s[26:27] {cfg.pld}")
    a("  s_waitcnt vmcnt(0)")
    check_tags([44], 64)
    a("  s_cbranch_vccz L_f1ok")
    spin_guard()
    a("  s_branch L_f1poll")
    a.label("L_f1ok")
    a(f"  s_lshl_b32 {sT}, {sCb}, 14")
    a(f"  s_lshl_b32 {sT2}, {sS_}, 7")
    a(f"  s_add_u32 {sT}, {sT}, {sT2}")
    a(f"  s_add_u32 {sT}, {sT}, {G1}")
    a(f"  v_lshlrev_b32 v14, 11, v{vG}")
    a(f"  v_lshl_add_u32 v14, v{vC}, 4, v14")
    a(f"  v_add_u32 v14, {sT}, v14")
    FGg = 48
    for mat in range(2):
        a(f"  global_load_dwordx4 v[{FGg+4*mat}:{FGg+4*mat+3}], v14, s[26:27] offset:{1024*mat} {cfg.hld}")
    a(f"  v_and_b32 v3, 3, v{vG}")
    quarter_masks(3, MQ)
    a("  s_waitcnt vmcnt(0)")
    stamp("f1ok", "ffn")
    fv = list(range(FGg, FGg+8))
    reduce_hi(fv, list(range(64, 72)))
    select4(72, FGg, FGg+1, FGg+2, FGg+3, MQ)
    select4(73, FGg+4, FGg+5, FGg+6, FGg+7, MQ)
    bf16round(72, 72)
    bf16round(73, 73)
    a("  v_mul_f32 v74, v72, v72")
    a("  v_mul_f32 v74, v74, v72")
    a(f"  v_mul_f32 v74, {f32(0.044715)}, v74")
    a("  v_add_f32 v74, v72, v74")
    a(f"  v_mul_f32 v74, {f32(-2.0*0.7978845608028654*1.4426950408889634)}, v74")
    a("  v_exp_f32 v74, v74")
    a("  v_add_f32 v74, 1.0, v74")
    a("  v_rcp_f32 v74, v74")
    a("  v_mul_f32 v74, v72, v74")
    bf16round(74, 74)
    a("  v_mul_f32 v74, v74, v73")
    a("  v_cvt_pk_bf16_f32 v74, v74, v74")
    a("  v_mov_b32 v75, v74 quad_perm:[1,0,3,2] row_mask:0xf bank_mask:0xf")
    a(f"  v_perm_b32 v76, v75, v74, {sPermLo}")
    a("  v_mov_b32 v78, v76 row_ror:8 row_mask:0xf bank_mask:0xf")
    a(f"  v_mov_b32 v77, {T0}")
    a(f"  v_mov_b32 v79, {T1}")
    a(f"  s_lshl_b32 {sT}, {sI}, 7")
    a(f"  s_add_u32 {sT}, {sT}, {G2}")
    a(f"  v_lshrrev_b32 v3, 4, v{vLane}")
    a(f"  v_lshlrev_b32 v3, 6, v3")
    a(f"  v_lshl_add_u32 v3, v{vC}, 3, v3")
    a(f"  v_add_u32 v3, {sT}, v3")
    a("  s_mov_b32 exec_lo, 0x00550055")
    a("  s_mov_b32 exec_hi, 0")
    a(f"  global_store_dwordx4 v3, v[76:79], s[26:27] {cfg.pst}")
    a("  s_mov_b64 exec, -1")
    a.label("L_nof1")
    stamp("f15pub", "ffn")
    a(f"  s_cmp_ge_u32 {sCj}, 8")
    a("  s_cbranch_scc1 L_diag")
    a(f"  s_cmp_ge_u32 {sH}, 24")
    a("  s_cbranch_scc1 L_nof2")
    a(f"  s_lshl_b32 {sT}, {sH}, 10")
    a(f"  s_add_u32 {sT}, {sT}, {G2}")
    a(f"  v_lshl_add_u32 v14, v{vLane}, 4, {sT}")
    a(f"  v_lshrrev_b32 v3, 4, v{vLane}")
    a(f"  v_bfe_u32 v15, v{vLane}, 2, 2")
    a(f"  v_lshl_add_u32 v15, v3, 3, v15")
    a(f"  v_lshlrev_b32 v15, 8, v15")
    a(f"  v_and_b32 v13, 3, v{vLane}")
    a(f"  v_lshl_add_u32 v{fB2}, v13, 3, v15")
    a(f"  v_add_u32 v{fB2}, {F2S}, v{fB2}")
    a.label("L_f2poll")
    a(f"  global_load_dwordx4 v[48:51], v14, s[26:27] {cfg.pld}")
    a("  s_waitcnt vmcnt(0)")
    check_tags([48], 64)
    a("  s_cbranch_vccz L_f2ok")
    spin_guard(cfg.fsleep)
    a("  s_branch L_f2poll")
    a.label("L_f2ok")
    stamp("f2ok", "ffn")
    F2B = 80
    for t in range(8):
        for st in range(2):
            r = F2B + 8*t + 4*st
            a(f"  ds_read_b64_tr_b16 v[{r}:{r+1}], v{fB2} offset:{8192*st + 32*t}")
            a(f"  ds_read_b64_tr_b16 v[{r+2}:{r+3}], v{fB2} offset:{8192*st + 32*t + 1024}")
        if t % 2 == 1: a("  s_waitcnt lgkmcnt(0)")
    a(f"  v_bfe_u32 v3, v{vLane}, 2, 1")
    a(f"  v_lshlrev_b32 v3, 8, v3")
    a(f"  v_lshl_add_u32 v3, v{vG}, 4, v3")
    a(f"  v_lshl_add_u32 v3, v13, 2, v3")
    a(f"  ds_write_b32 v3, v48 offset:{HID}")
    a(f"  ds_write_b32 v3, v50 offset:{HID+128}")
    a(f"  v_lshlrev_b32 v3, 7, v13")
    a(f"  v_lshrrev_b32 v14, 4, v{vLane}")
    a(f"  v_lshl_add_u32 v3, v14, 4, v3")
    a("  s_waitcnt lgkmcnt(0)")
    a(f"  ds_read_b128 v[52:55], v3 offset:{HID}")
    a(f"  ds_read_b128 v[56:59], v3 offset:{HID+64}")
    F2D = 144
    for t in range(32): a(f"  v_mov_b32 v{F2D+t}, 0")
    quarter_masks(14, MQ)
    a(f"  s_mul_i32 {sI}, {sCj}, 24")
    a(f"  s_add_u32 {sI}, {sI}, {sH}")
    a(f"  s_lshl_b32 {sT}, {sI}, 11")
    a(f"  s_add_u32 {sT}, {sT}, {FP3}")
    a(f"  v_lshl_add_u32 v13, v{vLane}, 4, {sT}")
    a("  s_waitcnt lgkmcnt(0)")
    for st in range(2):
        for t in range(8):
            r = F2B + 8*t + 4*st; D = F2D + 4*t
            a(f"  v_mfma_f32_16x16x32_bf16 v[{D}:{D+3}], v[{52+4*st}:{55+4*st}], v[{r}:{r+3}], v[{D}:{D+3}]")
    for rr in range(2):
        g = 32 + 4*rr
        for i in range(4):
            Dm = F2D + 16*rr + i
            select4(g+i, Dm, Dm+4, Dm+8, Dm+12, MQ)
        a(f"  global_store_dwordx4 v13, v[{g}:{g+3}], s[26:27] offset:{1024*rr} {cfg.hst}")
    a(f"  s_lshl_b32 {sT}, {sCj}, 9")
    a(f"  s_lshl_b32 {sT2}, {sH}, 4")
    a(f"  s_add_u32 {sT}, {sT}, {sT2}")
    a(f"  s_add_u32 {sT}, {sT}, {F3}")
    a(f"  v_mov_b32 v14, {sT}")
    flag_store(14)
    a.label("L_nof2")
    stamp("f2pub", "ffn")
    a(f"  s_lshl_b32 {sT}, {sCj}, 9")
    a(f"  s_add_u32 {sT}, {sT}, {F3}")
    a(f"  v_min_u32 v3, 23, v{vLane}")
    a(f"  v_lshl_add_u32 v15, v3, 4, {sT}")
    a.label("L_f3poll")
    a(f"  global_load_dwordx4 v[44:47], v15, s[26:27] {cfg.pld}")
    a("  s_waitcnt vmcnt(0)")
    check_tags([44], 64)
    a("  s_cbranch_vccz L_f3ok")
    spin_guard(cfg.fsleep3)
    a("  s_branch L_f3poll")
    a.label("L_f3ok")
    a(f"  s_mul_i32 {sT}, {sCj}, {24*2048}")
    a(f"  s_lshl_b32 {sT2}, {sH}, 6")
    a(f"  s_add_u32 {sT}, {sT}, {sT2}")
    a(f"  s_add_u32 {sT}, {sT}, {FP3}")
    a(f"  v_lshrrev_b32 v3, 2, v{vLane}")
    a(f"  v_lshlrev_b32 v3, 11, v3")
    a(f"  v_and_b32 v13, 3, v{vLane}")
    a(f"  v_lshl_add_u32 v3, v13, 4, v3")
    a(f"  v_add_u32 v14, {sT}, v3")
    a(f"  v_add_u32 v15, {16*2048}, v14")
    for e in range(4): a(f"  v_mov_b32 v{52+e}, 0")
    a(f"  global_load_dwordx4 v[48:51], v14, s[26:27] {cfg.hld}")
    a("  s_mov_b32 exec_hi, 0")
    a(f"  global_load_dwordx4 v[52:55], v15, s[26:27] {cfg.hld}")
    a("  s_mov_b32 exec_hi, -1")
    a("  s_waitcnt vmcnt(0)")
    for e in range(4): a(f"  v_add_f32 v{48+e}, v{48+e}, v{52+e}")
    reduce_hi([48, 49, 50, 51], [56, 57, 58, 59], rors=(4, 8))
    for e in range(4):
        r = 48 + e
        bf16round(r, r)
        a(f"  v_mul_f32 v{56+e}, {f32(-1.4426950408889634)}, v{r}")
    for e in range(4): a(f"  v_exp_f32 v{56+e}, v{56+e}")
    for e in range(4): a(f"  v_add_f32 v{56+e}, 1.0, v{56+e}")
    for e in range(4): a(f"  v_rcp_f32 v{56+e}, v{56+e}")
    for e in range(4): a(f"  v_mul_f32 v{48+e}, v{48+e}, v{56+e}")
    for e in range(4): bf16round(48+e, 48+e)
    a(f"  v_lshlrev_b32 v3, 4, v13")
    a("  s_mov_b64 exec, 0xf")
    a(f"  ds_write_b128 v3, v[48:51] offset:{GV}")
    a("  s_mov_b64 exec, -1")
    a("  s_waitcnt lgkmcnt(0)")
    stamp("fend", "ffn")
    a.label("L_diag")
    if cfg.diag:
        a("  s_waitcnt lgkmcnt(0)")
        a(f"  s_mul_i32 {sT}, s2, 5")
        a(f"  s_add_u32 {sT}, {sT}, {sW}")
        a(f"  s_lshl_b32 {sT}, {sT}, 7")
        a(f"  s_add_u32 {sT}, {sT}, {STAMP}")
        a(f"  v_mov_b32 v3, {sT}")
        a("  s_mov_b64 exec, 1")
        for i in range(8):
            a(f"  v_mov_b32 v4, s{84+2*i}")
            a(f"  v_mov_b32 v5, s{85+2*i}")
            a(f"  global_store_dwordx2 v3, v[4:5], s[26:27] offset:{8*i}")
            a("  s_nop 1")
        a("  s_getreg_b32 s84, hwreg(HW_REG_HW_ID)")
        a("  s_getreg_b32 s85, hwreg(HW_REG_XCC_ID)")
        a(f"  v_mov_b32 v4, s84")
        a(f"  v_mov_b32 v5, s85")
        a(f"  global_store_dwordx2 v3, v[4:5], s[26:27] offset:64")
        a("  s_nop 1")
        a(f"  v_mov_b32 v4, {sNval}")
        a(f"  v_mov_b32 v5, {sU}")
        a(f"  global_store_dwordx2 v3, v[4:5], s[26:27] offset:72")
    a.label("L_end")
    a("  s_endpgm")
    a('.section .rodata,"a"')
    a(".p2align 6")
    a(f".amdhsa_kernel {KN}")
    a("  .amdhsa_next_free_vgpr 256")
    a("  .amdhsa_next_free_sgpr 102")
    a("  .amdhsa_accum_offset 256")
    a("  .amdhsa_group_segment_fixed_size 0")
    a("  .amdhsa_kernarg_size 96")
    a("  .amdhsa_user_sgpr_count 2")
    a("  .amdhsa_user_sgpr_kernarg_segment_ptr 1")
    a("  .amdhsa_system_sgpr_workgroup_id_x 1")
    a(".end_amdhsa_kernel")
    body = a.finalize()
    if cfg.diag: hdr.append("; stamps: " + ",".join(names))
    return "\n".join(hdr) + "\n" + body

if __name__ == "__main__":
    ap = argparse.ArgumentParser()
    ap.add_argument("-o", default="recurrent_scan__mha_block_cached__geglu_ffn__decode.s")
    for k, v in vars(Cfg).items():
        if k.startswith("_"): continue
        if isinstance(v, bool): ap.add_argument("--" + k, type=int, default=int(v))
        else: ap.add_argument("--" + k, type=type(v), default=v)
    ap.add_argument("--wo_late", type=int, default=0)
    args = ap.parse_args()
    cfg = Cfg()
    for k, v in vars(args).items(): setattr(cfg, k, v)
    open(args.o, "w").write(build(cfg))
    print("wrote", args.o)
```

```python
import struct, sys, argparse
from asmdsl import Asm

KN = "recurrent_scan__mha_block_cached__geglu_ffn__decode_kernel"
def f32(x): return "0x%08x" % struct.unpack("<I", struct.pack("<f", x))[0]
LOG2E = f32(1.4426950408889634)
SCALE = f32(192 ** -0.5)

STAMP = 0x10000
QP3 = 0x100000
AP  = 0x180000
SP3 = 0x200000
G1  = 0x2A0000
F1  = 0x300000
G2  = 0x301000
FP3 = 0x308000
F3  = 0x344000
TK  = 0x350000
RD  = 0x360000
XN  = 0
XS  = 1344
QB  = 5376
HID = 5760
HS  = 192
GV  = 6528
HIDEND = 6528
PART = 6656
OB  = 9856
OS  = 448
TQ  = 11648
WQS = 12032
WO  = WQS + 40960
F1S = WO
F2S = WO + 49152
LA  = F2S + 16384

class Cfg:
    R = 2; NL = 0; NA = 1; diag = ''; nt = "nt"; dyn = 3; S = 52; match = 2
    sleep = 0; fsleep = 32; hst = "sc1 nt"; hld = "sc1 nt"; qst = "sc1"; qld = "sc1"; tst = "sc1"; tld = "sc1"
    pst = "sc1"; pld = "sc1"; fsleep3 = 120
    noffn = False
    pp = 0
    ppsleep = 3
    wotail = 0
    wsbase = 0
    h1full = 1
    wmax = 1
    pf32 = 1

def build(cfg):
    global QP3, AP, SP3, G1, F1, G2, FP3, F3, TK, RD
    QP3, AP, SP3, G1, F1, G2, FP3, F3, TK, RD = [x + cfg.wsbase for x in (0x100000, 0x180000, 0x200000, 0x2A0000, 0x300000, 0x301000, 0x308000, 0x344000, 0x350000, 0x360000)]
    a = Asm()
    R, NL, NT = cfg.R, cfg.NL, cfg.nt
    assert NL <= 2
    LDS_BYTES = (max(LA, F2S + 4 * 12288) if NL else LA) if cfg.wotail else LA + NL * 4 * 6144
    assert LDS_BYTES <= 163840, LDS_BYTES
    sW = "s3"
    sAlive, sNval = "s14", "s15"
    T0, T1 = "s30", "s31"
    srdK, srdV, srdW, srdO, srdG, srdU, srdD, srdT = 32, 36, 40, 44, 48, 52, 76, 80
    sH, sX, sB, sHalf, sU = "s56", "s57", "s58", "s59", "s60"
    sOff, sStr, sI, sT, sT2, sT3 = "s61", "s62", "s63", "s64", "s65", "s66"
    sOnes, sPermLo, sFirst = "s67", "s68", "s24"
    sSpin, sC0 = "s74", "s75"
    sCj = "s100"
    def srd(i): return f"s[{i}:{i+3}]"
    nst = [0]; names = []
    def stamp(name=None, sets="main"):
        if cfg.diag and cfg.diag in sets.split(","):
            i = 84 + 2 * nst[0]; nst[0] += 1
            assert i <= 98, name
            names.append(name)
            a(f"  s_memrealtime s[{i}:{i+1}]")
    slots = {}
    def restamp(name, sets):
        if cfg.diag and cfg.diag in sets.split(","):
            if name not in slots:
                slots[name] = 84 + 2 * nst[0]; nst[0] += 1; names.append(name)
                assert slots[name] <= 98
            i = slots[name]
            a(f"  s_memrealtime s[{i}:{i+1}]")
    vTid, vLane, vKV = 0, 1, 2
    vHf, vCc, vG, vC = 4, 5, 6, 7
    RING = 160
    def Kr(s, j): return RING + 24 * s + 4 * j
    def Vr(s, j): return RING + 24 * s + 12 + 4 * j
    ACC, Q, vM, vL, TKR, vTKo = 136, 124, 122, 123, 118, 116

    def mk_srd(i, lo, size):
        a(f"  s_mov_b32 s{i}, s{lo}")
        a(f"  s_mov_b32 s{i+1}, s{lo+1}")
        a(f"  s_mov_b32 s{i+2}, {size}")
        a(f"  s_mov_b32 s{i+3}, 0x20000")
    def dpp(op, v, ctrl): a(f"  {op} v{v}, v{v}, v{v} {ctrl} row_mask:0xf bank_mask:0xf")
    def allreduce64(v, t, op):
        for n in (1, 2, 4, 8): dpp(op, v, f"row_ror:{n}")
        for sw in ("16", "32"):
            a(f"  v_mov_b32 v{t}, v{v}")
            a(f"  v_permlane{sw}_swap_b32 v{v}, v{t}")
            a(f"  {op} v{v}, v{v}, v{t}")
    def reduce_hi(regs, tmps, rors=(8,)):
        for n in rors:
            for r in regs: dpp("v_add_f32", r, f"row_ror:{n}")
        for sw in ("16", "32"):
            for r, t in zip(regs, tmps): a(f"  v_mov_b32 v{t}, v{r}")
            for r, t in zip(regs, tmps): a(f"  v_permlane{sw}_swap_b32 v{r}, v{t}")
            for r, t in zip(regs, tmps): a(f"  v_add_f32 v{r}, v{r}, v{t}")
    def bf16round(dst, src):
        a(f"  v_cvt_pk_bf16_f32 v{dst}, v{src}, v{src}")
        a(f"  v_lshlrev_b32 v{dst}, 16, v{dst}")
    def check_tags(bases, vflag):
        first = True
        for r in bases:
            a(f"  v_xor_b32 v{vflag if first else vflag+1}, {T0}, v{r+1}")
            if not first: a(f"  v_or_b32 v{vflag}, v{vflag}, v{vflag+1}")
            first = False
            a(f"  v_xor_b32 v{vflag+1}, {T1}, v{r+3}")
            a(f"  v_or_b32 v{vflag}, v{vflag}, v{vflag+1}")
        a(f"  v_cmp_ne_u32 vcc, 0, v{vflag}")
    def spin_guard(sleep=0):
        a(f"  s_add_u32 {sSpin}, {sSpin}, 1")
        a(f"  s_cmp_gt_u32 {sSpin}, 100000")
        a("  s_cbranch_scc1 L_end")
        if sleep: a(f"  s_sleep {sleep}")
    def pipelined_poll(tag, issue, n, setA, setB, setC, bases, vflag, first_issued):
        if not first_issued: issue(setA)
        a(f"  s_sleep {cfg.ppsleep}")
        a.label(f"L_pp{tag}")
        issue(setB)
        a(f"  s_waitcnt vmcnt({n})")
        check_tags([setA + o for o in bases], vflag)
        a(f"  s_cbranch_vccnz L_pp{tag}_b")
        for o in bases:
            a(f"  v_mov_b32 v{setC+o}, v{setA+o}")
            a(f"  v_mov_b32 v{setC+o+2}, v{setA+o+2}")
        a(f"  s_branch L_pp{tag}_ok")
        a.label(f"L_pp{tag}_b")
        spin_guard()
        issue(setA)
        a(f"  s_waitcnt vmcnt({n})")
        check_tags([setB + o for o in bases], vflag)
        a(f"  s_cbranch_vccnz L_pp{tag}")
        for o in bases:
            a(f"  v_mov_b32 v{setC+o}, v{setB+o}")
            a(f"  v_mov_b32 v{setC+o+2}, v{setB+o+2}")
        a.label(f"L_pp{tag}_ok")
    def select4(dst, r0, r1, r2, r3, masks):
        a(f"  v_cndmask_b32 v{dst}, v{r0}, v{r1}, {masks[0]}")
        a(f"  v_cndmask_b32 v{dst}, v{dst}, v{r2}, {masks[1]}")
        a(f"  v_cndmask_b32 v{dst}, v{dst}, v{r3}, {masks[2]}")
    def quarter_masks(vsel, masks):
        for i, m in enumerate(masks): a(f"  v_cmp_eq_u32 {m}, {i+1}, v{vsel}")

    def layernorm(vx, tb):
        d = [tb + 10 + j for j in range(10)]
        acc, t, mean, mbf, r = tb + 20, tb + 21, tb + 22, tb + 23, tb + 24
        a(f"  v_mov_b32 v{acc}, 0")
        for j in range(5): a(f"  v_dot2c_f32_bf16 v{acc}, {sOnes}, v{vx+j}")
        for j in range(5):
            a(f"  v_lshlrev_b32 v{tb+2*j}, 16, v{vx+j}")
            a(f"  v_and_b32 v{tb+2*j+1}, 0xffff0000, v{vx+j}")
        allreduce64(acc, t, "v_add_f32")
        a(f"  v_mul_f32 v{mean}, {f32(1.0/640)}, v{acc}")
        bf16round(mbf, mean)
        a(f"  v_mov_b32 v{acc}, 0")
        for j in range(10): a(f"  v_sub_f32 v{d[j]}, v{tb+j}, v{mean}")
        for j in range(10): a(f"  v_fmac_f32 v{acc}, v{d[j]}, v{d[j]}")
        for j in range(10): a(f"  v_sub_f32 v{d[j]}, v{tb+j}, v{mbf}")
        allreduce64(acc, t, "v_add_f32")
        a(f"  v_mul_f32 v{acc}, {f32(1.0/640)}, v{acc}")
        bf16round(acc, acc)
        a(f"  v_add_f32 v{acc}, {f32(1e-5)}, v{acc}")
        bf16round(acc, acc)
        a(f"  v_sqrt_f32 v{acc}, v{acc}")
        bf16round(acc, acc)
        a(f"  v_rcp_f32 v{r}, v{acc}")
        for j in range(5): a(f"  v_cvt_pk_bf16_f32 v{tb+j}, v{d[2*j]}, v{d[2*j+1]}")
        for j in range(5):
            a(f"  v_lshlrev_b32 v{d[2*j]}, 16, v{tb+j}")
            a(f"  v_and_b32 v{d[2*j+1]}, 0xffff0000, v{tb+j}")
        for j in range(10): a(f"  v_mul_f32 v{d[j]}, v{d[j]}, v{r}")
        for j in range(5): a(f"  v_cvt_pk_bf16_f32 v{tb+j}, v{d[2*j]}, v{d[2*j+1]}")
        a(f"  s_mul_i32 {sT}, {sW}, {XS}")
        a(f"  v_lshl_add_u32 v{t}, v{vLane}, 2, {sT}")
        for j in range(5): a(f"  ds_write_b32 v{t}, v{tb+j} offset:{XN + j*256}")

    hdr = [f"; @launch grid=(256,1,1) block=(320,1,1) lds={LDS_BYTES}"]
    a('.amdgcn_target "amdgcn-amd-amdhsa--gfx950"')
    a(".text")
    a(f".globl {KN}")
    a(".p2align 8")
    a(f".type {KN},@function")
    a.label(KN)
    a("  s_cmp_ge_u32 s2, 256")
    a("  s_cbranch_scc1 L_end")
    if cfg.diag:
        for i in range(84, 100): a(f"  s_mov_b32 s{i}, 0")
    stamp("start", "main,pro,tail,ffn,tail2,tail3")
    a("  s_load_dwordx8 s[4:11], s[0:1], 0")
    a("  s_load_dwordx2 s[12:13], s[0:1], 32")
    a("  s_load_dwordx8 s[16:23], s[0:1], 48")
    a("  s_load_dwordx4 s[24:27], s[0:1], 80")
    a(f"  v_lshrrev_b32 v3, 6, v{vTid}")
    a(f"  v_and_b32 v{vLane}, 63, v{vTid}")
    a(f"  v_readfirstlane_b32 {sW}, v3")
    a(f"  s_mov_b32 {sSpin}, 0")
    a(f"  s_mov_b32 {sOnes}, 0x3f803f80")
    a(f"  s_mov_b32 {sPermLo}, 0x05040100")
    a(f"  s_lshr_b32 {sH}, s2, 3")
    a(f"  s_and_b32 {sX}, s2, 7")
    a(f"  v_lshrrev_b32 v{vHf}, 5, v{vLane}")
    a(f"  v_and_b32 v{vCc}, 31, v{vLane}")
    a(f"  v_lshrrev_b32 v{vG}, 3, v{vLane}")
    a(f"  v_and_b32 v{vC}, 7, v{vLane}")
    if cfg.match == 2:
        a(f"  s_and_b32 {sT}, {sH}, 1")
        a(f"  s_lshl_b32 {sT}, {sT}, 1")
        a(f"  s_add_u32 {sT}, {sT}, 3")
        a(f"  s_and_b32 {sHalf}, {sX}, 1")
        a(f"  s_mul_i32 {sT}, {sT}, {sHalf}")
        a(f"  s_xor_b32 {sT}, {sT}, {sX}")
        a(f"  s_lshr_b32 {sB}, {sT}, 1")
    else:
        a(f"  s_lshr_b32 {sB}, {sX}, 1")
        a(f"  s_and_b32 {sHalf}, {sX}, 1")
    a(f"  s_lshl_b32 {sU}, {sB}, 1")
    a(f"  s_add_u32 {sU}, {sU}, {sHalf}")
    a(f"  s_cmp_eq_u32 {sHalf}, 0")
    a(f"  s_cselect_b32 {sCj}, {sB}, 8")
    a(f"  s_cmp_eq_u32 {sU}, 7")
    a(f"  s_cselect_b32 {sCj}, 4, {sCj}")
    a(f"  s_cmp_eq_u32 {sW}, 4")
    a("  s_cbranch_scc1 L_svc")

    vXo, vWq = 8, 9
    a(f"  v_mul_u32_u24 v{vKV}, 384, v{vG}")
    a(f"  v_lshl_add_u32 v{vKV}, v{vC}, 4, v{vKV}")
    a(f"  v_mul_u32_u24 v{vWq}, 12288, v{vG}")
    a(f"  v_lshl_add_u32 v{vWq}, v{vC}, 4, v{vWq}")
    a(f"  s_mul_i32 {sT}, {sW}, 1280")
    a(f"  v_lshl_add_u32 v{vXo}, v{vLane}, 2, {sT}")
    a("  s_waitcnt lgkmcnt(0)")
    stamp("karg", "pro")
    a("  s_load_dwordx2 s[28:29], s[26:27], 0")
    VX = 11
    for j in range(5):
        a(f"  global_load_dword v{VX+j}, v{vXo}, s[4:5] offset:{j*256}")
    mk_srd(srdW, 10, 7864320)
    a(f"  s_cmp_ge_u32 {sU}, 6")
    a("  s_cbranch_scc1 L_nowq")
    a(f"  s_mul_i32 {sT}, {sHalf}, 320")
    a(f"  s_mul_i32 {sT2}, {sW}, 80")
    a(f"  s_add_u32 {sT}, {sT}, {sT2}")
    a(f"  s_mul_i32 {sT}, {sT}, 12288")
    a(f"  s_mul_i32 {sT3}, {sH}, 384")
    a(f"  s_add_u32 {sT}, {sT}, {sT3}")
    a(f"  s_lshl_b32 {sT3}, {sB}, 7")
    a(f"  s_add_u32 {sT}, {sT}, {sT3}")
    a(f"  s_lshl_b32 {sT2}, {sT2}, 7")
    a(f"  s_add_u32 {sT2}, {sT2}, {WQS}")
    for i in range(10):
        a(f"  s_add_u32 m0, {sT2}, {1024*i}")
        a(f"  buffer_load_dwordx4 v{vWq}, {srd(srdW)}, {sT} offen {NT} lds")
        if i < 9: a(f"  s_add_u32 {sT}, {sT}, {8*12288}")
    a.label("L_nowq")
    mk_srd(srdK, 6, 201326592)
    mk_srd(srdV, 8, 201326592)
    mk_srd(srdO, 12, 7864320)
    CH = 7 if cfg.dyn else 6
    nb = 1 if cfg.dyn else 0
    if cfg.dyn:
        a(f"  s_lshl_b32 {sT}, {sH}, 2")
        a(f"  s_add_u32 {sT}, {sT}, {sB}")
        if cfg.dyn == 1:
            a(f"  s_lshl_b32 {sT}, {sT}, 2")
            a(f"  s_add_u32 {sT}, {sT}, {sW}")
            a(f"  s_lshl_b32 {sT}, {sT}, 7")
        else:
            a(f"  s_lshl_b32 {sT}, {sT}, 9")
        a(f"  v_mov_b32 v{vTKo}, 0x7ffffff0")
        a(f"  v_mov_b32 v3, {sT}")
        a(f"  v_cmp_eq_u32 vcc, 0, v{vLane}")
        a(f"  v_cndmask_b32 v{vTKo}, v{vTKo}, v3, vcc")
        a(f"  s_add_u32 s{srdT}, s26, {TK}")
        a(f"  s_addc_u32 s{srdT+1}, s27, 0")
        a(f"  s_mov_b32 s{srdT+2}, 65536")
        a(f"  s_mov_b32 s{srdT+3}, 0x20000")
        a(f"  buffer_load_dword v117, v{vTKo}, {srd(srdT)}, 0 offen sc1")
        a(f"  s_mov_b32 s{srdT+2}, 0")
    a(f"  s_lshl_b32 {sT}, {sB}, 5")
    a(f"  s_add_u32 {sT}, {sT}, {sH}")
    a(f"  s_mul_i32 {sOff}, {sT}, 1572864")
    sPool = "s69"
    if cfg.dyn >= 2:
        a(f"  s_add_u32 {sPool}, {sOff}, {8*cfg.S*3072}")
        a(f"  s_lshl_b32 {sT}, {sHalf}, 2")
        a(f"  s_add_u32 {sT}, {sT}, {sW}")
        a(f"  s_mul_i32 {sT}, {sT}, {cfg.S*3072}")
        a(f"  s_add_u32 {sOff}, {sOff}, {sT}")
        a(f"  s_mov_b32 {sStr}, 3072")
    elif not cfg.dyn:
        a(f"  s_mul_i32 {sT}, {sHalf}, 786432")
        a(f"  s_add_u32 {sOff}, {sOff}, {sT}")
        a(f"  s_mul_i32 {sT}, {sW}, 196608")
        a(f"  s_add_u32 {sOff}, {sOff}, {sT}")
        a(f"  s_mov_b32 {sStr}, 3072")
    else:
        a(f"  s_mul_i32 {sT}, {sW}, 393216")
        a(f"  s_add_u32 {sOff}, {sOff}, {sT}")
        a(f"  s_mul_i32 {sT}, {sHalf}, {393216-3072}")
        a(f"  s_add_u32 {sOff}, {sOff}, {sT}")
        a(f"  s_mul_i32 {sStr}, {sHalf}, -6144")
        a(f"  s_add_u32 {sStr}, {sStr}, 3072")
    def issueT(s):
        if cfg.dyn:
            a(f"  v_mov_b32 v{TKR+s}, 1")
            a(f"  buffer_atomic_add v{TKR+s}, v{vTKo}, {srd(srdT)}, 0 offen sc0 sc1")
    def issueK(s):
        for j in range(3):
            a(f"  buffer_load_dwordx4 v[{Kr(s,j)}:{Kr(s,j)+3}], v{vKV}, {srd(srdK)}, {sOff} offen offset:{128*j} {NT}")
    def issueV(s):
        for j in range(3):
            a(f"  buffer_load_dwordx4 v[{Vr(s,j)}:{Vr(s,j)+3}], v{vKV}, {srd(srdV)}, {sOff} offen offset:{128*j} {NT}")
        a(f"  s_add_u32 {sOff}, {sOff}, {sStr}")
    sLb = "s25"
    def issueL(k):
        for srdx, o in ((srdK, 0), (srdV, 3072)):
            for j in range(3):
                a(f"  s_add_u32 m0, {sLb}, {6144*k + o + 896*j}")
                a(f"  buffer_load_dwordx4 v{vKV}, {srd(srdx)}, {sOff} offen offset:{128*j} {NT} lds")
        a(f"  s_add_u32 {sOff}, {sOff}, {sStr}")
    NA = cfg.NA
    for s in range(NA):
        issueT(s); issueK(s); issueV(s)
    stamp("issued", "main")
    a(f"  s_cmp_ge_u32 {sU}, 6")
    a("  s_cbranch_scc1 L_xw2")
    a(f"  s_waitcnt vmcnt({10 + nb + CH*NA})")
    a("  s_branch L_xw3")
    a.label("L_xw2")
    a(f"  s_waitcnt vmcnt({nb + CH*NA})")
    a.label("L_xw3")
    stamp("xarr", "pro")
    layernorm(VX, 16)
    vQa, vQb, vQp = 10, 44, 45
    a(f"  v_lshrrev_b32 v3, 4, v{vLane}")
    a(f"  v_and_b32 v47, 3, v{vLane}")
    a(f"  v_mul_u32_u24 v{vQa}, {XS}, v47")
    a(f"  v_lshl_add_u32 v{vQa}, v3, 4, v{vQa}")
    a(f"  s_mul_i32 {sT}, {sHalf}, 640")
    a(f"  v_add_u32 v{vQa}, {sT}, v{vQa}")
    a(f"  v_bfe_u32 v50, v{vLane}, 2, 2")
    a(f"  v_lshl_add_u32 v48, v3, 3, v50")
    a(f"  v_lshlrev_b32 v48, 7, v48")
    a(f"  v_lshl_add_u32 v48, v47, 3, v48")
    a(f"  s_lshl_b32 {sT}, {sW}, 5")
    a(f"  s_add_u32 {sT}, {sT}, {WQS}")
    a(f"  v_add_u32 v{vQb}, {sT}, v48")
    a(f"  s_mul_i32 {sT}, {sH}, 6")
    a(f"  s_add_u32 {sT}, {sT}, {sU}")
    a(f"  s_lshl_b32 {sT}, {sT}, 11")
    a(f"  s_lshl_b32 {sT2}, {sW}, 7")
    a(f"  s_add_u32 {sT}, {sT}, {sT2}")
    a(f"  s_add_u32 {sT}, {sT}, {QP3}")
    a(f"  v_lshlrev_b32 v{vQp}, 9, v3")
    a(f"  v_bfe_u32 v49, v{vLane}, 1, 3")
    a(f"  v_lshl_add_u32 v{vQp}, v49, 4, v{vQp}")
    a(f"  v_add_u32 v{vQp}, {sT}, v{vQp}")
    MQ = ("s[72:73]", "s[70:71]", "s[24:25]")
    quarter_masks(3, MQ)
    a(f"  s_waitcnt vmcnt({CH*NA}) lgkmcnt(0)")
    if cfg.dyn:
        a(f"  v_readfirstlane_b32 {sC0}, v117")
    if cfg.dyn == 3:
        a(f"  v_mov_b32 v52, 0")
        a(f"  v_lshlrev_b32 v53, 2, v{vLane}")
        a(f"  ds_write_b32 v53, v52 offset:{TQ}")
        a("  s_waitcnt lgkmcnt(0)")
    a(f"  s_add_u32 {T0}, s28, 1")
    a(f"  s_add_u32 {T1}, s29, 1")
    a("  s_barrier")
    stamp("bar1", "pro")
    a(f"  s_cmp_ge_u32 {sU}, 6")
    a("  s_cbranch_scc1 L_noq")
    QD0, QD1 = 96, 100
    for e in range(8): a(f"  v_mov_b32 v{QD0+e}, 0")
    def breg(st):
        if st < 5: return 76 + 4*st
        return (104, 108, 112, 36, 40)[st-5]
    def areg(st): return (16 + 4*st) if st < 5 else (56 + 4*(st-5))
    for st in range(10):
        a(f"  ds_read_b128 v[{areg(st)}:{areg(st)+3}], v{vQa} offset:{XN + 64*st}")
        a(f"  ds_read_b64_tr_b16 v[{breg(st)}:{breg(st)+1}], v{vQb} offset:{4096*st}")
        a(f"  ds_read_b64_tr_b16 v[{breg(st)+2}:{breg(st)+3}], v{vQb} offset:{4096*st + 512}")
    for st in range(10):
        if st % 2 == 0: a(f"  s_waitcnt lgkmcnt({min(15, 3*(10-st-2))})") if st < 8 else a("  s_waitcnt lgkmcnt(0)")
        D = QD0 if st % 2 == 0 else QD1
        a(f"  v_mfma_f32_16x16x32_bf16 v[{D}:{D+3}], v[{areg(st)}:{areg(st)+3}], v[{breg(st)}:{breg(st)+3}], v[{D}:{D+3}]")
    for e in range(4): a(f"  v_add_f32 v{QD0+e}, v{QD0+e}, v{QD1+e}")
    GP = 48
    a(f"  v_mov_b32 v{GP+1}, {T0}")
    a(f"  v_mov_b32 v{GP+3}, {T1}")
    select4(GP, QD0, QD0+1, QD0+2, QD0+3, MQ)
    a(f"  v_mov_b32 v{GP+2}, v{GP} quad_perm:[1,0,3,2] row_mask:0xf bank_mask:0xf")
    a("  s_mov_b32 exec_lo, 0x55555555")
    a("  s_mov_b32 exec_hi, 0x55555555")
    a(f"  global_store_dwordx4 v{vQp}, v[{GP}:{GP+3}], s[26:27] {cfg.qst}")
    a("  s_mov_b64 exec, -1")
    a.label("L_noq")
    stamp("qpub", "main,pro")
    mk_srd(srdG, 16, 1966080)
    mk_srd(srdU, 18, 1966080)
    mk_srd(srdD, 20, 1966080)
    vWo = 41
    a(f"  s_cmp_ge_u32 {sCj}, 8")
    a("  s_cbranch_scc1 L_nowo")
    def wo_stage():
        a(f"  v_lshrrev_b32 v3, 4, v{vLane}")
        a(f"  v_mul_u32_u24 v{vWo}, 1280, v3")
        a(f"  v_and_b32 v42, 15, v{vLane}")
        a(f"  v_lshl_add_u32 v{vWo}, v42, 4, v{vWo}")
        a(f"  s_mul_i32 {sT}, {sH}, 192")
        a(f"  s_mul_i32 {sT2}, {sW}, 48")
        a(f"  s_add_u32 {sT}, {sT}, {sT2}")
        a(f"  s_mul_i32 {sT}, {sT}, 1280")
        a(f"  s_lshl_b32 {sT3}, {sCj}, 8")
        a(f"  s_add_u32 {sT}, {sT}, {sT3}")
        a(f"  s_mul_i32 {sT2}, {sW}, {48*256}")
        a(f"  s_add_u32 {sT2}, {sT2}, {WO}")
        for i in range(12):
            a(f"  s_add_u32 m0, {sT2}, {1024*i}")
            a(f"  buffer_load_dwordx4 v{vWo}, {srd(srdO)}, {sT} offen {NT} lds")
            if i < 11: a(f"  s_add_u32 {sT}, {sT}, {4*1280}")
    if cfg.wotail:
        a(f"  v_lshrrev_b32 v3, 4, v{vLane}")
        a(f"  v_mul_u32_u24 v{vWo}, 1280, v3")
        a(f"  v_and_b32 v42, 15, v{vLane}")
        a(f"  v_lshl_add_u32 v{vWo}, v42, 4, v{vWo}")
        a(f"  s_lshl_b32 {sT3}, {sCj}, 8")
    else:
        wo_stage()
    if not cfg.noffn:
        a(f"  s_cmp_ge_u32 {sH}, 24")
        a("  s_cbranch_scc1 L_stg_done")
        a(f"  s_lshl_b32 {sT}, {sH}, 6")
        a(f"  s_lshl_b32 {sT2}, {sW}, 4")
        a(f"  s_add_u32 {sT}, {sT}, {sT2}")
        a(f"  s_mul_i32 {sT}, {sT}, 1280")
        a(f"  s_add_u32 {sT}, {sT}, {sT3}")
        a(f"  s_lshl_b32 {sT2}, {sW}, 12")
        a(f"  s_add_u32 {sT2}, {sT2}, {F2S}")
        for i in range(4):
            a(f"  s_add_u32 m0, {sT2}, {1024*i}")
            a(f"  buffer_load_dwordx4 v{vWo}, {srd(srdD)}, {sT} offen {NT} lds")
            if i < 3: a(f"  s_add_u32 {sT}, {sT}, {4*1280}")
    a("  s_branch L_stg_done")
    a.label("L_nowo")
    if not cfg.noffn:
        a(f"  s_mul_i32 {sT}, {sH}, 3")
        a(f"  s_add_u32 {sT}, {sT}, {sB}")
        a(f"  s_lshr_b32 {sT2}, {sT}, 2")
        a(f"  s_and_b32 {sT}, {sT}, 3")
        a(f"  s_mul_i32 {sT}, {sT}, 160")
        a(f"  s_mul_i32 {sT3}, {sW}, 40")
        a(f"  s_add_u32 {sT}, {sT}, {sT3}")
        a(f"  s_mul_i32 {sT}, {sT}, 3072")
        a(f"  s_lshl_b32 {sT2}, {sT2}, 7")
        a(f"  s_add_u32 {sT}, {sT}, {sT2}")
        a(f"  s_lshl_b32 {sT2}, {sT3}, 7")
        a(f"  s_add_u32 {sT2}, {sT2}, {F1S}")
        a(f"  v_mul_u32_u24 v{vWo}, 3072, v{vG}")
        a(f"  v_lshl_add_u32 v{vWo}, v{vC}, 4, v{vWo}")
        for i in range(5):
            a(f"  s_add_u32 m0, {sT2}, {1024*i}")
            a(f"  buffer_load_dwordx4 v{vWo}, {srd(srdG)}, {sT} offen {NT} lds")
            a(f"  s_add_u32 m0, {sT2}, {20480 + 1024*i}")
            a(f"  buffer_load_dwordx4 v{vWo}, {srd(srdU)}, {sT} offen {NT} lds")
            if i < 4: a(f"  s_add_u32 {sT}, {sT}, {8*3072}")
    a.label("L_stg_done")
    for s in range(NA, R):
        issueT(s); issueK(s); issueV(s)
    sLb_set = True
    if NL:
        a(f"  s_mul_i32 {sLb}, {sW}, {12288 if cfg.wotail else NL*6144}")
        if cfg.wotail:
            a(f"  s_cmp_lt_u32 {sCj}, 8")
            a(f"  s_mov_b32 {sT}, {F2S}")
            a(f"  s_cselect_b32 {sT}, {WO}, {sT}")
            a(f"  s_add_u32 {sLb}, {sLb}, {sT}")
        else:
            a(f"  s_add_u32 {sLb}, {sLb}, {LA}")
    for k in range(NL): issueL(k)
    pF, pFH, pMr, pMh, pMs, vH1, vH2, vTr, vP0, vSa, vOi, vXv, pGV, pOB1, pOB2, pAF = 56, 59, 60, 61, 62, 63, 64, 65, 66, 68, 69, 70, 71, 72, 73, 74
    a(f"  v_lshrrev_b32 v8, 4, v{vLane}")
    a(f"  v_mul_u32_u24 v9, 6, v8")
    a(f"  s_mul_i32 {sT}, {sW}, 800")
    a(f"  s_add_u32 {sT}, {sT}, {PART}")
    a(f"  v_lshl_add_u32 v10, v{vC}, 5, {sT}")
    for k in range(3):
        a(f"  v_add_u32 v11, {2*k}, v9")
        a(f"  v_lshrrev_b32 v12, 3, v11")
        a(f"  v_and_b32 v11, 7, v11")
        a(f"  v_lshlrev_b32 v12, 8, v12")
        a(f"  v_lshl_add_u32 v12, v11, 2, v12")
        a(f"  v_add_u32 v{pF+k}, v12, v10")
    a(f"  v_mov_b32 v{pFH}, {sT}")
    a(f"  v_lshlrev_b32 v{pMr}, 3, v{vTid}")
    a(f"  v_mov_b32 v{pMh}, {PART+768}")
    a(f"  s_lshl_b32 {sT}, {sH}, 3")
    a(f"  s_add_u32 {sT2}, {sT}, {sU}")
    a(f"  s_lshl_b32 {sT2}, {sT2}, 11")
    a(f"  s_add_u32 {sT2}, {sT2}, {AP}")
    a(f"  v_lshl_add_u32 v{pMs}, v{vTid}, 4, {sT2}")
    a(f"  s_lshl_b32 {sT2}, {sW}, 1")
    a(f"  s_add_u32 {sT}, {sT}, {sT2}")
    a(f"  s_lshl_b32 {sT}, {sT}, 11")
    a(f"  s_add_u32 {sT}, {sT}, {AP}")
    a(f"  v_lshlrev_b32 v9, 11, v{vHf}")
    a(f"  v_add_u32 v9, {sT}, v9")
    a(f"  v_lshl_add_u32 v{vH1}, v{vCc}, 4, v9")
    a(f"  v_add_u32 v{vH2}, {96*16}, v9")
    a(f"  v_bfe_u32 v9, v{vLane}, 2, 2")
    a(f"  v_lshl_add_u32 v10, v8, 3, v9")
    a(f"  v_lshlrev_b32 v10, 8, v10")
    a(f"  v_and_b32 v11, 3, v{vLane}")
    a(f"  v_lshl_add_u32 v10, v11, 3, v10")
    a(f"  s_lshl_b32 {sT}, {sW}, 6")
    a(f"  s_add_u32 {sT}, {sT}, {WO}")
    a(f"  v_add_u32 v{vTr}, {sT}, v10")
    a(f"  v_lshlrev_b32 v10, 12, v9")
    a(f"  v_and_b32 v12, 1, v8")
    a(f"  v_lshl_add_u32 v10, v12, 6, v10")
    a(f"  v_lshl_add_u32 v10, v11, 4, v10")
    a(f"  s_and_b32 {sT3}, {sCj}, 7")
    a(f"  s_lshl_b32 {sT}, {sT3}, 5")
    a(f"  s_lshl_b32 {sT2}, {sW}, 3")
    a(f"  s_add_u32 {sT}, {sT}, {sT2}")
    a(f"  s_lshl_b32 {sT}, {sT}, 12")
    a(f"  s_lshl_b32 {sT2}, {sH}, 7")
    a(f"  s_add_u32 {sT}, {sT}, {sT2}")
    a(f"  s_add_u32 {sT}, {sT}, {SP3}")
    a(f"  v_add_u32 v{vP0}, {sT}, v10")
    a(f"  v_add_u32 v{vP0+1}, {4*4096}, v{vP0}")
    a(f"  s_lshl_b32 {sT}, {sT3}, 5")
    a(f"  s_add_u32 {sT}, {sT}, {sH}")
    a(f"  s_lshl_b32 {sT}, {sT}, 12")
    a(f"  s_add_u32 {sT}, {sT}, {SP3}")
    a(f"  v_lshl_add_u32 v{vSa}, v{vLane}, 4, {sT}")
    a(f"  v_bfe_u32 v9, v{vLane}, 2, 1")
    a(f"  v_and_b32 v10, 1, v{vG}")
    a(f"  v_lshl_add_u32 v9, v9, 1, v10")
    a(f"  v_lshlrev_b32 v{pGV}, 4, v11")
    a(f"  v_lshl_add_u32 v{pGV}, v9, 2, v{pGV}")
    a(f"  v_mul_u32_u24 v9, 640, v9")
    a(f"  s_min_u32 {sT3}, {sT3}, 4")
    a(f"  s_lshl_b32 {sT}, {sT3}, 7")
    a(f"  s_lshl_b32 {sT2}, {sH}, 2")
    a(f"  s_add_u32 {sT}, {sT}, {sT2}")
    a(f"  v_add3_u32 v9, v9, v11, {sT}")
    a(f"  v_lshlrev_b32 v{vOi}, 1, v9")
    a(f"  global_load_ushort v{vXv}, v{vOi}, s[4:5]")
    a(f"  s_mul_i32 {sT}, {sW}, {OS}")
    a(f"  v_lshl_add_u32 v{pOB1}, v{vLane}, 2, {sT}")
    a(f"  v_lshl_add_u32 v{pOB2}, v{vCc}, 2, {sT}")
    a(f"  v_mul_u32_u24 v{pAF}, {OS}, v11")
    a(f"  v_lshl_add_u32 v{pAF}, v8, 4, v{pAF}")
    a(f"  v_lshlrev_b32 v3, 4, v{vC}")
    for t in range(24): a(f"  v_mov_b32 v{ACC+t}, 0")
    a(f"  v_mov_b32 v{vM}, 0xff800000")
    a(f"  v_mov_b32 v{vL}, 0")
    a(f"  s_waitcnt vmcnt({CH*(R-NA) + 6*NL + 1})")
    a("  s_barrier")
    for j in range(3):
        a(f"  ds_read_b128 v[{Q+4*j}:{Q+4*j+3}], v3 offset:{QB + 128*j}")
    LIM = (cfg.S if cfg.dyn else 64) - R - NL
    if cfg.dyn:
        P = 128 - 2 * cfg.S if cfg.dyn == 1 else 512 - 8 * cfg.S
        PG = P // 4
        assert cfg.S - NL >= 2 * R
        assert PG + 2 * R < 64
    a(f"  s_mov_b32 {sI}, 0")
    a(f"  s_mov_b32 {sNval}, {R}")
    a(f"  s_mov_b32 {sAlive}, 1")
    if NL: a(f"  s_mov_b32 {sFirst}, 1")
    if cfg.dyn == 3: a("  s_mov_b32 s101, 0")
    a("  s_waitcnt lgkmcnt(0)")
    stamp("qready", "main,pro")

    t0, t1, t2, sS, mn, al, ee, pl, ph = 100, 101, 102, 103, 104, 105, 106, 107, 108
    def scores(K0):
        for i in range(4):
            for j in range(3):
                a(f"  v_dot2c_f32_bf16 v{t0+j}, v{K0+4*j+i}, v{Q+4*j+i}")
    def softmax(tag):
        a(f"  v_add_f32 v{t0}, v{t0}, v{t1}")
        a(f"  v_add_f32 v{t0}, v{t0}, v{t2}")
        dpp("v_add_f32", t0, "quad_perm:[1,0,3,2]")
        dpp("v_add_f32", t0, "quad_perm:[2,3,0,1]")
        dpp("v_add_f32", t0, "row_half_mirror")
        bf16round(t1, t0)
        a(f"  v_mul_f32 v{t1}, {SCALE}, v{t1}")
        bf16round(sS, t1)
        if cfg.wmax:
            a(f"  v_max_f32 v{mn}, v{sS}, v{sS} row_ror:8 row_mask:0xf bank_mask:0xf")
            for sw in ("16", "32"):
                a(f"  v_mov_b32 v{al}, v{mn}")
                a(f"  v_permlane{sw}_swap_b32 v{mn}, v{al}")
                a(f"  v_max_f32 v{mn}, v{mn}, v{al}")
            a(f"  v_cmp_gt_f32 vcc, v{mn}, v{vM}")
            a(f"  v_max_f32 v{mn}, v{vM}, v{mn}")
        else:
            a(f"  v_max_f32 v{mn}, v{vM}, v{sS}")
            a(f"  v_cmp_gt_f32 vcc, v{sS}, v{vM}")
        a(f"  v_sub_f32 v{al}, v{vM}, v{mn}")
        a(f"  v_sub_f32 v{ee}, v{sS}, v{mn}")
        a(f"  v_mul_f32 v{al}, {LOG2E}, v{al}")
        a(f"  v_mul_f32 v{ee}, {LOG2E}, v{ee}")
        a(f"  v_exp_f32 v{al}, v{al}")
        a(f"  v_exp_f32 v{ee}, v{ee}")
        a(f"  v_mov_b32 v{vM}, v{mn}")
        a(f"  v_fma_f32 v{vL}, v{vL}, v{al}, v{ee}")
        if not cfg.pf32:
            a(f"  v_cvt_pk_bf16_f32 v{pl}, v{ee}, 0")
            a(f"  v_cvt_pk_bf16_f32 v{ph}, 0, v{ee}")
        a(f"  s_cbranch_vccz L_nors{tag}")
        for t in range(24): a(f"  v_mul_f32 v{ACC+t}, v{ACC+t}, v{al}")
        a.label(f"L_nors{tag}")
    def pv(V0):
        if cfg.pf32:
            tp = (110, 112, 114)
            items = [(j, i) for j in range(3) for i in range(4)]
            for n, (j, i) in enumerate(items):
                t = tp[n % 3]
                a(f"  v_lshlrev_b32 v{t}, 16, v{V0+4*j+i}")
                a(f"  v_and_b32 v{t+1}, 0xffff0000, v{V0+4*j+i}")
                if n >= 1:
                    jj, ii = items[n-1]; tt = tp[(n-1) % 3]; acc = ACC+8*jj+2*ii
                    a(f"  v_pk_fma_f32 v[{acc}:{acc+1}], v[{tt}:{tt+1}], v[{ee}:{ee+1}], v[{acc}:{acc+1}] op_sel_hi:[1,0,1]")
            jj, ii = items[-1]; tt = tp[11 % 3]; acc = ACC+8*jj+2*ii
            a(f"  v_pk_fma_f32 v[{acc}:{acc+1}], v[{tt}:{tt+1}], v[{ee}:{ee+1}], v[{acc}:{acc+1}] op_sel_hi:[1,0,1]")
            return
        for j in range(3):
            for i in range(4):
                a(f"  v_dot2c_f32_bf16 v{ACC+8*j+2*i}, v{V0+4*j+i}, v{pl}")
                a(f"  v_dot2c_f32_bf16 v{ACC+8*j+2*i+1}, v{V0+4*j+i}, v{ph}")
    def zero_t():
        for t in (t0, t1, t2): a(f"  v_mov_b32 v{t}, 0")
    a.label("L_loop")
    for s in range(R):
        zero_t()
        a(f"  s_waitcnt vmcnt({3 + CH*(R-1)})")
        if cfg.dyn:
            a(f"  v_readfirstlane_b32 {sT}, v{TKR+s}")
        scores(Kr(s, 0))
        if cfg.dyn == 3:
            a(f"  s_cmp_lt_u32 {sI}, {LIM}")
            a(f"  s_cbranch_scc1 L_st{s}")
            a(f"  s_cmp_eq_u32 {sAlive}, 0")
            a(f"  s_cbranch_scc1 L_st{s}")
            a(f"  s_sub_u32 {sT2}, {sI}, {LIM}")
            a(f"  s_lshl_b32 {sT2}, {sT2}, 2")
            a(f"  v_mov_b32 v109, {sT2}")
            a(f"  s_cmp_lg_u32 {sW}, 0")
            a(f"  s_cbranch_scc1 L_rd{s}")
            a(f"  s_sub_u32 {sT}, {sT}, {sC0}")
            a(f"  s_add_u32 {sT2}, {sT}, 1")
            a(f"  s_cmp_lt_u32 {sT}, {PG}")
            a(f"  s_cselect_b32 {sT}, {sT2}, 0xffff")
            a(f"  v_mov_b32 v110, {sT}")
            a(f"  ds_write_b32 v109, v110 offset:{TQ}")
            a(f"  s_branch L_hv{s}")
            a.label(f"L_rd{s}")
            a(f"  ds_read_b32 v110, v109 offset:{TQ}")
            a(f"  s_add_u32 s101, s101, 1")
            a(f"  s_cmp_gt_u32 s101, 0x400000")
            a("  s_cbranch_scc1 L_end")
            a("  s_waitcnt lgkmcnt(0)")
            a(f"  v_readfirstlane_b32 {sT}, v110")
            a(f"  s_cmp_eq_u32 {sT}, 0")
            a(f"  s_cbranch_scc1 L_rd{s}")
            a.label(f"L_hv{s}")
            a(f"  s_lshl_b32 {sT2}, {sT}, 2")
            a(f"  s_add_u32 {sT2}, {sT2}, {sW}")
            a(f"  s_sub_u32 {sT2}, {sT2}, 4")
            a(f"  s_mul_i32 {sT2}, {sT2}, 3072")
            a(f"  s_add_u32 {sOff}, {sT2}, {sPool}")
            a(f"  s_cmp_lg_u32 {sT}, 0xffff")
            a(f"  s_cselect_b32 {sAlive}, 1, 0")
            a.label(f"L_st{s}")
        elif cfg.dyn:
            a(f"  s_sub_u32 {sT}, {sT}, {sC0}")
            if cfg.dyn == 2:
                a(f"  s_mul_i32 {sT2}, {sT}, 3072")
                a(f"  s_add_u32 {sT2}, {sT2}, {sPool}")
            a(f"  s_cmp_lt_u32 {sT}, {P}")
            a(f"  s_cselect_b32 {sT}, {sAlive}, 0")
            a(f"  s_cmp_lt_u32 {sI}, {LIM}")
            a(f"  s_cselect_b32 {sAlive}, 1, {sT}")
            if cfg.dyn == 2:
                a(f"  s_cselect_b32 {sOff}, {sOff}, {sT2}")
        else:
            a(f"  s_cmp_lt_u32 {sI}, {LIM}")
            a(f"  s_cselect_b32 {sAlive}, 1, 0")
        a(f"  s_add_u32 {sNval}, {sNval}, {sAlive}")
        a(f"  s_cmp_eq_u32 {sAlive}, 0")
        a(f"  s_cselect_b32 s{srdK+2}, 0, s{srdK+2}")
        a(f"  s_cselect_b32 s{srdV+2}, 0, s{srdV+2}")
        if cfg.dyn:
            a(f"  s_cmp_ge_u32 {sI}, {LIM - R}")
            a(f"  s_cselect_b32 {sT}, {sAlive}, 0")
            if cfg.dyn == 3:
                a(f"  s_cmp_eq_u32 {sW}, 0")
                a(f"  s_cselect_b32 {sT}, {sT}, 0")
            a(f"  s_lshl_b32 s{srdT+2}, {sT}, 16")
            issueT(s)
        issueK(s)
        softmax(s)
        a(f"  s_waitcnt vmcnt({CH*(R-1) + (4 if cfg.dyn else 3)})")
        pv(Vr(s, 0))
        issueV(s)
        a(f"  s_add_u32 {sI}, {sI}, 1")
        a(f"  s_cmp_lt_u32 {sI}, {sNval}")
        if s < R - 1 or NL:
            a("  s_cbranch_scc0 L_tail")
        else:
            a("  s_cbranch_scc1 L_loop")
    if NL:
        a(f"  s_cmp_eq_u32 {sFirst}, 0")
        a("  s_cbranch_scc1 L_loop")
        LK = 16
        a(f"  s_mov_b32 {sFirst}, 0")
        a(f"  v_lshl_add_u32 v3, v{vLane}, 4, {sLb}")
        a(f"  s_waitcnt vmcnt({CH*R})")
        a(f"  s_mov_b32 {sT2}, 0")
        a.label("L_lds")
        for j in range(6):
            a(f"  ds_read_b128 v[{LK+4*j}:{LK+4*j+3}], v3 offset:{1024*j}")
        zero_t()
        a(f"  v_add_u32 v3, 6144, v3")
        a("  s_waitcnt lgkmcnt(3)")
        scores(LK)
        softmax("L")
        a("  s_waitcnt lgkmcnt(0)")
        pv(LK + 12)
        a(f"  s_add_u32 {sT2}, {sT2}, 1")
        a(f"  s_cmp_lt_u32 {sT2}, {NL}")
        a("  s_cbranch_scc1 L_lds")
        a("  s_branch L_loop")
    a.label("L_tail")
    stamp("loopend", "main,tail,tail2,tail3")

    vGv = 19
    assert cfg.wmax and not cfg.wotail
    tA, tB = 100, 101
    a(f"  v_mov_b32 v{tA}, v{vM}")
    dpp("v_add_f32", vL, "row_ror:8")
    for t in range(12): a(f"  v_permlane32_swap_b32 v{ACC+t}, v{ACC+t+12}")
    a(f"  v_mov_b32 v{tB}, v{vL}")
    a(f"  v_permlane16_swap_b32 v{vL}, v{tB}")
    for t in range(12): a(f"  v_add_f32 v{ACC+t}, v{ACC+t}, v{ACC+t+12}")
    a(f"  v_add_f32 v{vL}, v{vL}, v{tB}")
    for t in range(6): a(f"  v_permlane16_swap_b32 v{ACC+t}, v{ACC+t+6}")
    a(f"  v_mov_b32 v{tB}, v{vL}")
    a(f"  v_permlane32_swap_b32 v{vL}, v{tB}")
    for t in range(6): a(f"  v_add_f32 v{ACC+t}, v{ACC+t}, v{ACC+t+6}")
    a(f"  v_add_f32 v{tB}, v{vL}, v{tB}")
    for t in range(6): dpp("v_add_f32", ACC+t, "row_ror:8")
    for k in range(3):
        a(f"  ds_write_b64 v{pF+k}, v[{ACC+2*k}:{ACC+2*k+1}]")
    a(f"  ds_write_b64 v{pFH}, v[{tA}:{tB}] offset:768")
    a("  s_waitcnt lgkmcnt(0)")
    a("  s_barrier")
    stamp("tbar1", "tail")
    a(f"  s_cmp_ge_u32 {sW}, 2")
    a("  s_cbranch_scc1 L_nomerge")
    MB = 100
    for w2 in range(4):
        a(f"  ds_read_b64 v[{MB+8+2*w2}:{MB+8+2*w2+1}], v{pMh} offset:{800*w2}")
    for w2 in range(4):
        a(f"  ds_read_b64 v[{MB+2*w2}:{MB+2*w2+1}], v{pMr} offset:{PART+800*w2}")
    a(f"  v_cmp_eq_u32 vcc, 96, v{vTid}")
    a(f"  s_mov_b64 s[70:71], vcc")
    a(f"  v_cmp_ge_u32 vcc, 96, v{vTid}")
    a(f"  s_mov_b64 s[72:73], vcc")
    a(f"  v_mov_b32 v77, {T0}")
    a(f"  v_mov_b32 v79, {T1}")
    a("  s_waitcnt lgkmcnt(4)")
    mM = [MB+8+2*w2 for w2 in range(4)]; mL = [x+1 for x in mM]
    a(f"  v_max_f32 v29, v{mM[0]}, v{mM[1]}")
    a(f"  v_max3_f32 v29, v29, v{mM[2]}, v{mM[3]}")
    for w2 in range(4): a(f"  v_sub_f32 v{mM[w2]}, v{mM[w2]}, v29")
    for w2 in range(4): a(f"  v_mul_f32 v{mM[w2]}, {LOG2E}, v{mM[w2]}")
    for w2 in range(4): a(f"  v_exp_f32 v{mM[w2]}, v{mM[w2]}")
    a(f"  v_mul_f32 v30, v{mL[0]}, v{mM[0]}")
    for w2 in range(1, 4): a(f"  v_fmac_f32 v30, v{mL[w2]}, v{mM[w2]}")
    a("  s_waitcnt lgkmcnt(0)")
    a(f"  v_mul_f32 v76, v{MB}, v{mM[0]}")
    a(f"  v_mul_f32 v78, v{MB+1}, v{mM[0]}")
    for w2 in range(1, 4):
        a(f"  v_fmac_f32 v76, v{MB+2*w2}, v{mM[w2]}")
        a(f"  v_fmac_f32 v78, v{MB+2*w2+1}, v{mM[w2]}")
    a(f"  v_cndmask_b32 v76, v76, v29, s[70:71]")
    a(f"  v_cndmask_b32 v78, v78, v30, s[70:71]")
    a(f"  s_mov_b64 exec, s[72:73]")
    restamp("stiss", "tail3")
    a(f"  global_store_dwordx4 v{pMs}, v[76:79], s[26:27] {cfg.tst}")
    if cfg.diag == "tail3":
        a("  s_waitcnt vmcnt(0)")
        restamp("stack", "tail3")
    a(f"  s_mov_b64 exec, -1")
    a.label("L_nomerge")
    stamp("apub", "main,tail,tail2")
    a(f"  s_cmp_ge_u32 {sCj}, 8")
    a("  s_cbranch_scc1 L_diag")
    HG = 80
    def h1_data():
        for k in range(3):
            a(f"  global_load_dwordx4 v[{HG+4*k}:{HG+4*k+3}], v{vH1}, s[26:27] offset:{512*k} {cfg.tld}")
    def h1_head():
        a(f"  global_load_dwordx4 v[{HG+12}:{HG+15}], v{vH2}, s[26:27] {cfg.tld}")
    restamp("h1iss", "tail2")
    if cfg.pp:
        a(f"  global_load_dwordx4 v[44:47], v{vH2}, s[26:27] {cfg.tld}")
        for k in range(3):
            a(f"  global_load_dwordx4 v[{32+4*k}:{35+4*k}], v{vH1}, s[26:27] offset:{512*k} {cfg.tld}")
    else:
        h1_head(); h1_data()
    BF = 8
    BF = 208
    def b_frags():
        for tt in range(2):
            for s in range(6):
                r = BF + 24*tt + 4*s
                a(f"  ds_read_b64_tr_b16 v[{r}:{r+1}], v{vTr} offset:{8192*s + 32*tt}")
                a(f"  ds_read_b64_tr_b16 v[{r+2}:{r+3}], v{vTr} offset:{8192*s + 32*tt + 1024}")
    assert R <= 2
    b_frags()
    a(f"  ds_read_b32 v{vGv}, v{pGV} offset:{GV}")
    if cfg.pp:
        def h1_issue(base):
            a(f"  global_load_dwordx4 v[{base+12}:{base+15}], v{vH2}, s[26:27] {cfg.tld}")
            for k in range(3):
                a(f"  global_load_dwordx4 v[{base+4*k}:{base+4*k+3}], v{vH1}, s[26:27] offset:{512*k} {cfg.tld}")
        pipelined_poll("h1", h1_issue, 4, 32, 120, HG, [0, 4, 8, 12], 20, True)
    else:
        a("  s_waitcnt vmcnt(0)")
        check_tags([HG, HG+4, HG+8, HG+12], 20)
        a("  s_cbranch_vccz L_h1ok")
        a.label("L_h1hdr")
        spin_guard(cfg.sleep)
        h1_head(); h1_data()
        a("  s_waitcnt vmcnt(0)")
        check_tags([HG, HG+4, HG+8, HG+12], 20)
        a("  s_cbranch_vccnz L_h1hdr")
    a.label("L_h1ok")
    stamp("h1ok", "tail,tail2")
    gm, gl = HG+12, HG+14
    a(f"  v_mov_b32 v20, v{gm}")
    a(f"  v_mov_b32 v21, v{gm}")
    a(f"  v_permlane32_swap_b32 v20, v21")
    a(f"  v_max_f32 v20, v20, v21")
    a(f"  v_sub_f32 v21, v{gm}, v20")
    a(f"  v_mul_f32 v21, {LOG2E}, v21")
    a(f"  v_exp_f32 v21, v21")
    a(f"  v_mul_f32 v24, v{gl}, v21")
    a(f"  v_mov_b32 v25, v24")
    a(f"  v_permlane32_swap_b32 v24, v25")
    a(f"  v_add_f32 v24, v24, v25")
    a(f"  v_rcp_f32 v24, v24")
    a(f"  v_mul_f32 v21, v21, v24")
    vals = [HG, HG+2, HG+4, HG+6, HG+8, HG+10]
    for r in vals: a(f"  v_mul_f32 v{r}, v{r}, v21")
    a(f"  v_permlane32_swap_b32 v{vals[0]}, v{vals[2]}")
    a(f"  v_permlane32_swap_b32 v{vals[1]}, v{vals[3]}")
    a(f"  v_mov_b32 v24, v{vals[4]}")
    a(f"  v_mov_b32 v25, v{vals[5]}")
    a(f"  v_add_f32 v{vals[0]}, v{vals[0]}, v{vals[2]}")
    a(f"  v_add_f32 v{vals[1]}, v{vals[1]}, v{vals[3]}")
    a(f"  v_permlane32_swap_b32 v{vals[4]}, v24")
    a(f"  v_permlane32_swap_b32 v{vals[5]}, v25")
    a(f"  v_cvt_pk_bf16_f32 v26, v{vals[0]}, v{vals[1]}")
    a(f"  v_add_f32 v{vals[4]}, v{vals[4]}, v24")
    a(f"  v_add_f32 v{vals[5]}, v{vals[5]}, v25")
    a(f"  v_cvt_pk_bf16_f32 v27, v{vals[4]}, v{vals[5]}")
    a(f"  ds_write_b32 v{pOB1}, v26 offset:{OB}")
    a(f"  ds_write_b32 v{pOB2}, v27 offset:{OB+256}")
    a(f"  v_and_b32 v8, 16, v{vLane}")
    a(f"  v_cmp_ne_u32 s[72:73], 0, v8")
    a("  s_waitcnt lgkmcnt(0)")
    a("  s_barrier")
    AF = ACC
    for s in range(6):
        a(f"  ds_read_b128 v[{AF+4*s}:{AF+4*s+3}], v{pAF} offset:{OB+64*s}")
    D0, D1 = 100, 104
    for e in range(8): a(f"  v_mov_b32 v{D0+e}, 0")
    a(f"  v_mov_b32 v109, {T0}")
    a(f"  v_mov_b32 v111, {T1}")
    a(f"  v_mov_b32 v113, {T0}")
    a(f"  v_mov_b32 v115, {T1}")
    a("  s_waitcnt lgkmcnt(0)")
    for s in range(6):
        for tt, D in ((0, D0), (1, D1)):
            r = BF + 24*tt + 4*s
            a(f"  v_mfma_f32_16x16x32_bf16 v[{D}:{D+3}], v[{AF+4*s}:{AF+4*s+3}], v[{r}:{r+3}], v[{D}:{D+3}]")
    for tt, D in ((0, D0), (1, D1)):
        g = 108 + 4*tt
        a(f"  v_cndmask_b32 v{g}, v{D}, v{D+2}, s[72:73]")
        a(f"  v_cndmask_b32 v{g+2}, v{D+1}, v{D+3}, s[72:73]")
    a("  s_mov_b32 exec_hi, 0")
    a(f"  global_store_dwordx4 v{vP0}, v[108:111], s[26:27] {cfg.tst}")
    a(f"  global_store_dwordx4 v{vP0+1}, v[112:115], s[26:27] {cfg.tst}")
    if cfg.diag == "tail3":
        restamp("st2iss", "tail3")
        a("  s_waitcnt vmcnt(0)")
        restamp("st2ack", "tail3")
    a("  s_mov_b32 exec_hi, -1")
    stamp("spub", "main,tail,tail2")
    a(f"  s_cmp_lg_u32 {sW}, 0")
    a("  s_cbranch_scc1 L_fin_end")
    SG = 80
    if cfg.pp:
        def s_issue(base):
            for i in range(4):
                a(f"  global_load_dwordx4 v[{base+4*i}:{base+4*i+3}], v{vSa}, s[26:27] offset:{1024*i} {cfg.tld}")
        pipelined_poll("h2", s_issue, 4, 32, 120, SG, [0, 4, 8, 12], 20, False)
    else:
        a.label("L_spoll")
        restamp("h2iss", "tail2")
        for i in range(4):
            a(f"  global_load_dwordx4 v[{SG+4*i}:{SG+4*i+3}], v{vSa}, s[26:27] offset:{1024*i} {cfg.tld}")
        a("  s_waitcnt vmcnt(0)")
        check_tags([SG, SG+4, SG+8, SG+12], 20)
        a("  s_cbranch_vccz L_sok")
        spin_guard(cfg.sleep)
        a("  s_branch L_spoll")
    a.label("L_sok")
    stamp("h2ok", "tail,tail2")
    for i in range(1, 4):
        a(f"  v_add_f32 v{SG}, v{SG}, v{SG+4*i}")
        a(f"  v_add_f32 v{SG+2}, v{SG+2}, v{SG+4*i+2}")
    reduce_hi([SG, SG+2], [20, 21])
    a(f"  v_and_b32 v20, 8, v{vLane}")
    a(f"  v_cmp_ne_u32 vcc, 0, v20")
    a(f"  v_cndmask_b32 v21, v{SG}, v{SG+2}, vcc")
    bf16round(21, 21)
    a(f"  v_mul_f32 v21, v21, v{vGv}")
    bf16round(21, 21)
    a(f"  v_lshlrev_b32 v22, 16, v{vXv}")
    a(f"  v_add_f32 v21, v21, v22")
    a(f"  v_cvt_pk_bf16_f32 v21, v21, v21")
    a("  s_mov_b64 exec, 0xffff")
    a(f"  global_store_short v{vOi}, v21, s[22:23]")
    a("  s_mov_b64 exec, -1")
    a(f"  s_add_u32 {sT}, {sH}, {sCj}")
    a(f"  s_cmp_lg_u32 {sT}, 0")
    a("  s_cbranch_scc1 L_fin_end")
    a(f"  v_mov_b32 v22, {T0}")
    a(f"  v_mov_b32 v23, {T1}")
    a(f"  v_mov_b32 v24, 0")
    a("  s_mov_b64 exec, 1")
    a(f"  global_store_dwordx2 v24, v[22:23], s[26:27] sc1")
    a("  s_mov_b64 exec, -1")
    a.label("L_fin_end")
    stamp("end", "main,tail")
    a("  s_branch L_diag")

    a.label("L_svc")
    sCb, sS_ = "s61", "s62"
    qA = 8
    a(f"  v_lshlrev_b32 v3, 11, v{vHf}")
    a(f"  v_lshl_add_u32 v3, v{vCc}, 4, v3")
    a(f"  s_mul_i32 {sT}, {sH}, {6*2048}")
    a(f"  s_lshl_b32 {sT2}, {sB}, 9")
    a(f"  s_add_u32 {sT}, {sT}, {sT2}")
    a(f"  s_add_u32 {sT}, {sT}, {QP3}")
    a(f"  v_add_u32 v{qA}, {sT}, v3")
    a(f"  v_add_u32 v{qA+1}, 4096, v{qA}")
    a(f"  v_add_u32 v{qA+2}, 8192, v{qA}")
    a(f"  v_lshlrev_b32 v11, 2, v{vCc}")
    a("  s_waitcnt lgkmcnt(0)")
    a("  s_load_dwordx2 s[28:29], s[26:27], 0")
    mk_srd(srdG, 16, 1966080)
    mk_srd(srdU, 18, 1966080)
    mk_srd(srdD, 20, 1966080)
    a("  s_waitcnt lgkmcnt(0)")
    a(f"  s_add_u32 {T0}, s28, 1")
    a(f"  s_add_u32 {T1}, s29, 1")
    a("  s_barrier")
    GQ = 16
    if cfg.dyn:
        a(f"  s_lshl_b32 {sT}, {sH}, 3")
        a(f"  s_add_u32 {sT2}, {sT}, {sU}")
        a(f"  s_lshl_b32 {sT2}, {sT2}, 4")
        a(f"  s_add_u32 {sT2}, {sT2}, {RD}")
        a(f"  v_mov_b32 v12, {sT2}")
        a(f"  v_mov_b32 v40, 0")
        a(f"  v_mov_b32 v41, {T0}")
        a(f"  v_mov_b32 v42, 0")
        a(f"  v_mov_b32 v43, {T1}")
        a("  s_mov_b64 exec, 1")
        a(f"  global_store_dwordx4 v12, v[40:43], s[26:27] sc1")
        a("  s_mov_b64 exec, -1")
        a(f"  s_xor_b32 {sT2}, {sU}, 1")
        a(f"  s_add_u32 {sT2}, {sT2}, {sT}")
        a(f"  s_lshl_b32 {sT2}, {sT2}, 4")
        a(f"  s_add_u32 {sT2}, {sT2}, {RD}")
        a(f"  v_mov_b32 v12, {sT2}")
    a.label("L_qpoll")
    for k in range(3):
        a(f"  global_load_dwordx4 v[{GQ+4*k}:{GQ+4*k+3}], v{qA+k}, s[26:27] {cfg.qld}")
    if cfg.dyn:
        a(f"  global_load_dwordx4 v[{GQ+12}:{GQ+15}], v12, s[26:27] sc1")
    a("  s_waitcnt vmcnt(0)")
    check_tags([GQ, GQ+4, GQ+8] + ([GQ+12] if cfg.dyn else []), 34)
    a("  s_cbranch_vccz L_qgot")
    spin_guard()
    a("  s_branch L_qpoll")
    a.label("L_qgot")
    qv = [GQ, GQ+2, GQ+4, GQ+6, GQ+8, GQ+10]
    for r, t in zip(qv, range(34, 40)): a(f"  v_mov_b32 v{t}, v{r}")
    for r, t in zip(qv, range(34, 40)): a(f"  v_permlane32_swap_b32 v{r}, v{t}")
    for r, t in zip(qv, range(34, 40)): a(f"  v_add_f32 v{r}, v{r}, v{t}")
    for k in range(3): a(f"  v_cvt_pk_bf16_f32 v{34+k}, v{GQ+4*k}, v{GQ+4*k+2}")
    for k in range(3): a(f"  ds_write_b32 v11, v{34+k} offset:{QB + 128*k}")
    a("  s_waitcnt lgkmcnt(0)")
    a("  s_barrier")
    stamp("fstart", "ffn")
    if cfg.noffn:
        a(f"  v_mov_b32 v8, 1.0")
        a(f"  v_mov_b32 v9, 1.0")
        a(f"  v_mov_b32 v10, 1.0")
        a(f"  v_mov_b32 v11, 1.0")
        a(f"  v_lshlrev_b32 v3, 4, v{vLane}")
        a("  s_mov_b64 exec, 0xf")
        a(f"  ds_write_b128 v3, v[8:11] offset:{GV}")
        a("  s_waitcnt lgkmcnt(0)")
        a("  s_branch L_end")
    fA, fB, fB2 = 10, 11, 12
    a(f"  s_cmp_lt_u32 {sCj}, 8")
    a("  s_cbranch_scc1 L_nof1")
    a(f"  s_mul_i32 {sI}, {sH}, 3")
    a(f"  s_add_u32 {sI}, {sI}, {sB}")
    a(f"  s_lshr_b32 {sCb}, {sI}, 2")
    a(f"  s_and_b32 {sS_}, {sI}, 3")
    a(f"  v_lshrrev_b32 v3, 4, v{vLane}")
    a(f"  v_and_b32 v13, 3, v{vLane}")
    a(f"  v_bfe_u32 v14, v{vLane}, 2, 2")
    a(f"  v_mul_u32_u24 v{fA}, {XS}, v13")
    a(f"  v_lshl_add_u32 v{fA}, v3, 4, v{fA}")
    a(f"  s_mul_i32 {sT}, {sS_}, 320")
    a(f"  v_add_u32 v{fA}, {sT}, v{fA}")
    a(f"  v_lshl_add_u32 v15, v3, 3, v14")
    a(f"  v_lshlrev_b32 v15, 7, v15")
    a(f"  v_lshl_add_u32 v{fB}, v13, 3, v15")
    a(f"  v_add_u32 v{fB}, {F1S}, v{fB}")
    FA, FB, FDd = 16, 40, 120
    for st in range(5):
        a(f"  ds_read_b128 v[{FA+4*st}:{FA+4*st+3}], v{fA} offset:{XN + 64*st}")
    for t in range(32): a(f"  v_mov_b32 v{FDd+t}, 0")
    quarter_masks(3, MQ)
    for mat in range(2):
        for t in range(4):
            for st in range(5):
                r = FB + 4*(5*t + st)
                a(f"  ds_read_b64_tr_b16 v[{r}:{r+1}], v{fB} offset:{20480*mat + 4096*st + 32*t}")
                a(f"  ds_read_b64_tr_b16 v[{r+2}:{r+3}], v{fB} offset:{20480*mat + 4096*st + 32*t + 512}")
            a("  s_waitcnt lgkmcnt(0)")
        for st in range(5):
            for t in range(4):
                r = FB + 4*(5*t + st); D = FDd + 4*(4*mat + t)
                a(f"  v_mfma_f32_16x16x32_bf16 v[{D}:{D+3}], v[{FA+4*st}:{FA+4*st+3}], v[{r}:{r+3}], v[{D}:{D+3}]")
    a(f"  s_lshl_b32 {sT}, {sI}, 11")
    a(f"  s_add_u32 {sT}, {sT}, {G1}")
    a(f"  v_lshl_add_u32 v13, v{vLane}, 4, {sT}")
    for mat in range(2):
        g = 32 + 4*mat
        for i in range(4):
            Dm = FDd + 16*mat + i
            select4(g+i, Dm, Dm+4, Dm+8, Dm+12, MQ)
        a(f"  global_store_dwordx4 v13, v[{g}:{g+3}], s[26:27] offset:{1024*mat} {cfg.hst}")
    def flag_store(vaddr):
        a("  v_mov_b32 v40, 0")
        a(f"  v_mov_b32 v41, {T0}")
        a("  v_mov_b32 v42, 0")
        a(f"  v_mov_b32 v43, {T1}")
        a("  s_waitcnt vmcnt(0)")
        a("  s_mov_b64 exec, 1")
        a(f"  global_store_dwordx4 v{vaddr}, v[40:43], s[26:27] {cfg.pst}")
        a("  s_mov_b64 exec, -1")
    a(f"  s_lshl_b32 {sT}, {sI}, 4")
    a(f"  s_add_u32 {sT}, {sT}, {F1}")
    a(f"  v_mov_b32 v14, {sT}")
    flag_store(14)
    stamp("f1pub", "ffn")
    a(f"  s_lshl_b32 {sT}, {sCb}, 6")
    a(f"  s_add_u32 {sT}, {sT}, {F1}")
    a(f"  v_and_b32 v15, 3, v{vLane}")
    a(f"  v_lshl_add_u32 v15, v15, 4, {sT}")
    a.label("L_f1poll")
    a(f"  global_load_dwordx4 v[44:47], v15, s[26:27] {cfg.pld}")
    a("  s_waitcnt vmcnt(0)")
    check_tags([44], 64)
    a("  s_cbranch_vccz L_f1ok")
    spin_guard(cfg.fsleep)
    a("  s_branch L_f1poll")
    a.label("L_f1ok")
    a(f"  s_lshl_b32 {sT}, {sCb}, 13")
    a(f"  s_lshl_b32 {sT2}, {sS_}, 8")
    a(f"  s_add_u32 {sT}, {sT}, {sT2}")
    a(f"  s_add_u32 {sT}, {sT}, {G1}")
    a(f"  v_lshrrev_b32 v3, 4, v{vLane}")
    a(f"  v_lshlrev_b32 v14, 11, v3")
    a(f"  v_and_b32 v15, 15, v{vLane}")
    a(f"  v_lshl_add_u32 v14, v15, 4, v14")
    a(f"  v_add_u32 v14, {sT}, v14")
    FGg = 48
    for mat in range(2):
        a(f"  global_load_dwordx4 v[{FGg+4*mat}:{FGg+4*mat+3}], v14, s[26:27] offset:{1024*mat} {cfg.hld}")
    a("  s_waitcnt vmcnt(0)")
    stamp("f1ok", "ffn")
    fv = list(range(FGg, FGg+8))
    reduce_hi(fv, list(range(64, 72)), rors=())
    select4(72, FGg, FGg+1, FGg+2, FGg+3, MQ)
    select4(73, FGg+4, FGg+5, FGg+6, FGg+7, MQ)
    bf16round(72, 72)
    bf16round(73, 73)
    a("  v_mul_f32 v74, v72, v72")
    a("  v_mul_f32 v74, v74, v72")
    a(f"  v_mul_f32 v74, {f32(0.044715)}, v74")
    a("  v_add_f32 v74, v72, v74")
    a(f"  v_mul_f32 v74, {f32(-2.0*0.7978845608028654*1.4426950408889634)}, v74")
    a("  v_exp_f32 v74, v74")
    a("  v_add_f32 v74, 1.0, v74")
    a("  v_rcp_f32 v74, v74")
    a("  v_mul_f32 v74, v72, v74")
    bf16round(74, 74)
    a("  v_mul_f32 v74, v74, v73")
    a("  v_cvt_pk_bf16_f32 v74, v74, v74")
    a("  v_mov_b32 v75, v74 quad_perm:[1,0,3,2] row_mask:0xf bank_mask:0xf")
    a(f"  v_perm_b32 v76, v75, v74, {sPermLo}")
    a("  v_mov_b32 v78, v76")
    a("  v_permlane16_swap_b32 v76, v78")
    a(f"  v_mov_b32 v77, {T0}")
    a(f"  v_mov_b32 v79, {T1}")
    a(f"  s_lshl_b32 {sT}, {sI}, 8")
    a(f"  s_add_u32 {sT}, {sT}, {G2}")
    a(f"  v_lshlrev_b32 v3, 7, v{vHf}")
    a(f"  v_lshl_add_u32 v3, v15, 3, v3")
    a(f"  v_add_u32 v3, {sT}, v3")
    a("  s_mov_b32 exec_lo, 0x00005555")
    a("  s_mov_b32 exec_hi, 0x00005555")
    a(f"  global_store_dwordx4 v3, v[76:79], s[26:27] {cfg.pst}")
    a("  s_mov_b64 exec, -1")
    a("  s_branch L_diag")
    a.label("L_nof1")
    a(f"  s_cmp_ge_u32 {sH}, 24")
    a("  s_cbranch_scc1 L_nof2")
    a(f"  s_lshl_b32 {sT}, {sH}, 10")
    a(f"  s_add_u32 {sT}, {sT}, {G2}")
    a(f"  v_lshl_add_u32 v14, v{vLane}, 4, {sT}")
    a(f"  v_lshrrev_b32 v3, 4, v{vLane}")
    a(f"  v_bfe_u32 v15, v{vLane}, 2, 2")
    a(f"  v_lshl_add_u32 v15, v3, 3, v15")
    a(f"  v_lshlrev_b32 v15, 8, v15")
    a(f"  v_and_b32 v13, 3, v{vLane}")
    a(f"  v_lshl_add_u32 v{fB2}, v13, 3, v15")
    a(f"  v_add_u32 v{fB2}, {F2S}, v{fB2}")
    a.label("L_f2poll")
    a(f"  global_load_dwordx4 v[48:51], v14, s[26:27] {cfg.pld}")
    a("  s_waitcnt vmcnt(0)")
    check_tags([48], 64)
    a("  s_cbranch_vccz L_f2ok")
    spin_guard(cfg.fsleep)
    a("  s_branch L_f2poll")
    a.label("L_f2ok")
    stamp("f2ok", "ffn")
    F2B = 80
    for t in range(8):
        for st in range(2):
            r = F2B + 8*t + 4*st
            a(f"  ds_read_b64_tr_b16 v[{r}:{r+1}], v{fB2} offset:{8192*st + 32*t}")
            a(f"  ds_read_b64_tr_b16 v[{r+2}:{r+3}], v{fB2} offset:{8192*st + 32*t + 1024}")
        if t % 2 == 1: a("  s_waitcnt lgkmcnt(0)")
    a(f"  v_and_b32 v3, 1, v{vG}")
    a(f"  v_mul_u32_u24 v3, {2*HS}, v3")
    a(f"  v_lshrrev_b32 v14, 4, v{vLane}")
    a(f"  v_lshl_add_u32 v3, v14, 5, v3")
    a(f"  v_lshl_add_u32 v3, v{vC}, 2, v3")
    a(f"  ds_write_b32 v3, v48 offset:{HID}")
    a(f"  ds_write_b32 v3, v50 offset:{HID+HS}")
    a(f"  v_mul_u32_u24 v3, {HS}, v13")
    a(f"  v_lshrrev_b32 v14, 4, v{vLane}")
    a(f"  v_lshl_add_u32 v3, v14, 4, v3")
    a("  s_waitcnt lgkmcnt(0)")
    a(f"  ds_read_b128 v[52:55], v3 offset:{HID}")
    a(f"  ds_read_b128 v[56:59], v3 offset:{HID+64}")
    F2D = 144
    for t in range(32): a(f"  v_mov_b32 v{F2D+t}, 0")
    quarter_masks(14, MQ)
    a(f"  s_mul_i32 {sI}, {sCj}, 24")
    a(f"  s_add_u32 {sI}, {sI}, {sH}")
    a(f"  s_lshl_b32 {sT}, {sI}, 11")
    a(f"  s_add_u32 {sT}, {sT}, {FP3}")
    a(f"  v_lshl_add_u32 v13, v{vLane}, 4, {sT}")
    a("  s_waitcnt lgkmcnt(0)")
    for st in range(2):
        for t in range(8):
            r = F2B + 8*t + 4*st; D = F2D + 4*t
            a(f"  v_mfma_f32_16x16x32_bf16 v[{D}:{D+3}], v[{52+4*st}:{55+4*st}], v[{r}:{r+3}], v[{D}:{D+3}]")
    for rr in range(2):
        g = 32 + 4*rr
        for i in range(4):
            Dm = F2D + 16*rr + i
            select4(g+i, Dm, Dm+4, Dm+8, Dm+12, MQ)
        a(f"  global_store_dwordx4 v13, v[{g}:{g+3}], s[26:27] offset:{1024*rr} {cfg.hst}")
    a(f"  s_lshl_b32 {sT}, {sCj}, 9")
    a(f"  s_lshl_b32 {sT2}, {sH}, 4")
    a(f"  s_add_u32 {sT}, {sT}, {sT2}")
    a(f"  s_add_u32 {sT}, {sT}, {F3}")
    a(f"  v_mov_b32 v14, {sT}")
    flag_store(14)
    a.label("L_nof2")
    stamp("f2pub", "ffn")
    a(f"  s_lshl_b32 {sT}, {sCj}, 9")
    a(f"  s_add_u32 {sT}, {sT}, {F3}")
    a(f"  v_min_u32 v3, 23, v{vLane}")
    a(f"  v_lshl_add_u32 v15, v3, 4, {sT}")
    a.label("L_f3poll")
    a(f"  global_load_dwordx4 v[44:47], v15, s[26:27] {cfg.pld}")
    a("  s_waitcnt vmcnt(0)")
    check_tags([44], 64)
    a("  s_cbranch_vccz L_f3ok")
    spin_guard(cfg.fsleep3)
    a("  s_branch L_f3poll")
    a.label("L_f3ok")
    a(f"  s_mul_i32 {sT}, {sCj}, {24*2048}")
    a(f"  s_lshl_b32 {sT2}, {sH}, 6")
    a(f"  s_add_u32 {sT}, {sT}, {sT2}")
    a(f"  s_add_u32 {sT}, {sT}, {FP3}")
    a(f"  v_lshrrev_b32 v3, 2, v{vLane}")
    a(f"  v_lshlrev_b32 v3, 11, v3")
    a(f"  v_and_b32 v13, 3, v{vLane}")
    a(f"  v_lshl_add_u32 v3, v13, 4, v3")
    a(f"  v_add_u32 v14, {sT}, v3")
    a(f"  v_add_u32 v15, {16*2048}, v14")
    for e in range(4): a(f"  v_mov_b32 v{52+e}, 0")
    a(f"  global_load_dwordx4 v[48:51], v14, s[26:27] {cfg.hld}")
    a("  s_mov_b32 exec_hi, 0")
    a(f"  global_load_dwordx4 v[52:55], v15, s[26:27] {cfg.hld}")
    a("  s_mov_b32 exec_hi, -1")
    a("  s_waitcnt vmcnt(0)")
    for e in range(4): a(f"  v_add_f32 v{48+e}, v{48+e}, v{52+e}")
    reduce_hi([48, 49, 50, 51], [56, 57, 58, 59], rors=(4, 8))
    for e in range(4):
        r = 48 + e
        bf16round(r, r)
        a(f"  v_mul_f32 v{56+e}, {f32(-1.4426950408889634)}, v{r}")
    for e in range(4): a(f"  v_exp_f32 v{56+e}, v{56+e}")
    for e in range(4): a(f"  v_add_f32 v{56+e}, 1.0, v{56+e}")
    for e in range(4): a(f"  v_rcp_f32 v{56+e}, v{56+e}")
    for e in range(4): a(f"  v_mul_f32 v{48+e}, v{48+e}, v{56+e}")
    for e in range(4): bf16round(48+e, 48+e)
    a(f"  v_lshlrev_b32 v3, 4, v13")
    a("  s_mov_b64 exec, 0xf")
    a(f"  ds_write_b128 v3, v[48:51] offset:{GV}")
    a("  s_mov_b64 exec, -1")
    a("  s_waitcnt lgkmcnt(0)")
    stamp("fend", "ffn")
    a.label("L_diag")
    if cfg.diag:
        a("  s_waitcnt lgkmcnt(0)")
        a(f"  s_mul_i32 {sT}, s2, 5")
        a(f"  s_add_u32 {sT}, {sT}, {sW}")
        a(f"  s_lshl_b32 {sT}, {sT}, 7")
        a(f"  s_add_u32 {sT}, {sT}, {STAMP}")
        a(f"  v_mov_b32 v3, {sT}")
        a("  s_mov_b64 exec, 1")
        for i in range(8):
            a(f"  v_mov_b32 v4, s{84+2*i}")
            a(f"  v_mov_b32 v5, s{85+2*i}")
            a(f"  global_store_dwordx2 v3, v[4:5], s[26:27] offset:{8*i}")
            a("  s_nop 1")
        a("  s_getreg_b32 s84, hwreg(HW_REG_HW_ID)")
        a("  s_getreg_b32 s85, hwreg(HW_REG_XCC_ID)")
        a(f"  v_mov_b32 v4, s84")
        a(f"  v_mov_b32 v5, s85")
        a(f"  global_store_dwordx2 v3, v[4:5], s[26:27] offset:64")
        a("  s_nop 1")
        a(f"  v_mov_b32 v4, {sNval}")
        a(f"  v_mov_b32 v5, {sU}")
        a(f"  global_store_dwordx2 v3, v[4:5], s[26:27] offset:72")
    a.label("L_end")
    a("  s_endpgm")
    a('.section .rodata,"a"')
    a(".p2align 6")
    a(f".amdhsa_kernel {KN}")
    a("  .amdhsa_next_free_vgpr 256")
    a("  .amdhsa_next_free_sgpr 102")
    a("  .amdhsa_accum_offset 256")
    a("  .amdhsa_group_segment_fixed_size 0")
    a("  .amdhsa_kernarg_size 96")
    a("  .amdhsa_user_sgpr_count 2")
    a("  .amdhsa_user_sgpr_kernarg_segment_ptr 1")
    a("  .amdhsa_system_sgpr_workgroup_id_x 1")
    a(".end_amdhsa_kernel")
    body = a.finalize()
    if cfg.diag: hdr.append("; stamps: " + ",".join(names))
    return "\n".join(hdr) + "\n" + body

if __name__ == "__main__":
    ap = argparse.ArgumentParser()
    ap.add_argument("-o", default="recurrent_scan__mha_block_cached__geglu_ffn__decode.s")
    for k, v in vars(Cfg).items():
        if k.startswith("_"): continue
        if isinstance(v, bool): ap.add_argument("--" + k, type=int, default=int(v))
        else: ap.add_argument("--" + k, type=type(v), default=v)
    ap.add_argument("--wo_late", type=int, default=0)
    args = ap.parse_args()
    cfg = Cfg()
    for k, v in vars(args).items(): setattr(cfg, k, v)
    open(args.o, "w").write(build(cfg))
    print("wrote", args.o)
```

```python
import struct, sys, argparse
from asmdsl import Asm

KN = "recurrent_scan__mha_block_cached__geglu_ffn__decode_kernel"
def f32(x): return "0x%08x" % struct.unpack("<I", struct.pack("<f", x))[0]
LOG2E = f32(1.4426950408889634)
SCALE = f32(192 ** -0.5)

STAMP = 0x10000
QP3 = 0x100000
AP  = 0x180000
SP3 = 0x200000
G1  = 0x2A0000
F1  = 0x300000
G2  = 0x301000
FP3 = 0x308000
F3  = 0x344000
TK  = 0x350000
RD  = 0x360000
XN  = 0
XS  = 1344
QB  = 5376
HID = 5760
HS  = 192
GV  = 6528
HIDEND = 6528
PART = 6656
OB  = 9856
OS  = 448
TQ  = 11648
WQS = 12032
WO  = WQS + 40960
F1S = WO
F2S = WO + 49152
LA  = F2S + 16384

class Cfg:
    R = 2; NL = 0; NA = 1; diag = ''; nt = "nt"; dyn = 3; S = 52; match = 2
    sleep = 0; fsleep = 32; hst = "sc1 nt"; hld = "sc1 nt"; qst = "sc1"; qld = "sc1"; tst = "sc1"; tld = "sc1"
    pst = "sc1"; pld = "sc1"; fsleep3 = 120
    noffn = False
    sflag = 0
    pace = 8
    qwait = 0
    qpp = 0
    qppsleep = 12
    ost = ''
    pp = 0
    ppsleep = 3
    wotail = 0
    wsbase = 0
    h1full = 1
    wmax = 1
    pf32 = 1

def build(cfg):
    global QP3, AP, SP3, G1, F1, G2, FP3, F3, TK, RD
    QP3, AP, SP3, G1, F1, G2, FP3, F3, TK, RD = [x + cfg.wsbase for x in (0x100000, 0x180000, 0x200000, 0x2A0000, 0x300000, 0x301000, 0x308000, 0x344000, 0x350000, 0x360000)]
    a = Asm()
    R, NL, NT = cfg.R, cfg.NL, cfg.nt
    assert NL <= 2
    LDS_BYTES = (max(LA, F2S + 4 * 12288) if NL else LA) if cfg.wotail else LA + NL * 4 * 6144
    assert LDS_BYTES <= 163840, LDS_BYTES
    sW = "s3"
    sAlive, sNval = "s14", "s15"
    T0, T1 = "s30", "s31"
    srdK, srdV, srdW, srdO, srdG, srdU, srdD, srdT = 32, 36, 40, 44, 48, 52, 76, 80
    sH, sX, sB, sHalf, sU = "s56", "s57", "s58", "s59", "s60"
    sOff, sStr, sI, sT, sT2, sT3 = "s61", "s62", "s63", "s64", "s65", "s66"
    sOnes, sPermLo, sFirst = "s67", "s68", "s24"
    sSpin, sC0 = "s74", "s75"
    sCj = "s100"
    def srd(i): return f"s[{i}:{i+3}]"
    nst = [0]; names = []
    def stamp(name=None, sets="main"):
        if cfg.diag and cfg.diag in sets.split(","):
            i = 84 + 2 * nst[0]; nst[0] += 1
            assert i <= 98, name
            names.append(name)
            a(f"  s_memrealtime s[{i}:{i+1}]")
    slots = {}
    def restamp(name, sets):
        if cfg.diag and cfg.diag in sets.split(","):
            if name not in slots:
                slots[name] = 84 + 2 * nst[0]; nst[0] += 1; names.append(name)
                assert slots[name] <= 98
            i = slots[name]
            a(f"  s_memrealtime s[{i}:{i+1}]")
    vTid, vLane, vKV = 0, 1, 2
    vHf, vCc, vG, vC = 4, 5, 6, 7
    RING = 160
    def Kr(s, j): return RING + 24 * s + 4 * j
    def Vr(s, j): return RING + 24 * s + 12 + 4 * j
    ACC, Q, vM, vL, TKR, vTKo = 136, 124, 122, 123, 118, 116

    def mk_srd(i, lo, size):
        a(f"  s_mov_b32 s{i}, s{lo}")
        a(f"  s_mov_b32 s{i+1}, s{lo+1}")
        a(f"  s_mov_b32 s{i+2}, {size}")
        a(f"  s_mov_b32 s{i+3}, 0x20000")
    def dpp(op, v, ctrl): a(f"  {op} v{v}, v{v}, v{v} {ctrl} row_mask:0xf bank_mask:0xf")
    def allreduce64(v, t, op):
        for n in (1, 2, 4, 8): dpp(op, v, f"row_ror:{n}")
        for sw in ("16", "32"):
            a(f"  v_mov_b32 v{t}, v{v}")
            a(f"  v_permlane{sw}_swap_b32 v{v}, v{t}")
            a(f"  {op} v{v}, v{v}, v{t}")
    def reduce_hi(regs, tmps, rors=(8,)):
        for n in rors:
            for r in regs: dpp("v_add_f32", r, f"row_ror:{n}")
        for sw in ("16", "32"):
            for r, t in zip(regs, tmps): a(f"  v_mov_b32 v{t}, v{r}")
            for r, t in zip(regs, tmps): a(f"  v_permlane{sw}_swap_b32 v{r}, v{t}")
            for r, t in zip(regs, tmps): a(f"  v_add_f32 v{r}, v{r}, v{t}")
    def bf16round(dst, src):
        a(f"  v_cvt_pk_bf16_f32 v{dst}, v{src}, v{src}")
        a(f"  v_lshlrev_b32 v{dst}, 16, v{dst}")
    def check_tags(bases, vflag):
        first = True
        for r in bases:
            if first: a(f"  v_xor_b32 v{vflag}, {T0}, v{r+1}")
            else: a(f"  v_bitop3_b32 v{vflag}, v{vflag}, v{r+1}, {T0} bitop3:0xf6")
            first = False
            a(f"  v_bitop3_b32 v{vflag}, v{vflag}, v{r+3}, {T1} bitop3:0xf6")
        a(f"  v_cmp_ne_u32 vcc, 0, v{vflag}")
    def spin_guard(sleep=0):
        a(f"  s_add_u32 {sSpin}, {sSpin}, 1")
        a(f"  s_cmp_gt_u32 {sSpin}, 100000")
        a("  s_cbranch_scc1 L_end")
        if sleep: a(f"  s_sleep {sleep}")
    def pipelined_poll(tag, issue, n, setA, setB, setC, bases, vflag, first_issued):
        if not first_issued: issue(setA)
        a(f"  s_sleep {cfg.ppsleep}")
        a.label(f"L_pp{tag}")
        issue(setB)
        a(f"  s_waitcnt vmcnt({n})")
        check_tags([setA + o for o in bases], vflag)
        a(f"  s_cbranch_vccnz L_pp{tag}_b")
        for o in bases:
            a(f"  v_mov_b32 v{setC+o}, v{setA+o}")
            a(f"  v_mov_b32 v{setC+o+2}, v{setA+o+2}")
        a(f"  s_branch L_pp{tag}_ok")
        a.label(f"L_pp{tag}_b")
        spin_guard()
        issue(setA)
        a(f"  s_waitcnt vmcnt({n})")
        check_tags([setB + o for o in bases], vflag)
        a(f"  s_cbranch_vccnz L_pp{tag}")
        for o in bases:
            a(f"  v_mov_b32 v{setC+o}, v{setB+o}")
            a(f"  v_mov_b32 v{setC+o+2}, v{setB+o+2}")
        a.label(f"L_pp{tag}_ok")
    def select4(dst, r0, r1, r2, r3, masks):
        a(f"  v_cndmask_b32 v{dst}, v{r0}, v{r1}, {masks[0]}")
        a(f"  v_cndmask_b32 v{dst}, v{dst}, v{r2}, {masks[1]}")
        a(f"  v_cndmask_b32 v{dst}, v{dst}, v{r3}, {masks[2]}")
    def quarter_masks(vsel, masks):
        for i, m in enumerate(masks): a(f"  v_cmp_eq_u32 {m}, {i+1}, v{vsel}")

    def layernorm(vx, tb):
        d = [tb + 10 + j for j in range(10)]
        acc, t, mean, mbf, r = tb + 20, tb + 21, tb + 22, tb + 23, tb + 24
        a(f"  v_mov_b32 v{acc}, 0")
        for j in range(5): a(f"  v_dot2c_f32_bf16 v{acc}, {sOnes}, v{vx+j}")
        for j in range(5):
            a(f"  v_lshlrev_b32 v{tb+2*j}, 16, v{vx+j}")
            a(f"  v_and_b32 v{tb+2*j+1}, 0xffff0000, v{vx+j}")
        allreduce64(acc, t, "v_add_f32")
        a(f"  v_mul_f32 v{mean}, {f32(1.0/640)}, v{acc}")
        bf16round(mbf, mean)
        a(f"  v_mov_b32 v{acc}, 0")
        for j in range(10): a(f"  v_sub_f32 v{d[j]}, v{tb+j}, v{mean}")
        for j in range(10): a(f"  v_fmac_f32 v{acc}, v{d[j]}, v{d[j]}")
        for j in range(10): a(f"  v_sub_f32 v{d[j]}, v{tb+j}, v{mbf}")
        allreduce64(acc, t, "v_add_f32")
        a(f"  v_mul_f32 v{acc}, {f32(1.0/640)}, v{acc}")
        bf16round(acc, acc)
        a(f"  v_add_f32 v{acc}, {f32(1e-5)}, v{acc}")
        bf16round(acc, acc)
        a(f"  v_sqrt_f32 v{acc}, v{acc}")
        bf16round(acc, acc)
        a(f"  v_rcp_f32 v{r}, v{acc}")
        for j in range(5): a(f"  v_cvt_pk_bf16_f32 v{tb+j}, v{d[2*j]}, v{d[2*j+1]}")
        for j in range(5):
            a(f"  v_lshlrev_b32 v{d[2*j]}, 16, v{tb+j}")
            a(f"  v_and_b32 v{d[2*j+1]}, 0xffff0000, v{tb+j}")
        for j in range(10): a(f"  v_mul_f32 v{d[j]}, v{d[j]}, v{r}")
        for j in range(5): a(f"  v_cvt_pk_bf16_f32 v{tb+j}, v{d[2*j]}, v{d[2*j+1]}")
        a(f"  s_mul_i32 {sT}, {sW}, {XS}")
        a(f"  v_lshl_add_u32 v{t}, v{vLane}, 2, {sT}")
        for j in range(5): a(f"  ds_write_b32 v{t}, v{tb+j} offset:{XN + j*256}")

    hdr = [f"; @launch grid=(256,1,1) block=(320,1,1) lds={LDS_BYTES}"]
    a('.amdgcn_target "amdgcn-amd-amdhsa--gfx950"')
    a(".text")
    a(f".globl {KN}")
    a(".p2align 8")
    a(f".type {KN},@function")
    a.label(KN)
    a("  s_cmp_ge_u32 s2, 256")
    a("  s_cbranch_scc1 L_end")
    if cfg.diag:
        for i in range(84, 100): a(f"  s_mov_b32 s{i}, 0")
    stamp("start", "main,pro,tail,ffn,tail2,tail3,pro2")
    a("  s_load_dwordx8 s[4:11], s[0:1], 0")
    a("  s_load_dwordx2 s[12:13], s[0:1], 32")
    a("  s_load_dwordx8 s[16:23], s[0:1], 48")
    a("  s_load_dwordx4 s[24:27], s[0:1], 80")
    a(f"  v_lshrrev_b32 v3, 6, v{vTid}")
    a(f"  v_and_b32 v{vLane}, 63, v{vTid}")
    a(f"  v_readfirstlane_b32 {sW}, v3")
    a(f"  s_mov_b32 {sSpin}, 0")
    a(f"  s_mov_b32 {sOnes}, 0x3f803f80")
    a(f"  s_mov_b32 {sPermLo}, 0x05040100")
    a(f"  s_lshr_b32 {sH}, s2, 3")
    a(f"  s_and_b32 {sX}, s2, 7")
    a(f"  v_lshrrev_b32 v{vHf}, 5, v{vLane}")
    a(f"  v_and_b32 v{vCc}, 31, v{vLane}")
    a(f"  v_lshrrev_b32 v{vG}, 3, v{vLane}")
    a(f"  v_and_b32 v{vC}, 7, v{vLane}")
    if cfg.match == 2:
        a(f"  s_and_b32 {sT}, {sH}, 1")
        a(f"  s_lshl_b32 {sT}, {sT}, 1")
        a(f"  s_add_u32 {sT}, {sT}, 3")
        a(f"  s_and_b32 {sHalf}, {sX}, 1")
        a(f"  s_mul_i32 {sT}, {sT}, {sHalf}")
        a(f"  s_xor_b32 {sT}, {sT}, {sX}")
        a(f"  s_lshr_b32 {sB}, {sT}, 1")
    else:
        a(f"  s_lshr_b32 {sB}, {sX}, 1")
        a(f"  s_and_b32 {sHalf}, {sX}, 1")
    a(f"  s_lshl_b32 {sU}, {sB}, 1")
    a(f"  s_add_u32 {sU}, {sU}, {sHalf}")
    a(f"  s_cmp_eq_u32 {sHalf}, 0")
    a(f"  s_cselect_b32 {sCj}, {sB}, 8")
    a(f"  s_cmp_eq_u32 {sU}, 7")
    a(f"  s_cselect_b32 {sCj}, 4, {sCj}")
    a(f"  s_cmp_eq_u32 {sW}, 4")
    a("  s_cbranch_scc1 L_svc")

    vXo, vWq = 8, 9
    a(f"  v_mul_u32_u24 v{vKV}, 384, v{vG}")
    a(f"  v_lshl_add_u32 v{vKV}, v{vC}, 4, v{vKV}")
    a(f"  v_mul_u32_u24 v{vWq}, 12288, v{vG}")
    a(f"  v_lshl_add_u32 v{vWq}, v{vC}, 4, v{vWq}")
    a(f"  s_mul_i32 {sT}, {sW}, 1280")
    a(f"  v_lshl_add_u32 v{vXo}, v{vLane}, 2, {sT}")
    a("  s_waitcnt lgkmcnt(0)")
    stamp("karg", "pro")
    a("  s_load_dwordx2 s[28:29], s[26:27], 0")
    VX = 11
    for j in range(5):
        a(f"  global_load_dword v{VX+j}, v{vXo}, s[4:5] offset:{j*256}")
    mk_srd(srdW, 10, 7864320)
    a(f"  s_cmp_ge_u32 {sU}, 6")
    a("  s_cbranch_scc1 L_nowq")
    a(f"  s_mul_i32 {sT}, {sHalf}, 320")
    a(f"  s_mul_i32 {sT2}, {sW}, 80")
    a(f"  s_add_u32 {sT}, {sT}, {sT2}")
    a(f"  s_mul_i32 {sT}, {sT}, 12288")
    a(f"  s_mul_i32 {sT3}, {sH}, 384")
    a(f"  s_add_u32 {sT}, {sT}, {sT3}")
    a(f"  s_lshl_b32 {sT3}, {sB}, 7")
    a(f"  s_add_u32 {sT}, {sT}, {sT3}")
    a(f"  s_lshl_b32 {sT2}, {sT2}, 7")
    a(f"  s_add_u32 {sT2}, {sT2}, {WQS}")
    for i in range(10):
        a(f"  s_add_u32 m0, {sT2}, {1024*i}")
        a(f"  buffer_load_dwordx4 v{vWq}, {srd(srdW)}, {sT} offen {NT} lds")
        if i < 9: a(f"  s_add_u32 {sT}, {sT}, {8*12288}")
    a.label("L_nowq")
    mk_srd(srdK, 6, 201326592)
    mk_srd(srdV, 8, 201326592)
    mk_srd(srdO, 12, 7864320)
    CH = 7 if cfg.dyn else 6
    nb = 1 if cfg.dyn else 0
    if cfg.dyn:
        a(f"  s_lshl_b32 {sT}, {sH}, 2")
        a(f"  s_add_u32 {sT}, {sT}, {sB}")
        if cfg.dyn == 1:
            a(f"  s_lshl_b32 {sT}, {sT}, 2")
            a(f"  s_add_u32 {sT}, {sT}, {sW}")
            a(f"  s_lshl_b32 {sT}, {sT}, 7")
        else:
            a(f"  s_lshl_b32 {sT}, {sT}, 9")
        a(f"  v_mov_b32 v{vTKo}, 0x7ffffff0")
        a(f"  v_mov_b32 v3, {sT}")
        a(f"  v_cmp_eq_u32 vcc, 0, v{vLane}")
        a(f"  v_cndmask_b32 v{vTKo}, v{vTKo}, v3, vcc")
        a(f"  s_add_u32 s{srdT}, s26, {TK}")
        a(f"  s_addc_u32 s{srdT+1}, s27, 0")
        a(f"  s_mov_b32 s{srdT+2}, 65536")
        a(f"  s_mov_b32 s{srdT+3}, 0x20000")
        a(f"  buffer_load_dword v117, v{vTKo}, {srd(srdT)}, 0 offen sc1")
        a(f"  s_mov_b32 s{srdT+2}, 0")
    a(f"  s_lshl_b32 {sT}, {sB}, 5")
    a(f"  s_add_u32 {sT}, {sT}, {sH}")
    a(f"  s_mul_i32 {sOff}, {sT}, 1572864")
    sPool = "s69"
    if cfg.dyn >= 2:
        a(f"  s_add_u32 {sPool}, {sOff}, {8*cfg.S*3072}")
        a(f"  s_lshl_b32 {sT}, {sHalf}, 2")
        a(f"  s_add_u32 {sT}, {sT}, {sW}")
        a(f"  s_mul_i32 {sT}, {sT}, {cfg.S*3072}")
        a(f"  s_add_u32 {sOff}, {sOff}, {sT}")
        a(f"  s_mov_b32 {sStr}, 3072")
    elif not cfg.dyn:
        a(f"  s_mul_i32 {sT}, {sHalf}, 786432")
        a(f"  s_add_u32 {sOff}, {sOff}, {sT}")
        a(f"  s_mul_i32 {sT}, {sW}, 196608")
        a(f"  s_add_u32 {sOff}, {sOff}, {sT}")
        a(f"  s_mov_b32 {sStr}, 3072")
    else:
        a(f"  s_mul_i32 {sT}, {sW}, 393216")
        a(f"  s_add_u32 {sOff}, {sOff}, {sT}")
        a(f"  s_mul_i32 {sT}, {sHalf}, {393216-3072}")
        a(f"  s_add_u32 {sOff}, {sOff}, {sT}")
        a(f"  s_mul_i32 {sStr}, {sHalf}, -6144")
        a(f"  s_add_u32 {sStr}, {sStr}, 3072")
    def issueT(s):
        if cfg.dyn:
            a(f"  v_mov_b32 v{TKR+s}, 1")
            a(f"  buffer_atomic_add v{TKR+s}, v{vTKo}, {srd(srdT)}, 0 offen sc0 sc1")
    def issueK(s):
        for j in range(3):
            a(f"  buffer_load_dwordx4 v[{Kr(s,j)}:{Kr(s,j)+3}], v{vKV}, {srd(srdK)}, {sOff} offen offset:{128*j} {NT}")
    def issueV(s):
        for j in range(3):
            a(f"  buffer_load_dwordx4 v[{Vr(s,j)}:{Vr(s,j)+3}], v{vKV}, {srd(srdV)}, {sOff} offen offset:{128*j} {NT}")
        a(f"  s_add_u32 {sOff}, {sOff}, {sStr}")
    sLb = "s25"
    def issueL(k):
        for srdx, o in ((srdK, 0), (srdV, 3072)):
            for j in range(3):
                a(f"  s_add_u32 m0, {sLb}, {6144*k + o + 896*j}")
                a(f"  buffer_load_dwordx4 v{vKV}, {srd(srdx)}, {sOff} offen offset:{128*j} {NT} lds")
        a(f"  s_add_u32 {sOff}, {sOff}, {sStr}")
    NA = cfg.NA
    for s in range(NA):
        issueT(s); issueK(s); issueV(s)
    stamp("issued", "main")
    a(f"  s_cmp_ge_u32 {sU}, 6")
    a("  s_cbranch_scc1 L_xw2")
    a(f"  s_waitcnt vmcnt({10 + nb + CH*NA})")
    a("  s_branch L_xw3")
    a.label("L_xw2")
    a(f"  s_waitcnt vmcnt({nb + CH*NA})")
    a.label("L_xw3")
    stamp("xarr", "pro")
    layernorm(VX, 16)
    vQa, vQb, vQp = 10, 44, 45
    a(f"  v_lshrrev_b32 v3, 4, v{vLane}")
    a(f"  v_and_b32 v47, 3, v{vLane}")
    a(f"  v_mul_u32_u24 v{vQa}, {XS}, v47")
    a(f"  v_lshl_add_u32 v{vQa}, v3, 4, v{vQa}")
    a(f"  s_mul_i32 {sT}, {sHalf}, 640")
    a(f"  v_add_u32 v{vQa}, {sT}, v{vQa}")
    a(f"  v_bfe_u32 v50, v{vLane}, 2, 2")
    a(f"  v_lshl_add_u32 v48, v3, 3, v50")
    a(f"  v_lshlrev_b32 v48, 7, v48")
    a(f"  v_lshl_add_u32 v48, v47, 3, v48")
    a(f"  s_lshl_b32 {sT}, {sW}, 5")
    a(f"  s_add_u32 {sT}, {sT}, {WQS}")
    a(f"  v_add_u32 v{vQb}, {sT}, v48")
    a(f"  s_mul_i32 {sT}, {sH}, 6")
    a(f"  s_add_u32 {sT}, {sT}, {sU}")
    a(f"  s_lshl_b32 {sT}, {sT}, 11")
    a(f"  s_lshl_b32 {sT2}, {sW}, 7")
    a(f"  s_add_u32 {sT}, {sT}, {sT2}")
    a(f"  s_add_u32 {sT}, {sT}, {QP3}")
    a(f"  v_lshlrev_b32 v{vQp}, 9, v3")
    a(f"  v_bfe_u32 v49, v{vLane}, 1, 3")
    a(f"  v_lshl_add_u32 v{vQp}, v49, 4, v{vQp}")
    a(f"  v_add_u32 v{vQp}, {sT}, v{vQp}")
    MQ = ("s[72:73]", "s[70:71]", "s[24:25]")
    quarter_masks(3, MQ)
    a(f"  s_waitcnt vmcnt({CH*NA}) lgkmcnt(0)")
    if cfg.dyn:
        a(f"  v_readfirstlane_b32 {sC0}, v117")
    if cfg.dyn == 3:
        a(f"  v_mov_b32 v52, 0")
        a(f"  v_lshlrev_b32 v53, 2, v{vLane}")
        a(f"  ds_write_b32 v53, v52 offset:{TQ}")
        a("  s_waitcnt lgkmcnt(0)")
    a(f"  s_add_u32 {T0}, s28, 1")
    a(f"  s_add_u32 {T1}, s29, 1")
    a("  s_barrier")
    stamp("bar1", "pro,pro2")
    a(f"  s_cmp_ge_u32 {sU}, 6")
    a("  s_cbranch_scc1 L_noq")
    QD0, QD1 = 96, 100
    for e in range(8): a(f"  v_mov_b32 v{QD0+e}, 0")
    def breg(st):
        if st < 5: return 76 + 4*st
        return (104, 108, 112, 36, 40)[st-5]
    def areg(st): return (16 + 4*st) if st < 5 else (56 + 4*(st-5))
    for st in range(10):
        a(f"  ds_read_b128 v[{areg(st)}:{areg(st)+3}], v{vQa} offset:{XN + 64*st}")
        a(f"  ds_read_b64_tr_b16 v[{breg(st)}:{breg(st)+1}], v{vQb} offset:{4096*st}")
        a(f"  ds_read_b64_tr_b16 v[{breg(st)+2}:{breg(st)+3}], v{vQb} offset:{4096*st + 512}")
    for st in range(10):
        if st % 2 == 0: a(f"  s_waitcnt lgkmcnt({min(15, 3*(10-st-2))})") if st < 8 else a("  s_waitcnt lgkmcnt(0)")
        D = QD0 if st % 2 == 0 else QD1
        a(f"  v_mfma_f32_16x16x32_bf16 v[{D}:{D+3}], v[{areg(st)}:{areg(st)+3}], v[{breg(st)}:{breg(st)+3}], v[{D}:{D+3}]")
    for e in range(4): a(f"  v_add_f32 v{QD0+e}, v{QD0+e}, v{QD1+e}")
    GP = 48
    a(f"  v_mov_b32 v{GP+1}, {T0}")
    a(f"  v_mov_b32 v{GP+3}, {T1}")
    select4(GP, QD0, QD0+1, QD0+2, QD0+3, MQ)
    a(f"  v_mov_b32 v{GP+2}, v{GP} quad_perm:[1,0,3,2] row_mask:0xf bank_mask:0xf")
    a("  s_mov_b32 exec_lo, 0x55555555")
    a("  s_mov_b32 exec_hi, 0x55555555")
    a(f"  global_store_dwordx4 v{vQp}, v[{GP}:{GP+3}], s[26:27] {cfg.qst}")
    a("  s_mov_b64 exec, -1")
    if cfg.qwait:
        stamp("qst", "pro2")
        a("  s_waitcnt vmcnt(0)")
        stamp("qack", "pro2")
    a.label("L_noq")
    stamp("qpub", "main,pro")
    pace_on = [cfg.pace > 0]
    orig_a = a
    class Paced:
        def __call__(self, text):
            if pace_on[0] and ("buffer_load_dwordx4" in text):
                orig_a(f"  s_waitcnt vmcnt({cfg.pace - 1})")
            orig_a(text)
        def label(self, n): orig_a.label(n)
        def finalize(self): return orig_a.finalize()
    a = Paced()
    mk_srd(srdG, 16, 1966080)
    mk_srd(srdU, 18, 1966080)
    mk_srd(srdD, 20, 1966080)
    vWo = 41
    a(f"  s_cmp_ge_u32 {sCj}, 8")
    a("  s_cbranch_scc1 L_nowo")
    def wo_stage():
        a(f"  v_lshrrev_b32 v3, 4, v{vLane}")
        a(f"  v_mul_u32_u24 v{vWo}, 1280, v3")
        a(f"  v_and_b32 v42, 15, v{vLane}")
        a(f"  v_lshl_add_u32 v{vWo}, v42, 4, v{vWo}")
        a(f"  s_mul_i32 {sT}, {sH}, 192")
        a(f"  s_mul_i32 {sT2}, {sW}, 48")
        a(f"  s_add_u32 {sT}, {sT}, {sT2}")
        a(f"  s_mul_i32 {sT}, {sT}, 1280")
        a(f"  s_lshl_b32 {sT3}, {sCj}, 8")
        a(f"  s_add_u32 {sT}, {sT}, {sT3}")
        a(f"  s_mul_i32 {sT2}, {sW}, {48*256}")
        a(f"  s_add_u32 {sT2}, {sT2}, {WO}")
        for i in range(12):
            a(f"  s_add_u32 m0, {sT2}, {1024*i}")
            a(f"  buffer_load_dwordx4 v{vWo}, {srd(srdO)}, {sT} offen {NT} lds")
            if i < 11: a(f"  s_add_u32 {sT}, {sT}, {4*1280}")
    if cfg.wotail:
        a(f"  v_lshrrev_b32 v3, 4, v{vLane}")
        a(f"  v_mul_u32_u24 v{vWo}, 1280, v3")
        a(f"  v_and_b32 v42, 15, v{vLane}")
        a(f"  v_lshl_add_u32 v{vWo}, v42, 4, v{vWo}")
        a(f"  s_lshl_b32 {sT3}, {sCj}, 8")
    else:
        wo_stage()
    if not cfg.noffn:
        a(f"  s_cmp_ge_u32 {sH}, 24")
        a("  s_cbranch_scc1 L_stg_done")
        a(f"  s_lshl_b32 {sT}, {sH}, 6")
        a(f"  s_lshl_b32 {sT2}, {sW}, 4")
        a(f"  s_add_u32 {sT}, {sT}, {sT2}")
        a(f"  s_mul_i32 {sT}, {sT}, 1280")
        a(f"  s_add_u32 {sT}, {sT}, {sT3}")
        a(f"  s_lshl_b32 {sT2}, {sW}, 12")
        a(f"  s_add_u32 {sT2}, {sT2}, {F2S}")
        for i in range(4):
            a(f"  s_add_u32 m0, {sT2}, {1024*i}")
            a(f"  buffer_load_dwordx4 v{vWo}, {srd(srdD)}, {sT} offen {NT} lds")
            if i < 3: a(f"  s_add_u32 {sT}, {sT}, {4*1280}")
    a("  s_branch L_stg_done")
    a.label("L_nowo")
    if not cfg.noffn:
        a(f"  s_mul_i32 {sT}, {sH}, 3")
        a(f"  s_add_u32 {sT}, {sT}, {sB}")
        a(f"  s_lshr_b32 {sT2}, {sT}, 2")
        a(f"  s_and_b32 {sT}, {sT}, 3")
        a(f"  s_mul_i32 {sT}, {sT}, 160")
        a(f"  s_mul_i32 {sT3}, {sW}, 40")
        a(f"  s_add_u32 {sT}, {sT}, {sT3}")
        a(f"  s_mul_i32 {sT}, {sT}, 3072")
        a(f"  s_lshl_b32 {sT2}, {sT2}, 7")
        a(f"  s_add_u32 {sT}, {sT}, {sT2}")
        a(f"  s_lshl_b32 {sT2}, {sT3}, 7")
        a(f"  s_add_u32 {sT2}, {sT2}, {F1S}")
        a(f"  v_mul_u32_u24 v{vWo}, 3072, v{vG}")
        a(f"  v_lshl_add_u32 v{vWo}, v{vC}, 4, v{vWo}")
        for i in range(5):
            a(f"  s_add_u32 m0, {sT2}, {1024*i}")
            a(f"  buffer_load_dwordx4 v{vWo}, {srd(srdG)}, {sT} offen {NT} lds")
            a(f"  s_add_u32 m0, {sT2}, {20480 + 1024*i}")
            a(f"  buffer_load_dwordx4 v{vWo}, {srd(srdU)}, {sT} offen {NT} lds")
            if i < 4: a(f"  s_add_u32 {sT}, {sT}, {8*3072}")
    a.label("L_stg_done")
    for s in range(NA, R):
        issueT(s); issueK(s); issueV(s)
    sLb_set = True
    if NL:
        a(f"  s_mul_i32 {sLb}, {sW}, {12288 if cfg.wotail else NL*6144}")
        if cfg.wotail:
            a(f"  s_cmp_lt_u32 {sCj}, 8")
            a(f"  s_mov_b32 {sT}, {F2S}")
            a(f"  s_cselect_b32 {sT}, {WO}, {sT}")
            a(f"  s_add_u32 {sLb}, {sLb}, {sT}")
        else:
            a(f"  s_add_u32 {sLb}, {sLb}, {LA}")
    for k in range(NL): issueL(k)
    pace_on[0] = False
    pF, pFH, pMr, pMh, pMs, vH1, vH2, vTr, vP0, vSa, vOi, vXv, pGV, pOB1, pOB2, pAF = 56, 59, 60, 61, 62, 63, 64, 65, 66, 68, 69, 70, 71, 72, 73, 74
    a(f"  v_lshrrev_b32 v8, 4, v{vLane}")
    a(f"  v_mul_u32_u24 v9, 6, v8")
    a(f"  s_mul_i32 {sT}, {sW}, 800")
    a(f"  s_add_u32 {sT}, {sT}, {PART}")
    a(f"  v_lshl_add_u32 v10, v{vC}, 5, {sT}")
    for k in range(3):
        a(f"  v_add_u32 v11, {2*k}, v9")
        a(f"  v_lshrrev_b32 v12, 3, v11")
        a(f"  v_and_b32 v11, 7, v11")
        a(f"  v_lshlrev_b32 v12, 8, v12")
        a(f"  v_lshl_add_u32 v12, v11, 2, v12")
        a(f"  v_add_u32 v{pF+k}, v12, v10")
    a(f"  v_mov_b32 v{pFH}, {sT}")
    a(f"  v_lshlrev_b32 v{pMr}, 3, v{vTid}")
    a(f"  v_mov_b32 v{pMh}, {PART+768}")
    a(f"  s_lshl_b32 {sT}, {sH}, 3")
    a(f"  s_add_u32 {sT2}, {sT}, {sU}")
    a(f"  s_lshl_b32 {sT2}, {sT2}, 11")
    a(f"  s_add_u32 {sT2}, {sT2}, {AP}")
    a(f"  v_lshl_add_u32 v{pMs}, v{vTid}, 4, {sT2}")
    a(f"  s_lshl_b32 {sT2}, {sW}, 1")
    a(f"  s_add_u32 {sT}, {sT}, {sT2}")
    a(f"  s_lshl_b32 {sT}, {sT}, 11")
    a(f"  s_add_u32 {sT}, {sT}, {AP}")
    a(f"  v_lshlrev_b32 v9, 11, v{vHf}")
    a(f"  v_add_u32 v9, {sT}, v9")
    a(f"  v_lshl_add_u32 v{vH1}, v{vCc}, 4, v9")
    a(f"  v_add_u32 v{vH2}, {96*16}, v9")
    a(f"  v_bfe_u32 v9, v{vLane}, 2, 2")
    a(f"  v_lshl_add_u32 v10, v8, 3, v9")
    a(f"  v_lshlrev_b32 v10, 8, v10")
    a(f"  v_and_b32 v11, 3, v{vLane}")
    a(f"  v_lshl_add_u32 v10, v11, 3, v10")
    a(f"  s_lshl_b32 {sT}, {sW}, 6")
    a(f"  s_add_u32 {sT}, {sT}, {WO}")
    a(f"  v_add_u32 v{vTr}, {sT}, v10")
    a(f"  v_lshlrev_b32 v10, 12, v9")
    a(f"  v_and_b32 v12, 1, v8")
    a(f"  v_lshl_add_u32 v10, v12, 6, v10")
    a(f"  v_lshl_add_u32 v10, v11, 4, v10")
    a(f"  s_and_b32 {sT3}, {sCj}, 7")
    a(f"  s_lshl_b32 {sT}, {sT3}, 5")
    a(f"  s_lshl_b32 {sT2}, {sW}, 3")
    a(f"  s_add_u32 {sT}, {sT}, {sT2}")
    a(f"  s_lshl_b32 {sT}, {sT}, 12")
    a(f"  s_lshl_b32 {sT2}, {sH}, 7")
    a(f"  s_add_u32 {sT}, {sT}, {sT2}")
    a(f"  s_add_u32 {sT}, {sT}, {SP3}")
    a(f"  v_add_u32 v{vP0}, {sT}, v10")
    a(f"  v_add_u32 v{vP0+1}, {4*4096}, v{vP0}")
    a(f"  s_lshl_b32 {sT}, {sT3}, 5")
    a(f"  s_add_u32 {sT}, {sT}, {sH}")
    a(f"  s_lshl_b32 {sT}, {sT}, 12")
    a(f"  s_add_u32 {sT}, {sT}, {SP3}")
    a(f"  v_lshl_add_u32 v{vSa}, v{vLane}, 4, {sT}")
    a(f"  v_bfe_u32 v9, v{vLane}, 2, 1")
    a(f"  v_and_b32 v10, 1, v{vG}")
    a(f"  v_lshl_add_u32 v9, v9, 1, v10")
    a(f"  v_lshlrev_b32 v{pGV}, 4, v11")
    a(f"  v_lshl_add_u32 v{pGV}, v9, 2, v{pGV}")
    a(f"  v_mul_u32_u24 v9, 640, v9")
    a(f"  s_min_u32 {sT3}, {sT3}, 4")
    a(f"  s_lshl_b32 {sT}, {sT3}, 7")
    a(f"  s_lshl_b32 {sT2}, {sH}, 2")
    a(f"  s_add_u32 {sT}, {sT}, {sT2}")
    a(f"  v_add3_u32 v9, v9, v11, {sT}")
    a(f"  v_lshlrev_b32 v{vOi}, 1, v9")
    a(f"  global_load_ushort v{vXv}, v{vOi}, s[4:5]")
    a(f"  s_mul_i32 {sT}, {sW}, {OS}")
    a(f"  v_lshl_add_u32 v{pOB1}, v{vLane}, 2, {sT}")
    a(f"  v_lshl_add_u32 v{pOB2}, v{vCc}, 2, {sT}")
    a(f"  v_mul_u32_u24 v{pAF}, {OS}, v11")
    a(f"  v_lshl_add_u32 v{pAF}, v8, 4, v{pAF}")
    a(f"  v_lshlrev_b32 v3, 4, v{vC}")
    for t in range(24): a(f"  v_mov_b32 v{ACC+t}, 0")
    a(f"  v_mov_b32 v{vM}, 0xff800000")
    a(f"  v_mov_b32 v{vL}, 0")
    if not cfg.sflag: a(f"  s_waitcnt vmcnt({CH*(R-NA) + 6*NL + 1})")
    a("  s_barrier")
    for j in range(3):
        a(f"  ds_read_b128 v[{Q+4*j}:{Q+4*j+3}], v3 offset:{QB + 128*j}")
    LIM = (cfg.S if cfg.dyn else 64) - R - NL
    if cfg.dyn:
        P = 128 - 2 * cfg.S if cfg.dyn == 1 else 512 - 8 * cfg.S
        PG = P // 4
        assert cfg.S - NL >= 2 * R
        assert PG + 2 * R < 60
    a(f"  s_mov_b32 {sI}, 0")
    a(f"  s_mov_b32 {sNval}, {R}")
    a(f"  s_mov_b32 {sAlive}, 1")
    if NL: a(f"  s_mov_b32 {sFirst}, 1")
    if cfg.dyn == 3: a("  s_mov_b32 s101, 0")
    a("  s_waitcnt lgkmcnt(0)")
    stamp("qready", "main,pro,pro2")

    t0, t1, t2, sS, mn, al, ee, pl, ph = 100, 101, 102, 103, 104, 105, 106, 107, 108
    def scores(K0):
        for i in range(4):
            for j in range(3):
                a(f"  v_dot2c_f32_bf16 v{t0+j}, v{K0+4*j+i}, v{Q+4*j+i}")
    def softmax(tag):
        a(f"  v_add_f32 v{t0}, v{t0}, v{t1}")
        a(f"  v_add_f32 v{t0}, v{t0}, v{t2}")
        dpp("v_add_f32", t0, "quad_perm:[1,0,3,2]")
        dpp("v_add_f32", t0, "quad_perm:[2,3,0,1]")
        dpp("v_add_f32", t0, "row_half_mirror")
        bf16round(t1, t0)
        a(f"  v_mul_f32 v{t1}, {SCALE}, v{t1}")
        bf16round(sS, t1)
        if cfg.wmax:
            a(f"  v_max_f32 v{mn}, v{sS}, v{sS} row_ror:8 row_mask:0xf bank_mask:0xf")
            for sw in ("16", "32"):
                a(f"  v_mov_b32 v{al}, v{mn}")
                a(f"  v_permlane{sw}_swap_b32 v{mn}, v{al}")
                a(f"  v_max_f32 v{mn}, v{mn}, v{al}")
            a(f"  v_cmp_gt_f32 vcc, v{mn}, v{vM}")
            a(f"  v_max_f32 v{mn}, v{vM}, v{mn}")
        else:
            a(f"  v_max_f32 v{mn}, v{vM}, v{sS}")
            a(f"  v_cmp_gt_f32 vcc, v{sS}, v{vM}")
        a(f"  v_sub_f32 v{al}, v{vM}, v{mn}")
        a(f"  v_sub_f32 v{ee}, v{sS}, v{mn}")
        a(f"  v_mul_f32 v{al}, {LOG2E}, v{al}")
        a(f"  v_mul_f32 v{ee}, {LOG2E}, v{ee}")
        a(f"  v_exp_f32 v{al}, v{al}")
        a(f"  v_exp_f32 v{ee}, v{ee}")
        a(f"  v_mov_b32 v{vM}, v{mn}")
        a(f"  v_fma_f32 v{vL}, v{vL}, v{al}, v{ee}")
        if not cfg.pf32:
            a(f"  v_cvt_pk_bf16_f32 v{pl}, v{ee}, 0")
            a(f"  v_cvt_pk_bf16_f32 v{ph}, 0, v{ee}")
        a(f"  s_cbranch_vccz L_nors{tag}")
        for t in range(24): a(f"  v_mul_f32 v{ACC+t}, v{ACC+t}, v{al}")
        a.label(f"L_nors{tag}")
    def pv(V0):
        if cfg.pf32:
            tp = (110, 112, 114)
            items = [(j, i) for j in range(3) for i in range(4)]
            for n, (j, i) in enumerate(items):
                t = tp[n % 3]
                a(f"  v_lshlrev_b32 v{t}, 16, v{V0+4*j+i}")
                a(f"  v_and_b32 v{t+1}, 0xffff0000, v{V0+4*j+i}")
                if n >= 1:
                    jj, ii = items[n-1]; tt = tp[(n-1) % 3]; acc = ACC+8*jj+2*ii
                    a(f"  v_pk_fma_f32 v[{acc}:{acc+1}], v[{tt}:{tt+1}], v[{ee}:{ee+1}], v[{acc}:{acc+1}] op_sel_hi:[1,0,1]")
            jj, ii = items[-1]; tt = tp[11 % 3]; acc = ACC+8*jj+2*ii
            a(f"  v_pk_fma_f32 v[{acc}:{acc+1}], v[{tt}:{tt+1}], v[{ee}:{ee+1}], v[{acc}:{acc+1}] op_sel_hi:[1,0,1]")
            return
        for j in range(3):
            for i in range(4):
                a(f"  v_dot2c_f32_bf16 v{ACC+8*j+2*i}, v{V0+4*j+i}, v{pl}")
                a(f"  v_dot2c_f32_bf16 v{ACC+8*j+2*i+1}, v{V0+4*j+i}, v{ph}")
    def zero_t():
        for t in (t0, t1, t2): a(f"  v_mov_b32 v{t}, 0")
    a.label("L_loop")
    for s in range(R):
        zero_t()
        a(f"  s_waitcnt vmcnt({3 + CH*(R-1)})")
        if cfg.sflag and s == R - 1:
            a(f"  s_cmp_lg_u32 {sI}, {R-1}")
            a(f"  s_cbranch_scc1 L_nosig")
            a(f"  s_lshl_b32 {sT}, {sW}, 2")
            a(f"  v_mov_b32 v109, {sT}")
            a(f"  v_mov_b32 v110, 1")
            a(f"  ds_write_b32 v109, v110 offset:{TQ + 240}")
            a.label("L_nosig")
        if cfg.dyn:
            a(f"  v_readfirstlane_b32 {sT}, v{TKR+s}")
        scores(Kr(s, 0))
        if cfg.dyn == 3:
            a(f"  s_cmp_lt_u32 {sI}, {LIM}")
            a(f"  s_cbranch_scc1 L_st{s}")
            a(f"  s_cmp_eq_u32 {sAlive}, 0")
            a(f"  s_cbranch_scc1 L_st{s}")
            a(f"  s_sub_u32 {sT2}, {sI}, {LIM}")
            a(f"  s_lshl_b32 {sT2}, {sT2}, 2")
            a(f"  v_mov_b32 v109, {sT2}")
            a(f"  s_cmp_lg_u32 {sW}, 0")
            a(f"  s_cbranch_scc1 L_rd{s}")
            a(f"  s_sub_u32 {sT}, {sT}, {sC0}")
            a(f"  s_add_u32 {sT2}, {sT}, 1")
            a(f"  s_cmp_lt_u32 {sT}, {PG}")
            a(f"  s_cselect_b32 {sT}, {sT2}, 0xffff")
            a(f"  v_mov_b32 v110, {sT}")
            a(f"  ds_write_b32 v109, v110 offset:{TQ}")
            a(f"  s_branch L_hv{s}")
            a.label(f"L_rd{s}")
            a(f"  ds_read_b32 v110, v109 offset:{TQ}")
            a(f"  s_add_u32 s101, s101, 1")
            a(f"  s_cmp_gt_u32 s101, 0x400000")
            a("  s_cbranch_scc1 L_end")
            a("  s_waitcnt lgkmcnt(0)")
            a(f"  v_readfirstlane_b32 {sT}, v110")
            a(f"  s_cmp_eq_u32 {sT}, 0")
            a(f"  s_cbranch_scc1 L_rd{s}")
            a.label(f"L_hv{s}")
            a(f"  s_lshl_b32 {sT2}, {sT}, 2")
            a(f"  s_add_u32 {sT2}, {sT2}, {sW}")
            a(f"  s_sub_u32 {sT2}, {sT2}, 4")
            a(f"  s_mul_i32 {sT2}, {sT2}, 3072")
            a(f"  s_add_u32 {sOff}, {sT2}, {sPool}")
            a(f"  s_cmp_lg_u32 {sT}, 0xffff")
            a(f"  s_cselect_b32 {sAlive}, 1, 0")
            a.label(f"L_st{s}")
        elif cfg.dyn:
            a(f"  s_sub_u32 {sT}, {sT}, {sC0}")
            if cfg.dyn == 2:
                a(f"  s_mul_i32 {sT2}, {sT}, 3072")
                a(f"  s_add_u32 {sT2}, {sT2}, {sPool}")
            a(f"  s_cmp_lt_u32 {sT}, {P}")
            a(f"  s_cselect_b32 {sT}, {sAlive}, 0")
            a(f"  s_cmp_lt_u32 {sI}, {LIM}")
            a(f"  s_cselect_b32 {sAlive}, 1, {sT}")
            if cfg.dyn == 2:
                a(f"  s_cselect_b32 {sOff}, {sOff}, {sT2}")
        else:
            a(f"  s_cmp_lt_u32 {sI}, {LIM}")
            a(f"  s_cselect_b32 {sAlive}, 1, 0")
        a(f"  s_add_u32 {sNval}, {sNval}, {sAlive}")
        a(f"  s_cmp_eq_u32 {sAlive}, 0")
        a(f"  s_cselect_b32 s{srdK+2}, 0, s{srdK+2}")
        a(f"  s_cselect_b32 s{srdV+2}, 0, s{srdV+2}")
        if cfg.dyn:
            a(f"  s_cmp_ge_u32 {sI}, {LIM - R}")
            a(f"  s_cselect_b32 {sT}, {sAlive}, 0")
            if cfg.dyn == 3:
                a(f"  s_cmp_eq_u32 {sW}, 0")
                a(f"  s_cselect_b32 {sT}, {sT}, 0")
            a(f"  s_lshl_b32 s{srdT+2}, {sT}, 16")
            issueT(s)
        issueK(s)
        softmax(s)
        a(f"  s_waitcnt vmcnt({CH*(R-1) + (4 if cfg.dyn else 3)})")
        pv(Vr(s, 0))
        issueV(s)
        a(f"  s_add_u32 {sI}, {sI}, 1")
        a(f"  s_cmp_lt_u32 {sI}, {sNval}")
        if s < R - 1 or NL:
            a("  s_cbranch_scc0 L_tail")
        else:
            a("  s_cbranch_scc1 L_loop")
    if NL:
        a(f"  s_cmp_eq_u32 {sFirst}, 0")
        a("  s_cbranch_scc1 L_loop")
        LK = 16
        a(f"  s_mov_b32 {sFirst}, 0")
        a(f"  v_lshl_add_u32 v3, v{vLane}, 4, {sLb}")
        a(f"  s_waitcnt vmcnt({CH*R})")
        a(f"  s_mov_b32 {sT2}, 0")
        a.label("L_lds")
        for j in range(6):
            a(f"  ds_read_b128 v[{LK+4*j}:{LK+4*j+3}], v3 offset:{1024*j}")
        zero_t()
        a(f"  v_add_u32 v3, 6144, v3")
        a("  s_waitcnt lgkmcnt(3)")
        scores(LK)
        softmax("L")
        a("  s_waitcnt lgkmcnt(0)")
        pv(LK + 12)
        a(f"  s_add_u32 {sT2}, {sT2}, 1")
        a(f"  s_cmp_lt_u32 {sT2}, {NL}")
        a("  s_cbranch_scc1 L_lds")
        a("  s_branch L_loop")
    a.label("L_tail")
    stamp("loopend", "main,tail,tail2,tail3,pro2")

    vGv = 19
    assert cfg.wmax and not cfg.wotail
    tA, tB = 100, 101
    a(f"  v_mov_b32 v{tA}, v{vM}")
    dpp("v_add_f32", vL, "row_ror:8")
    for t in range(12): a(f"  v_permlane32_swap_b32 v{ACC+t}, v{ACC+t+12}")
    a(f"  v_mov_b32 v{tB}, v{vL}")
    a(f"  v_permlane16_swap_b32 v{vL}, v{tB}")
    for t in range(12): a(f"  v_add_f32 v{ACC+t}, v{ACC+t}, v{ACC+t+12}")
    a(f"  v_add_f32 v{vL}, v{vL}, v{tB}")
    for t in range(6): a(f"  v_permlane16_swap_b32 v{ACC+t}, v{ACC+t+6}")
    a(f"  v_mov_b32 v{tB}, v{vL}")
    a(f"  v_permlane32_swap_b32 v{vL}, v{tB}")
    for t in range(6): a(f"  v_add_f32 v{ACC+t}, v{ACC+t}, v{ACC+t+6}")
    a(f"  v_add_f32 v{tB}, v{vL}, v{tB}")
    for t in range(6): dpp("v_add_f32", ACC+t, "row_ror:8")
    for k in range(3):
        a(f"  ds_write_b64 v{pF+k}, v[{ACC+2*k}:{ACC+2*k+1}]")
    a(f"  ds_write_b64 v{pFH}, v[{tA}:{tB}] offset:768")
    a("  s_waitcnt lgkmcnt(0)")
    a("  s_barrier")
    stamp("tbar1", "tail")
    a(f"  s_cmp_ge_u32 {sW}, 2")
    a("  s_cbranch_scc1 L_nomerge")
    MB = 100
    for w2 in range(4):
        a(f"  ds_read_b64 v[{MB+8+2*w2}:{MB+8+2*w2+1}], v{pMh} offset:{800*w2}")
    for w2 in range(4):
        a(f"  ds_read_b64 v[{MB+2*w2}:{MB+2*w2+1}], v{pMr} offset:{PART+800*w2}")
    a(f"  v_cmp_eq_u32 vcc, 96, v{vTid}")
    a(f"  s_mov_b64 s[70:71], vcc")
    a(f"  v_cmp_ge_u32 vcc, 96, v{vTid}")
    a(f"  s_mov_b64 s[72:73], vcc")
    a(f"  v_mov_b32 v77, {T0}")
    a(f"  v_mov_b32 v79, {T1}")
    a("  s_waitcnt lgkmcnt(4)")
    mM = [MB+8+2*w2 for w2 in range(4)]; mL = [x+1 for x in mM]
    a(f"  v_max_f32 v29, v{mM[0]}, v{mM[1]}")
    a(f"  v_max3_f32 v29, v29, v{mM[2]}, v{mM[3]}")
    for w2 in range(4): a(f"  v_sub_f32 v{mM[w2]}, v{mM[w2]}, v29")
    for w2 in range(4): a(f"  v_mul_f32 v{mM[w2]}, {LOG2E}, v{mM[w2]}")
    for w2 in range(4): a(f"  v_exp_f32 v{mM[w2]}, v{mM[w2]}")
    a(f"  v_mul_f32 v30, v{mL[0]}, v{mM[0]}")
    for w2 in range(1, 4): a(f"  v_fmac_f32 v30, v{mL[w2]}, v{mM[w2]}")
    a("  s_waitcnt lgkmcnt(0)")
    a(f"  v_mul_f32 v76, v{MB}, v{mM[0]}")
    a(f"  v_mul_f32 v78, v{MB+1}, v{mM[0]}")
    for w2 in range(1, 4):
        a(f"  v_fmac_f32 v76, v{MB+2*w2}, v{mM[w2]}")
        a(f"  v_fmac_f32 v78, v{MB+2*w2+1}, v{mM[w2]}")
    a(f"  v_cndmask_b32 v76, v76, v29, s[70:71]")
    a(f"  v_cndmask_b32 v78, v78, v30, s[70:71]")
    a(f"  s_mov_b64 exec, s[72:73]")
    restamp("stiss", "tail3")
    a(f"  global_store_dwordx4 v{pMs}, v[76:79], s[26:27] {cfg.tst}")
    if cfg.diag == "tail3":
        a("  s_waitcnt vmcnt(0)")
        restamp("stack", "tail3")
    a(f"  s_mov_b64 exec, -1")
    a.label("L_nomerge")
    stamp("apub", "main,tail,tail2")
    a(f"  s_cmp_ge_u32 {sCj}, 8")
    a("  s_cbranch_scc1 L_diag")
    HG = 80
    def h1_data():
        for k in range(3):
            a(f"  global_load_dwordx4 v[{HG+4*k}:{HG+4*k+3}], v{vH1}, s[26:27] offset:{512*k} {cfg.tld}")
    def h1_head():
        a(f"  global_load_dwordx4 v[{HG+12}:{HG+15}], v{vH2}, s[26:27] {cfg.tld}")
    restamp("h1iss", "tail2")
    if cfg.pp:
        a(f"  global_load_dwordx4 v[44:47], v{vH2}, s[26:27] {cfg.tld}")
        for k in range(3):
            a(f"  global_load_dwordx4 v[{32+4*k}:{35+4*k}], v{vH1}, s[26:27] offset:{512*k} {cfg.tld}")
    else:
        h1_head(); h1_data()
    BFt = (208, 232) if R <= 2 else (232, 32)
    assert R <= 3 and not (R > 2 and cfg.pp)
    def b_frags():
        for tt in range(2):
            for s in range(6):
                r = BFt[tt] + 4*s
                a(f"  ds_read_b64_tr_b16 v[{r}:{r+1}], v{vTr} offset:{8192*s + 32*tt}")
                a(f"  ds_read_b64_tr_b16 v[{r+2}:{r+3}], v{vTr} offset:{8192*s + 32*tt + 1024}")
    b_frags()
    a(f"  ds_read_b32 v{vGv}, v{pGV} offset:{GV}")
    if cfg.pp:
        def h1_issue(base):
            a(f"  global_load_dwordx4 v[{base+12}:{base+15}], v{vH2}, s[26:27] {cfg.tld}")
            for k in range(3):
                a(f"  global_load_dwordx4 v[{base+4*k}:{base+4*k+3}], v{vH1}, s[26:27] offset:{512*k} {cfg.tld}")
        pipelined_poll("h1", h1_issue, 4, 32, 120, HG, [0, 4, 8, 12], 20, True)
    else:
        a("  s_waitcnt vmcnt(0)")
        check_tags([HG, HG+4, HG+8, HG+12], 20)
        a("  s_cbranch_vccz L_h1ok")
        a.label("L_h1hdr")
        spin_guard(cfg.sleep)
        h1_head(); h1_data()
        a("  s_waitcnt vmcnt(0)")
        check_tags([HG, HG+4, HG+8, HG+12], 20)
        a("  s_cbranch_vccnz L_h1hdr")
    a.label("L_h1ok")
    stamp("h1ok", "tail,tail2")
    gm, gl = HG+12, HG+14
    a(f"  v_mov_b32 v20, v{gm}")
    a(f"  v_mov_b32 v21, v{gm}")
    a(f"  v_permlane32_swap_b32 v20, v21")
    a(f"  v_max_f32 v20, v20, v21")
    a(f"  v_sub_f32 v21, v{gm}, v20")
    a(f"  v_mul_f32 v21, {LOG2E}, v21")
    a(f"  v_exp_f32 v21, v21")
    a(f"  v_mul_f32 v24, v{gl}, v21")
    a(f"  v_mov_b32 v25, v24")
    a(f"  v_permlane32_swap_b32 v24, v25")
    a(f"  v_add_f32 v24, v24, v25")
    a(f"  v_rcp_f32 v24, v24")
    a(f"  v_mul_f32 v21, v21, v24")
    vals = [HG, HG+2, HG+4, HG+6, HG+8, HG+10]
    for r in vals: a(f"  v_mul_f32 v{r}, v{r}, v21")
    a(f"  v_permlane32_swap_b32 v{vals[0]}, v{vals[2]}")
    a(f"  v_permlane32_swap_b32 v{vals[1]}, v{vals[3]}")
    a(f"  v_mov_b32 v24, v{vals[4]}")
    a(f"  v_mov_b32 v25, v{vals[5]}")
    a(f"  v_add_f32 v{vals[0]}, v{vals[0]}, v{vals[2]}")
    a(f"  v_add_f32 v{vals[1]}, v{vals[1]}, v{vals[3]}")
    a(f"  v_permlane32_swap_b32 v{vals[4]}, v24")
    a(f"  v_permlane32_swap_b32 v{vals[5]}, v25")
    a(f"  v_cvt_pk_bf16_f32 v26, v{vals[0]}, v{vals[1]}")
    a(f"  v_add_f32 v{vals[4]}, v{vals[4]}, v24")
    a(f"  v_add_f32 v{vals[5]}, v{vals[5]}, v25")
    a(f"  v_cvt_pk_bf16_f32 v27, v{vals[4]}, v{vals[5]}")
    a(f"  ds_write_b32 v{pOB1}, v26 offset:{OB}")
    a(f"  ds_write_b32 v{pOB2}, v27 offset:{OB+256}")
    a(f"  v_and_b32 v8, 16, v{vLane}")
    a(f"  v_cmp_ne_u32 s[72:73], 0, v8")
    D0, D1 = 100, 104
    for e in range(8): a(f"  v_mov_b32 v{D0+e}, 0")
    a(f"  v_mov_b32 v109, {T0}")
    a(f"  v_mov_b32 v111, {T1}")
    a(f"  v_mov_b32 v113, {T0}")
    a(f"  v_mov_b32 v115, {T1}")
    a("  s_waitcnt lgkmcnt(0)")
    a("  s_barrier")
    AF = ACC
    for s in range(6):
        a(f"  ds_read_b128 v[{AF+4*s}:{AF+4*s+3}], v{pAF} offset:{OB+64*s}")
    a("  s_waitcnt lgkmcnt(4)")
    for s in range(6):
        if s in (2, 4): a(f"  s_waitcnt lgkmcnt({4 - s})")
        for tt, D in ((0, D0), (1, D1)):
            r = BFt[tt] + 4*s
            a(f"  v_mfma_f32_16x16x32_bf16 v[{D}:{D+3}], v[{AF+4*s}:{AF+4*s+3}], v[{r}:{r+3}], v[{D}:{D+3}]")
    for tt, D in ((0, D0), (1, D1)):
        g = 108 + 4*tt
        a(f"  v_cndmask_b32 v{g}, v{D}, v{D+2}, s[72:73]")
        a(f"  v_cndmask_b32 v{g+2}, v{D+1}, v{D+3}, s[72:73]")
    a("  s_mov_b32 exec_hi, 0")
    a(f"  global_store_dwordx4 v{vP0}, v[108:111], s[26:27] {cfg.tst}")
    a(f"  global_store_dwordx4 v{vP0+1}, v[112:115], s[26:27] {cfg.tst}")
    if cfg.diag == "tail3":
        restamp("st2iss", "tail3")
        a("  s_waitcnt vmcnt(0)")
        restamp("st2ack", "tail3")
    a("  s_mov_b32 exec_hi, -1")
    stamp("spub", "main,tail,tail2")
    a(f"  s_cmp_lg_u32 {sW}, 0")
    a("  s_cbranch_scc1 L_fin_end")
    SG = 80
    if cfg.pp:
        def s_issue(base):
            for i in range(4):
                a(f"  global_load_dwordx4 v[{base+4*i}:{base+4*i+3}], v{vSa}, s[26:27] offset:{1024*i} {cfg.tld}")
        pipelined_poll("h2", s_issue, 4, 32, 120, SG, [0, 4, 8, 12], 20, False)
    else:
        a.label("L_spoll")
        restamp("h2iss", "tail2")
        for i in range(4):
            a(f"  global_load_dwordx4 v[{SG+4*i}:{SG+4*i+3}], v{vSa}, s[26:27] offset:{1024*i} {cfg.tld}")
        a("  s_waitcnt vmcnt(0)")
        check_tags([SG, SG+4, SG+8, SG+12], 20)
        a("  s_cbranch_vccz L_sok")
        spin_guard(cfg.sleep)
        a("  s_branch L_spoll")
    a.label("L_sok")
    stamp("h2ok", "tail,tail2")
    for i in range(1, 4):
        a(f"  v_add_f32 v{SG}, v{SG}, v{SG+4*i}")
        a(f"  v_add_f32 v{SG+2}, v{SG+2}, v{SG+4*i+2}")
    reduce_hi([SG, SG+2], [20, 21])
    a(f"  v_and_b32 v20, 8, v{vLane}")
    a(f"  v_cmp_ne_u32 vcc, 0, v20")
    a(f"  v_cndmask_b32 v21, v{SG}, v{SG+2}, vcc")
    bf16round(21, 21)
    a(f"  v_mul_f32 v21, v21, v{vGv}")
    bf16round(21, 21)
    a(f"  v_lshlrev_b32 v22, 16, v{vXv}")
    a(f"  v_add_f32 v21, v21, v22")
    a(f"  v_cvt_pk_bf16_f32 v21, v21, v21")
    a("  s_mov_b64 exec, 0xffff")
    a(f"  global_store_short v{vOi}, v21, s[22:23] {cfg.ost}")
    a("  s_mov_b64 exec, -1")
    a(f"  s_add_u32 {sT}, {sH}, {sCj}")
    a(f"  s_cmp_lg_u32 {sT}, 0")
    a("  s_cbranch_scc1 L_fin_end")
    a(f"  v_mov_b32 v22, {T0}")
    a(f"  v_mov_b32 v23, {T1}")
    a(f"  v_mov_b32 v24, 0")
    a("  s_mov_b64 exec, 1")
    a(f"  global_store_dwordx2 v24, v[22:23], s[26:27] sc1")
    a("  s_mov_b64 exec, -1")
    a.label("L_fin_end")
    stamp("end", "main,tail,pro2")
    a("  s_branch L_diag")

    a.label("L_svc")
    a("  s_mov_b32 s101, 0")
    sCb, sS_ = "s61", "s62"
    qA = 8
    a(f"  v_lshlrev_b32 v3, 11, v{vHf}")
    a(f"  v_lshl_add_u32 v3, v{vCc}, 4, v3")
    a(f"  s_mul_i32 {sT}, {sH}, {6*2048}")
    a(f"  s_lshl_b32 {sT2}, {sB}, 9")
    a(f"  s_add_u32 {sT}, {sT}, {sT2}")
    a(f"  s_add_u32 {sT}, {sT}, {QP3}")
    a(f"  v_add_u32 v{qA}, {sT}, v3")
    a(f"  v_add_u32 v{qA+1}, 4096, v{qA}")
    a(f"  v_add_u32 v{qA+2}, 8192, v{qA}")
    a(f"  v_lshlrev_b32 v11, 2, v{vCc}")
    a("  s_waitcnt lgkmcnt(0)")
    a("  s_load_dwordx2 s[28:29], s[26:27], 0")
    mk_srd(srdG, 16, 1966080)
    mk_srd(srdU, 18, 1966080)
    mk_srd(srdD, 20, 1966080)
    a("  s_waitcnt lgkmcnt(0)")
    a(f"  s_add_u32 {T0}, s28, 1")
    a(f"  s_add_u32 {T1}, s29, 1")
    a("  s_barrier")
    GQ = 16
    if cfg.dyn:
        a(f"  s_lshl_b32 {sT}, {sH}, 3")
        a(f"  s_add_u32 {sT2}, {sT}, {sU}")
        a(f"  s_lshl_b32 {sT2}, {sT2}, 4")
        a(f"  s_add_u32 {sT2}, {sT2}, {RD}")
        a(f"  v_mov_b32 v12, {sT2}")
        a(f"  v_mov_b32 v40, 0")
        a(f"  v_mov_b32 v41, {T0}")
        a(f"  v_mov_b32 v42, 0")
        a(f"  v_mov_b32 v43, {T1}")
        a("  s_mov_b64 exec, 1")
        a(f"  global_store_dwordx4 v12, v[40:43], s[26:27] sc1")
        a("  s_mov_b64 exec, -1")
        a(f"  s_xor_b32 {sT2}, {sU}, 1")
        a(f"  s_add_u32 {sT2}, {sT2}, {sT}")
        a(f"  s_lshl_b32 {sT2}, {sT2}, 4")
        a(f"  s_add_u32 {sT2}, {sT2}, {RD}")
        a(f"  v_mov_b32 v12, {sT2}")
    if cfg.qpp:
        def q_issue(base):
            for k in range(3):
                a(f"  global_load_dwordx4 v[{base+4*k}:{base+4*k+3}], v{qA+k}, s[26:27] {cfg.qld}")
            a(f"  global_load_dwordx4 v[{base+12}:{base+15}], v12, s[26:27] sc1")
        assert cfg.dyn
        save = cfg.ppsleep; cfg.ppsleep = cfg.qppsleep
        pipelined_poll("q", q_issue, 4, 44, 60, GQ, [0, 4, 8, 12], 34, False)
        cfg.ppsleep = save
    else:
        a.label("L_qpoll")
        for k in range(3):
            a(f"  global_load_dwordx4 v[{GQ+4*k}:{GQ+4*k+3}], v{qA+k}, s[26:27] {cfg.qld}")
        if cfg.dyn:
            a(f"  global_load_dwordx4 v[{GQ+12}:{GQ+15}], v12, s[26:27] sc1")
        a("  s_waitcnt vmcnt(0)")
        check_tags([GQ, GQ+4, GQ+8] + ([GQ+12] if cfg.dyn else []), 34)
        a("  s_cbranch_vccz L_qgot")
        spin_guard()
        a("  s_branch L_qpoll")
    a.label("L_qgot")
    qv = [GQ, GQ+2, GQ+4, GQ+6, GQ+8, GQ+10]
    for r, t in zip(qv, range(34, 40)): a(f"  v_mov_b32 v{t}, v{r}")
    for r, t in zip(qv, range(34, 40)): a(f"  v_permlane32_swap_b32 v{r}, v{t}")
    for r, t in zip(qv, range(34, 40)): a(f"  v_add_f32 v{r}, v{r}, v{t}")
    for k in range(3): a(f"  v_cvt_pk_bf16_f32 v{34+k}, v{GQ+4*k}, v{GQ+4*k+2}")
    for k in range(3): a(f"  ds_write_b32 v11, v{34+k} offset:{QB + 128*k}")
    a("  s_waitcnt lgkmcnt(0)")
    a("  s_barrier")
    a("  s_waitcnt vmcnt(0)")
    stamp("fstart", "ffn")
    if cfg.noffn:
        a(f"  v_mov_b32 v8, 1.0")
        a(f"  v_mov_b32 v9, 1.0")
        a(f"  v_mov_b32 v10, 1.0")
        a(f"  v_mov_b32 v11, 1.0")
        a(f"  v_lshlrev_b32 v3, 4, v{vLane}")
        a("  s_mov_b64 exec, 0xf")
        a(f"  ds_write_b128 v3, v[8:11] offset:{GV}")
        a("  s_waitcnt lgkmcnt(0)")
        a("  s_branch L_end")
    fA, fB, fB2 = 10, 11, 12
    if cfg.sflag:
        a(f"  v_mov_b32 v3, {TQ + 240}")
        a.label("L_sfw")
        a("  s_sleep 2")
        a("  ds_read_b128 v[16:19], v3")
        a(f"  s_add_u32 s101, s101, 1")
        a(f"  s_cmp_gt_u32 s101, 0x400000")
        a("  s_cbranch_scc1 L_end")
        a("  s_waitcnt lgkmcnt(0)")
        a("  v_and_b32 v16, v16, v17")
        a("  v_and_b32 v18, v18, v19")
        a("  v_and_b32 v16, v16, v18")
        a("  v_readfirstlane_b32 s61, v16")
        a("  s_cmp_eq_u32 s61, 1")
        a("  s_cbranch_scc0 L_sfw")
    a(f"  s_cmp_lt_u32 {sCj}, 8")
    a("  s_cbranch_scc1 L_nof1")
    a(f"  s_mul_i32 {sI}, {sH}, 3")
    a(f"  s_add_u32 {sI}, {sI}, {sB}")
    a(f"  s_lshr_b32 {sCb}, {sI}, 2")
    a(f"  s_and_b32 {sS_}, {sI}, 3")
    a(f"  v_lshrrev_b32 v3, 4, v{vLane}")
    a(f"  v_and_b32 v13, 3, v{vLane}")
    a(f"  v_bfe_u32 v14, v{vLane}, 2, 2")
    a(f"  v_mul_u32_u24 v{fA}, {XS}, v13")
    a(f"  v_lshl_add_u32 v{fA}, v3, 4, v{fA}")
    a(f"  s_mul_i32 {sT}, {sS_}, 320")
    a(f"  v_add_u32 v{fA}, {sT}, v{fA}")
    a(f"  v_lshl_add_u32 v15, v3, 3, v14")
    a(f"  v_lshlrev_b32 v15, 7, v15")
    a(f"  v_lshl_add_u32 v{fB}, v13, 3, v15")
    a(f"  v_add_u32 v{fB}, {F1S}, v{fB}")
    FA, FB, FDd = 16, 40, 120
    for st in range(5):
        a(f"  ds_read_b128 v[{FA+4*st}:{FA+4*st+3}], v{fA} offset:{XN + 64*st}")
    for t in range(32): a(f"  v_mov_b32 v{FDd+t}, 0")
    quarter_masks(3, MQ)
    for mat in range(2):
        for t in range(4):
            for st in range(5):
                r = FB + 4*(5*t + st)
                a(f"  ds_read_b64_tr_b16 v[{r}:{r+1}], v{fB} offset:{20480*mat + 4096*st + 32*t}")
                a(f"  ds_read_b64_tr_b16 v[{r+2}:{r+3}], v{fB} offset:{20480*mat + 4096*st + 32*t + 512}")
            a("  s_waitcnt lgkmcnt(0)")
        for st in range(5):
            for t in range(4):
                r = FB + 4*(5*t + st); D = FDd + 4*(4*mat + t)
                a(f"  v_mfma_f32_16x16x32_bf16 v[{D}:{D+3}], v[{FA+4*st}:{FA+4*st+3}], v[{r}:{r+3}], v[{D}:{D+3}]")
    a(f"  s_lshl_b32 {sT}, {sI}, 11")
    a(f"  s_add_u32 {sT}, {sT}, {G1}")
    a(f"  v_lshl_add_u32 v13, v{vLane}, 4, {sT}")
    for mat in range(2):
        g = 32 + 4*mat
        for i in range(4):
            Dm = FDd + 16*mat + i
            select4(g+i, Dm, Dm+4, Dm+8, Dm+12, MQ)
        a(f"  global_store_dwordx4 v13, v[{g}:{g+3}], s[26:27] offset:{1024*mat} {cfg.hst}")
    def flag_store(vaddr):
        a("  v_mov_b32 v40, 0")
        a(f"  v_mov_b32 v41, {T0}")
        a("  v_mov_b32 v42, 0")
        a(f"  v_mov_b32 v43, {T1}")
        a("  s_waitcnt vmcnt(0)")
        a("  s_mov_b64 exec, 1")
        a(f"  global_store_dwordx4 v{vaddr}, v[40:43], s[26:27] {cfg.pst}")
        a("  s_mov_b64 exec, -1")
    a(f"  s_lshl_b32 {sT}, {sI}, 4")
    a(f"  s_add_u32 {sT}, {sT}, {F1}")
    a(f"  v_mov_b32 v14, {sT}")
    flag_store(14)
    stamp("f1pub", "ffn")
    a(f"  s_lshl_b32 {sT}, {sCb}, 6")
    a(f"  s_add_u32 {sT}, {sT}, {F1}")
    a(f"  v_and_b32 v15, 3, v{vLane}")
    a(f"  v_lshl_add_u32 v15, v15, 4, {sT}")
    a.label("L_f1poll")
    a(f"  global_load_dwordx4 v[44:47], v15, s[26:27] {cfg.pld}")
    a("  s_waitcnt vmcnt(0)")
    check_tags([44], 64)
    a("  s_cbranch_vccz L_f1ok")
    spin_guard(cfg.fsleep)
    a("  s_branch L_f1poll")
    a.label("L_f1ok")
    a(f"  s_lshl_b32 {sT}, {sCb}, 13")
    a(f"  s_lshl_b32 {sT2}, {sS_}, 8")
    a(f"  s_add_u32 {sT}, {sT}, {sT2}")
    a(f"  s_add_u32 {sT}, {sT}, {G1}")
    a(f"  v_lshrrev_b32 v3, 4, v{vLane}")
    a(f"  v_lshlrev_b32 v14, 11, v3")
    a(f"  v_and_b32 v15, 15, v{vLane}")
    a(f"  v_lshl_add_u32 v14, v15, 4, v14")
    a(f"  v_add_u32 v14, {sT}, v14")
    FGg = 48
    for mat in range(2):
        a(f"  global_load_dwordx4 v[{FGg+4*mat}:{FGg+4*mat+3}], v14, s[26:27] offset:{1024*mat} {cfg.hld}")
    a("  s_waitcnt vmcnt(0)")
    stamp("f1ok", "ffn")
    fv = list(range(FGg, FGg+8))
    reduce_hi(fv, list(range(64, 72)), rors=())
    select4(72, FGg, FGg+1, FGg+2, FGg+3, MQ)
    select4(73, FGg+4, FGg+5, FGg+6, FGg+7, MQ)
    bf16round(72, 72)
    bf16round(73, 73)
    a("  v_mul_f32 v74, v72, v72")
    a("  v_mul_f32 v74, v74, v72")
    a(f"  v_mul_f32 v74, {f32(0.044715)}, v74")
    a("  v_add_f32 v74, v72, v74")
    a(f"  v_mul_f32 v74, {f32(-2.0*0.7978845608028654*1.4426950408889634)}, v74")
    a("  v_exp_f32 v74, v74")
    a("  v_add_f32 v74, 1.0, v74")
    a("  v_rcp_f32 v74, v74")
    a("  v_mul_f32 v74, v72, v74")
    bf16round(74, 74)
    a("  v_mul_f32 v74, v74, v73")
    a("  v_cvt_pk_bf16_f32 v74, v74, v74")
    a("  v_mov_b32 v75, v74 quad_perm:[1,0,3,2] row_mask:0xf bank_mask:0xf")
    a(f"  v_perm_b32 v76, v75, v74, {sPermLo}")
    a("  v_mov_b32 v78, v76")
    a("  v_permlane16_swap_b32 v76, v78")
    a(f"  v_mov_b32 v77, {T0}")
    a(f"  v_mov_b32 v79, {T1}")
    a(f"  s_lshl_b32 {sT}, {sI}, 8")
    a(f"  s_add_u32 {sT}, {sT}, {G2}")
    a(f"  v_lshlrev_b32 v3, 7, v{vHf}")
    a(f"  v_lshl_add_u32 v3, v15, 3, v3")
    a(f"  v_add_u32 v3, {sT}, v3")
    a("  s_mov_b32 exec_lo, 0x00005555")
    a("  s_mov_b32 exec_hi, 0x00005555")
    a(f"  global_store_dwordx4 v3, v[76:79], s[26:27] {cfg.pst}")
    a("  s_mov_b64 exec, -1")
    a("  s_branch L_diag")
    a.label("L_nof1")
    a(f"  s_cmp_ge_u32 {sH}, 24")
    a("  s_cbranch_scc1 L_nof2")
    a(f"  s_lshl_b32 {sT}, {sH}, 10")
    a(f"  s_add_u32 {sT}, {sT}, {G2}")
    a(f"  v_lshl_add_u32 v14, v{vLane}, 4, {sT}")
    a(f"  v_lshrrev_b32 v3, 4, v{vLane}")
    a(f"  v_bfe_u32 v15, v{vLane}, 2, 2")
    a(f"  v_lshl_add_u32 v15, v3, 3, v15")
    a(f"  v_lshlrev_b32 v15, 8, v15")
    a(f"  v_and_b32 v13, 3, v{vLane}")
    a(f"  v_lshl_add_u32 v{fB2}, v13, 3, v15")
    a(f"  v_add_u32 v{fB2}, {F2S}, v{fB2}")
    a.label("L_f2poll")
    a(f"  global_load_dwordx4 v[48:51], v14, s[26:27] {cfg.pld}")
    a("  s_waitcnt vmcnt(0)")
    check_tags([48], 64)
    a("  s_cbranch_vccz L_f2ok")
    spin_guard(cfg.fsleep)
    a("  s_branch L_f2poll")
    a.label("L_f2ok")
    stamp("f2ok", "ffn")
    F2B = 80
    for t in range(8):
        for st in range(2):
            r = F2B + 8*t + 4*st
            a(f"  ds_read_b64_tr_b16 v[{r}:{r+1}], v{fB2} offset:{8192*st + 32*t}")
            a(f"  ds_read_b64_tr_b16 v[{r+2}:{r+3}], v{fB2} offset:{8192*st + 32*t + 1024}")
        if t % 2 == 1: a("  s_waitcnt lgkmcnt(0)")
    a(f"  v_and_b32 v3, 1, v{vG}")
    a(f"  v_mul_u32_u24 v3, {2*HS}, v3")
    a(f"  v_lshrrev_b32 v14, 4, v{vLane}")
    a(f"  v_lshl_add_u32 v3, v14, 5, v3")
    a(f"  v_lshl_add_u32 v3, v{vC}, 2, v3")
    a(f"  ds_write_b32 v3, v48 offset:{HID}")
    a(f"  ds_write_b32 v3, v50 offset:{HID+HS}")
    a(f"  v_mul_u32_u24 v3, {HS}, v13")
    a(f"  v_lshrrev_b32 v14, 4, v{vLane}")
    a(f"  v_lshl_add_u32 v3, v14, 4, v3")
    a("  s_waitcnt lgkmcnt(0)")
    a(f"  ds_read_b128 v[52:55], v3 offset:{HID}")
    a(f"  ds_read_b128 v[56:59], v3 offset:{HID+64}")
    F2D = 144
    for t in range(32): a(f"  v_mov_b32 v{F2D+t}, 0")
    quarter_masks(14, MQ)
    a(f"  s_mul_i32 {sI}, {sCj}, 24")
    a(f"  s_add_u32 {sI}, {sI}, {sH}")
    a(f"  s_lshl_b32 {sT}, {sI}, 11")
    a(f"  s_add_u32 {sT}, {sT}, {FP3}")
    a(f"  v_lshl_add_u32 v13, v{vLane}, 4, {sT}")
    a("  s_waitcnt lgkmcnt(0)")
    for st in range(2):
        for t in range(8):
            r = F2B + 8*t + 4*st; D = F2D + 4*t
            a(f"  v_mfma_f32_16x16x32_bf16 v[{D}:{D+3}], v[{52+4*st}:{55+4*st}], v[{r}:{r+3}], v[{D}:{D+3}]")
    for rr in range(2):
        g = 32 + 4*rr
        for i in range(4):
            Dm = F2D + 16*rr + i
            select4(g+i, Dm, Dm+4, Dm+8, Dm+12, MQ)
        a(f"  global_store_dwordx4 v13, v[{g}:{g+3}], s[26:27] offset:{1024*rr} {cfg.hst}")
    a(f"  s_lshl_b32 {sT}, {sCj}, 9")
    a(f"  s_lshl_b32 {sT2}, {sH}, 4")
    a(f"  s_add_u32 {sT}, {sT}, {sT2}")
    a(f"  s_add_u32 {sT}, {sT}, {F3}")
    a(f"  v_mov_b32 v14, {sT}")
    flag_store(14)
    a.label("L_nof2")
    stamp("f2pub", "ffn")
    a(f"  s_lshl_b32 {sT}, {sCj}, 9")
    a(f"  s_add_u32 {sT}, {sT}, {F3}")
    a(f"  v_min_u32 v3, 23, v{vLane}")
    a(f"  v_lshl_add_u32 v15, v3, 4, {sT}")
    a.label("L_f3poll")
    a(f"  global_load_dwordx4 v[44:47], v15, s[26:27] {cfg.pld}")
    a("  s_waitcnt vmcnt(0)")
    check_tags([44], 64)
    a("  s_cbranch_vccz L_f3ok")
    spin_guard(cfg.fsleep3)
    a("  s_branch L_f3poll")
    a.label("L_f3ok")
    a(f"  s_mul_i32 {sT}, {sCj}, {24*2048}")
    a(f"  s_lshl_b32 {sT2}, {sH}, 6")
    a(f"  s_add_u32 {sT}, {sT}, {sT2}")
    a(f"  s_add_u32 {sT}, {sT}, {FP3}")
    a(f"  v_lshrrev_b32 v3, 2, v{vLane}")
    a(f"  v_lshlrev_b32 v3, 11, v3")
    a(f"  v_and_b32 v13, 3, v{vLane}")
    a(f"  v_lshl_add_u32 v3, v13, 4, v3")
    a(f"  v_add_u32 v14, {sT}, v3")
    a(f"  v_add_u32 v15, {16*2048}, v14")
    for e in range(4): a(f"  v_mov_b32 v{52+e}, 0")
    a(f"  global_load_dwordx4 v[48:51], v14, s[26:27] {cfg.hld}")
    a("  s_mov_b32 exec_hi, 0")
    a(f"  global_load_dwordx4 v[52:55], v15, s[26:27] {cfg.hld}")
    a("  s_mov_b32 exec_hi, -1")
    a("  s_waitcnt vmcnt(0)")
    for e in range(4): a(f"  v_add_f32 v{48+e}, v{48+e}, v{52+e}")
    reduce_hi([48, 49, 50, 51], [56, 57, 58, 59], rors=(4, 8))
    for e in range(4):
        r = 48 + e
        bf16round(r, r)
        a(f"  v_mul_f32 v{56+e}, {f32(-1.4426950408889634)}, v{r}")
    for e in range(4): a(f"  v_exp_f32 v{56+e}, v{56+e}")
    for e in range(4): a(f"  v_add_f32 v{56+e}, 1.0, v{56+e}")
    for e in range(4): a(f"  v_rcp_f32 v{56+e}, v{56+e}")
    for e in range(4): a(f"  v_mul_f32 v{48+e}, v{48+e}, v{56+e}")
    for e in range(4): bf16round(48+e, 48+e)
    a(f"  v_lshlrev_b32 v3, 4, v13")
    a("  s_mov_b64 exec, 0xf")
    a(f"  ds_write_b128 v3, v[48:51] offset:{GV}")
    a("  s_mov_b64 exec, -1")
    a("  s_waitcnt lgkmcnt(0)")
    stamp("fend", "ffn")
    a.label("L_diag")
    if cfg.diag:
        a("  s_waitcnt lgkmcnt(0)")
        a(f"  s_mul_i32 {sT}, s2, 5")
        a(f"  s_add_u32 {sT}, {sT}, {sW}")
        a(f"  s_lshl_b32 {sT}, {sT}, 7")
        a(f"  s_add_u32 {sT}, {sT}, {STAMP}")
        a(f"  v_mov_b32 v3, {sT}")
        a("  s_mov_b64 exec, 1")
        for i in range(8):
            a(f"  v_mov_b32 v4, s{84+2*i}")
            a(f"  v_mov_b32 v5, s{85+2*i}")
            a(f"  global_store_dwordx2 v3, v[4:5], s[26:27] offset:{8*i}")
            a("  s_nop 1")
        a("  s_getreg_b32 s84, hwreg(HW_REG_HW_ID)")
        a("  s_getreg_b32 s85, hwreg(HW_REG_XCC_ID)")
        a(f"  v_mov_b32 v4, s84")
        a(f"  v_mov_b32 v5, s85")
        a(f"  global_store_dwordx2 v3, v[4:5], s[26:27] offset:64")
        a("  s_nop 1")
        a(f"  v_mov_b32 v4, {sNval}")
        a(f"  v_mov_b32 v5, {sU}")
        a(f"  global_store_dwordx2 v3, v[4:5], s[26:27] offset:72")
    a.label("L_end")
    a("  s_endpgm")
    a('.section .rodata,"a"')
    a(".p2align 6")
    a(f".amdhsa_kernel {KN}")
    a("  .amdhsa_next_free_vgpr 256")
    a("  .amdhsa_next_free_sgpr 102")
    a("  .amdhsa_accum_offset 256")
    a("  .amdhsa_group_segment_fixed_size 0")
    a("  .amdhsa_kernarg_size 96")
    a("  .amdhsa_user_sgpr_count 2")
    a("  .amdhsa_user_sgpr_kernarg_segment_ptr 1")
    a("  .amdhsa_system_sgpr_workgroup_id_x 1")
    a(".end_amdhsa_kernel")
    body = a.finalize()
    if cfg.diag: hdr.append("; stamps: " + ",".join(names))
    return "\n".join(hdr) + "\n" + body

if __name__ == "__main__":
    ap = argparse.ArgumentParser()
    ap.add_argument("-o", default="recurrent_scan__mha_block_cached__geglu_ffn__decode.s")
    for k, v in vars(Cfg).items():
        if k.startswith("_"): continue
        if isinstance(v, bool): ap.add_argument("--" + k, type=int, default=int(v))
        else: ap.add_argument("--" + k, type=type(v), default=v)
    ap.add_argument("--wo_late", type=int, default=0)
    args = ap.parse_args()
    cfg = Cfg()
    for k, v in vars(args).items(): setattr(cfg, k, v)
    open(args.o, "w").write(build(cfg))
    print("wrote", args.o)
```

```python
import struct, sys, argparse
from asmdsl import Asm

KN = "recurrent_scan__mha_block_cached__geglu_ffn__decode_kernel"
def f32(x): return "0x%08x" % struct.unpack("<I", struct.pack("<f", x))[0]
LOG2E = f32(1.4426950408889634)
SCALE = f32(192 ** -0.5)

STAMP = 0x10000
QP3 = 0x100000
AP  = 0x180000
SP3 = 0x200000
G1  = 0x2A0000
F1  = 0x300000
G2  = 0x301000
FP3 = 0x308000
F3  = 0x344000
TK  = 0x350000
RD  = 0x360000
XN  = 0
XS  = 1344
QB  = 5376
HID = 5760
HS  = 192
GV  = 6528
HIDEND = 6528
PART = 6656
OB  = 9856
OS  = 448
TQ  = 11648
WQS = 12032
WO  = WQS + 40960
F1S = WO
F2S = WO + 49152
LA  = F2S + 16384

class Cfg:
    R = 2; NL = 0; NA = 1; diag = ''; nt = "nt"; dyn = 3; S = 52; match = 2
    sleep = 0; fsleep = 32; hst = "sc1 nt"; hld = "sc1 nt"; qst = "sc1"; qld = "sc1"; tst = "sc1"; tld = "sc1"
    pst = "sc1"; pld = "sc1"; fsleep3 = 120
    noffn = False
    sflag = 0
    pace = 8
    qwait = 0
    qpp = 0
    qppsleep = 12
    ost = ''
    pp = 0
    ppsleep = 3
    wotail = 0
    wsbase = 0
    h1full = 1
    wmax = 1
    pf32 = 1

def build(cfg):
    global QP3, AP, SP3, G1, F1, G2, FP3, F3, TK, RD
    QP3, AP, SP3, G1, F1, G2, FP3, F3, TK, RD = [x + cfg.wsbase for x in (0x100000, 0x180000, 0x200000, 0x2A0000, 0x300000, 0x301000, 0x308000, 0x344000, 0x350000, 0x360000)]
    a = Asm()
    R, NL, NT = cfg.R, cfg.NL, cfg.nt
    assert NL <= 2
    LDS_BYTES = (max(LA, F2S + 4 * 12288) if NL else LA) if cfg.wotail else LA + NL * 4 * 6144
    assert LDS_BYTES <= 163840, LDS_BYTES
    sW = "s3"
    sAlive, sNval = "s14", "s15"
    T0, T1 = "s30", "s31"
    srdK, srdV, srdW, srdO, srdG, srdU, srdD, srdT = 32, 36, 40, 44, 48, 52, 76, 80
    sH, sX, sB, sHalf, sU = "s56", "s57", "s58", "s59", "s60"
    sOff, sStr, sI, sT, sT2, sT3 = "s61", "s62", "s63", "s64", "s65", "s66"
    sOnes, sPermLo, sFirst = "s67", "s68", "s24"
    sSpin, sC0 = "s74", "s75"
    sCj = "s100"
    def srd(i): return f"s[{i}:{i+3}]"
    nst = [0]; names = []
    def stamp(name=None, sets="main"):
        if cfg.diag and cfg.diag in sets.split(","):
            i = 84 + 2 * nst[0]; nst[0] += 1
            assert i <= 98, name
            names.append(name)
            a(f"  s_memrealtime s[{i}:{i+1}]")
    slots = {}
    def restamp(name, sets):
        if cfg.diag and cfg.diag in sets.split(","):
            if name not in slots:
                slots[name] = 84 + 2 * nst[0]; nst[0] += 1; names.append(name)
                assert slots[name] <= 98
            i = slots[name]
            a(f"  s_memrealtime s[{i}:{i+1}]")
    vTid, vLane, vKV = 0, 1, 2
    vHf, vCc, vG, vC = 4, 5, 6, 7
    RING = 160
    def Kr(s, j): return RING + 24 * s + 4 * j
    def Vr(s, j): return RING + 24 * s + 12 + 4 * j
    ACC, Q, vM, vL, TKR, vTKo = 136, 124, 122, 123, 118, 116

    def mk_srd(i, lo, size):
        a(f"  s_mov_b32 s{i}, s{lo}")
        a(f"  s_mov_b32 s{i+1}, s{lo+1}")
        a(f"  s_mov_b32 s{i+2}, {size}")
        a(f"  s_mov_b32 s{i+3}, 0x20000")
    def dpp(op, v, ctrl): a(f"  {op} v{v}, v{v}, v{v} {ctrl} row_mask:0xf bank_mask:0xf")
    def allreduce64(v, t, op):
        for n in (1, 2, 4, 8): dpp(op, v, f"row_ror:{n}")
        for sw in ("16", "32"):
            a(f"  v_mov_b32 v{t}, v{v}")
            a(f"  v_permlane{sw}_swap_b32 v{v}, v{t}")
            a(f"  {op} v{v}, v{v}, v{t}")
    def reduce_hi(regs, tmps, rors=(8,)):
        for n in rors:
            for r in regs: dpp("v_add_f32", r, f"row_ror:{n}")
        for sw in ("16", "32"):
            for r, t in zip(regs, tmps): a(f"  v_mov_b32 v{t}, v{r}")
            for r, t in zip(regs, tmps): a(f"  v_permlane{sw}_swap_b32 v{r}, v{t}")
            for r, t in zip(regs, tmps): a(f"  v_add_f32 v{r}, v{r}, v{t}")
    def bf16round(dst, src):
        a(f"  v_cvt_pk_bf16_f32 v{dst}, v{src}, v{src}")
        a(f"  v_lshlrev_b32 v{dst}, 16, v{dst}")
    def check_tags(bases, vflag):
        first = True
        for r in bases:
            if first: a(f"  v_xor_b32 v{vflag}, {T0}, v{r+1}")
            else: a(f"  v_bitop3_b32 v{vflag}, v{vflag}, v{r+1}, {T0} bitop3:0xf6")
            first = False
            a(f"  v_bitop3_b32 v{vflag}, v{vflag}, v{r+3}, {T1} bitop3:0xf6")
        a(f"  v_cmp_ne_u32 vcc, 0, v{vflag}")
    def spin_guard(sleep=0):
        a(f"  s_add_u32 {sSpin}, {sSpin}, 1")
        a(f"  s_cmp_gt_u32 {sSpin}, 100000")
        a("  s_cbranch_scc1 L_end")
        if sleep: a(f"  s_sleep {sleep}")
    def pipelined_poll(tag, issue, n, setA, setB, setC, bases, vflag, first_issued):
        if not first_issued: issue(setA)
        a(f"  s_sleep {cfg.ppsleep}")
        a.label(f"L_pp{tag}")
        issue(setB)
        a(f"  s_waitcnt vmcnt({n})")
        check_tags([setA + o for o in bases], vflag)
        a(f"  s_cbranch_vccnz L_pp{tag}_b")
        for o in bases:
            a(f"  v_mov_b32 v{setC+o}, v{setA+o}")
            a(f"  v_mov_b32 v{setC+o+2}, v{setA+o+2}")
        a(f"  s_branch L_pp{tag}_ok")
        a.label(f"L_pp{tag}_b")
        spin_guard()
        issue(setA)
        a(f"  s_waitcnt vmcnt({n})")
        check_tags([setB + o for o in bases], vflag)
        a(f"  s_cbranch_vccnz L_pp{tag}")
        for o in bases:
            a(f"  v_mov_b32 v{setC+o}, v{setB+o}")
            a(f"  v_mov_b32 v{setC+o+2}, v{setB+o+2}")
        a.label(f"L_pp{tag}_ok")
    def select4(dst, r0, r1, r2, r3, masks):
        a(f"  v_cndmask_b32 v{dst}, v{r0}, v{r1}, {masks[0]}")
        a(f"  v_cndmask_b32 v{dst}, v{dst}, v{r2}, {masks[1]}")
        a(f"  v_cndmask_b32 v{dst}, v{dst}, v{r3}, {masks[2]}")
    def quarter_masks(vsel, masks):
        for i, m in enumerate(masks): a(f"  v_cmp_eq_u32 {m}, {i+1}, v{vsel}")

    def layernorm(vx, tb):
        d = [tb + 10 + j for j in range(10)]
        acc, t, mean, mbf, r = tb + 20, tb + 21, tb + 22, tb + 23, tb + 24
        a(f"  v_mov_b32 v{acc}, 0")
        for j in range(5): a(f"  v_dot2c_f32_bf16 v{acc}, {sOnes}, v{vx+j}")
        for j in range(5):
            a(f"  v_lshlrev_b32 v{tb+2*j}, 16, v{vx+j}")
            a(f"  v_and_b32 v{tb+2*j+1}, 0xffff0000, v{vx+j}")
        allreduce64(acc, t, "v_add_f32")
        a(f"  v_mul_f32 v{mean}, {f32(1.0/640)}, v{acc}")
        bf16round(mbf, mean)
        a(f"  v_mov_b32 v{acc}, 0")
        for j in range(10): a(f"  v_sub_f32 v{d[j]}, v{tb+j}, v{mean}")
        for j in range(10): a(f"  v_fmac_f32 v{acc}, v{d[j]}, v{d[j]}")
        for j in range(10): a(f"  v_sub_f32 v{d[j]}, v{tb+j}, v{mbf}")
        allreduce64(acc, t, "v_add_f32")
        a(f"  v_mul_f32 v{acc}, {f32(1.0/640)}, v{acc}")
        bf16round(acc, acc)
        a(f"  v_add_f32 v{acc}, {f32(1e-5)}, v{acc}")
        bf16round(acc, acc)
        a(f"  v_sqrt_f32 v{acc}, v{acc}")
        bf16round(acc, acc)
        a(f"  v_rcp_f32 v{r}, v{acc}")
        for j in range(5): a(f"  v_cvt_pk_bf16_f32 v{tb+j}, v{d[2*j]}, v{d[2*j+1]}")
        for j in range(5):
            a(f"  v_lshlrev_b32 v{d[2*j]}, 16, v{tb+j}")
            a(f"  v_and_b32 v{d[2*j+1]}, 0xffff0000, v{tb+j}")
        for j in range(10): a(f"  v_mul_f32 v{d[j]}, v{d[j]}, v{r}")
        for j in range(5): a(f"  v_cvt_pk_bf16_f32 v{tb+j}, v{d[2*j]}, v{d[2*j+1]}")
        a(f"  s_mul_i32 {sT}, {sW}, {XS}")
        a(f"  v_lshl_add_u32 v{t}, v{vLane}, 2, {sT}")
        for j in range(5): a(f"  ds_write_b32 v{t}, v{tb+j} offset:{XN + j*256}")

    hdr = [f"; @launch grid=(256,1,1) block=(320,1,1) lds={LDS_BYTES}"]
    a('.amdgcn_target "amdgcn-amd-amdhsa--gfx950"')
    a(".text")
    a(f".globl {KN}")
    a(".p2align 8")
    a(f".type {KN},@function")
    a.label(KN)
    a("  s_cmp_ge_u32 s2, 256")
    a("  s_cbranch_scc1 L_end")
    if cfg.diag:
        for i in range(84, 100): a(f"  s_mov_b32 s{i}, 0")
    stamp("start", "main,pro,tail,ffn,tail2,tail3,pro2,dbg")
    a("  s_load_dwordx8 s[4:11], s[0:1], 0")
    a("  s_load_dwordx2 s[12:13], s[0:1], 32")
    a("  s_load_dwordx8 s[16:23], s[0:1], 48")
    a("  s_load_dwordx4 s[24:27], s[0:1], 80")
    a(f"  v_lshrrev_b32 v3, 6, v{vTid}")
    a(f"  v_and_b32 v{vLane}, 63, v{vTid}")
    a(f"  v_readfirstlane_b32 {sW}, v3")
    a(f"  s_mov_b32 {sSpin}, 0")
    a(f"  s_mov_b32 {sOnes}, 0x3f803f80")
    a(f"  s_mov_b32 {sPermLo}, 0x05040100")
    a(f"  s_lshr_b32 {sH}, s2, 3")
    a(f"  s_and_b32 {sX}, s2, 7")
    a(f"  v_lshrrev_b32 v{vHf}, 5, v{vLane}")
    a(f"  v_and_b32 v{vCc}, 31, v{vLane}")
    a(f"  v_lshrrev_b32 v{vG}, 3, v{vLane}")
    a(f"  v_and_b32 v{vC}, 7, v{vLane}")
    if cfg.match == 2:
        a(f"  s_and_b32 {sT}, {sH}, 1")
        a(f"  s_lshl_b32 {sT}, {sT}, 1")
        a(f"  s_add_u32 {sT}, {sT}, 3")
        a(f"  s_and_b32 {sHalf}, {sX}, 1")
        a(f"  s_mul_i32 {sT}, {sT}, {sHalf}")
        a(f"  s_xor_b32 {sT}, {sT}, {sX}")
        a(f"  s_lshr_b32 {sB}, {sT}, 1")
    else:
        a(f"  s_lshr_b32 {sB}, {sX}, 1")
        a(f"  s_and_b32 {sHalf}, {sX}, 1")
    a(f"  s_lshl_b32 {sU}, {sB}, 1")
    a(f"  s_add_u32 {sU}, {sU}, {sHalf}")
    a(f"  s_cmp_eq_u32 {sHalf}, 0")
    a(f"  s_cselect_b32 {sCj}, {sB}, 8")
    a(f"  s_cmp_eq_u32 {sU}, 7")
    a(f"  s_cselect_b32 {sCj}, 4, {sCj}")
    a(f"  s_cmp_eq_u32 {sW}, 4")
    a("  s_cbranch_scc1 L_svc")

    vXo, vWq = 8, 9
    a(f"  v_mul_u32_u24 v{vKV}, 384, v{vG}")
    a(f"  v_lshl_add_u32 v{vKV}, v{vC}, 4, v{vKV}")
    a(f"  v_mul_u32_u24 v{vWq}, 12288, v{vG}")
    a(f"  v_lshl_add_u32 v{vWq}, v{vC}, 4, v{vWq}")
    a(f"  s_mul_i32 {sT}, {sW}, 1280")
    a(f"  v_lshl_add_u32 v{vXo}, v{vLane}, 2, {sT}")
    a("  s_waitcnt lgkmcnt(0)")
    stamp("karg", "pro")
    a("  s_load_dwordx2 s[28:29], s[26:27], 0")
    VX = 11
    for j in range(5):
        a(f"  global_load_dword v{VX+j}, v{vXo}, s[4:5] offset:{j*256}")
    mk_srd(srdW, 10, 7864320)
    a(f"  s_cmp_ge_u32 {sU}, 6")
    a("  s_cbranch_scc1 L_nowq")
    a(f"  s_mul_i32 {sT}, {sHalf}, 320")
    a(f"  s_mul_i32 {sT2}, {sW}, 80")
    a(f"  s_add_u32 {sT}, {sT}, {sT2}")
    a(f"  s_mul_i32 {sT}, {sT}, 12288")
    a(f"  s_mul_i32 {sT3}, {sH}, 384")
    a(f"  s_add_u32 {sT}, {sT}, {sT3}")
    a(f"  s_lshl_b32 {sT3}, {sB}, 7")
    a(f"  s_add_u32 {sT}, {sT}, {sT3}")
    a(f"  s_lshl_b32 {sT2}, {sT2}, 7")
    a(f"  s_add_u32 {sT2}, {sT2}, {WQS}")
    for i in range(10):
        a(f"  s_add_u32 m0, {sT2}, {1024*i}")
        a(f"  buffer_load_dwordx4 v{vWq}, {srd(srdW)}, {sT} offen {NT} lds")
        if i < 9: a(f"  s_add_u32 {sT}, {sT}, {8*12288}")
    a.label("L_nowq")
    mk_srd(srdK, 6, 201326592)
    mk_srd(srdV, 8, 201326592)
    mk_srd(srdO, 12, 7864320)
    CH = 7 if cfg.dyn else 6
    nb = 1 if cfg.dyn else 0
    if cfg.dyn:
        a(f"  s_lshl_b32 {sT}, {sH}, 2")
        a(f"  s_add_u32 {sT}, {sT}, {sB}")
        if cfg.dyn == 1:
            a(f"  s_lshl_b32 {sT}, {sT}, 2")
            a(f"  s_add_u32 {sT}, {sT}, {sW}")
            a(f"  s_lshl_b32 {sT}, {sT}, 7")
        else:
            a(f"  s_lshl_b32 {sT}, {sT}, 9")
        a(f"  v_mov_b32 v{vTKo}, 0x7ffffff0")
        a(f"  v_mov_b32 v3, {sT}")
        a(f"  v_cmp_eq_u32 vcc, 0, v{vLane}")
        a(f"  v_cndmask_b32 v{vTKo}, v{vTKo}, v3, vcc")
        a(f"  s_add_u32 s{srdT}, s26, {TK}")
        a(f"  s_addc_u32 s{srdT+1}, s27, 0")
        a(f"  s_mov_b32 s{srdT+2}, 65536")
        a(f"  s_mov_b32 s{srdT+3}, 0x20000")
        a(f"  buffer_load_dword v117, v{vTKo}, {srd(srdT)}, 0 offen sc1")
        a(f"  s_mov_b32 s{srdT+2}, 0")
    a(f"  s_lshl_b32 {sT}, {sB}, 5")
    a(f"  s_add_u32 {sT}, {sT}, {sH}")
    a(f"  s_mul_i32 {sOff}, {sT}, 1572864")
    sPool = "s69"
    if cfg.dyn >= 2:
        a(f"  s_add_u32 {sPool}, {sOff}, {8*cfg.S*3072}")
        a(f"  s_lshl_b32 {sT}, {sHalf}, 2")
        a(f"  s_add_u32 {sT}, {sT}, {sW}")
        a(f"  s_mul_i32 {sT}, {sT}, {cfg.S*3072}")
        a(f"  s_add_u32 {sOff}, {sOff}, {sT}")
        a(f"  s_mov_b32 {sStr}, 3072")
    elif not cfg.dyn:
        a(f"  s_mul_i32 {sT}, {sHalf}, 786432")
        a(f"  s_add_u32 {sOff}, {sOff}, {sT}")
        a(f"  s_mul_i32 {sT}, {sW}, 196608")
        a(f"  s_add_u32 {sOff}, {sOff}, {sT}")
        a(f"  s_mov_b32 {sStr}, 3072")
    else:
        a(f"  s_mul_i32 {sT}, {sW}, 393216")
        a(f"  s_add_u32 {sOff}, {sOff}, {sT}")
        a(f"  s_mul_i32 {sT}, {sHalf}, {393216-3072}")
        a(f"  s_add_u32 {sOff}, {sOff}, {sT}")
        a(f"  s_mul_i32 {sStr}, {sHalf}, -6144")
        a(f"  s_add_u32 {sStr}, {sStr}, 3072")
    def issueT(s):
        if cfg.dyn:
            a(f"  v_mov_b32 v{TKR+s}, 1")
            a(f"  buffer_atomic_add v{TKR+s}, v{vTKo}, {srd(srdT)}, 0 offen sc0 sc1")
    def issueK(s):
        for j in range(3):
            a(f"  buffer_load_dwordx4 v[{Kr(s,j)}:{Kr(s,j)+3}], v{vKV}, {srd(srdK)}, {sOff} offen offset:{128*j} {NT}")
    def issueV(s):
        for j in range(3):
            a(f"  buffer_load_dwordx4 v[{Vr(s,j)}:{Vr(s,j)+3}], v{vKV}, {srd(srdV)}, {sOff} offen offset:{128*j} {NT}")
        a(f"  s_add_u32 {sOff}, {sOff}, {sStr}")
    sLb = "s25"
    def issueL(k):
        for srdx, o in ((srdK, 0), (srdV, 3072)):
            for j in range(3):
                a(f"  s_add_u32 m0, {sLb}, {6144*k + o + 896*j}")
                a(f"  buffer_load_dwordx4 v{vKV}, {srd(srdx)}, {sOff} offen offset:{128*j} {NT} lds")
        a(f"  s_add_u32 {sOff}, {sOff}, {sStr}")
    NA = cfg.NA
    for s in range(NA):
        issueT(s); issueK(s); issueV(s)
    stamp("issued", "main")
    a(f"  s_cmp_ge_u32 {sU}, 6")
    a("  s_cbranch_scc1 L_xw2")
    a(f"  s_waitcnt vmcnt({10 + nb + CH*NA})")
    a("  s_branch L_xw3")
    a.label("L_xw2")
    a(f"  s_waitcnt vmcnt({nb + CH*NA})")
    a.label("L_xw3")
    stamp("xarr", "pro")
    layernorm(VX, 16)
    vQa, vQb, vQp = 10, 44, 45
    a(f"  v_lshrrev_b32 v3, 4, v{vLane}")
    a(f"  v_and_b32 v47, 3, v{vLane}")
    a(f"  v_mul_u32_u24 v{vQa}, {XS}, v47")
    a(f"  v_lshl_add_u32 v{vQa}, v3, 4, v{vQa}")
    a(f"  s_mul_i32 {sT}, {sHalf}, 640")
    a(f"  v_add_u32 v{vQa}, {sT}, v{vQa}")
    a(f"  v_bfe_u32 v50, v{vLane}, 2, 2")
    a(f"  v_lshl_add_u32 v48, v3, 3, v50")
    a(f"  v_lshlrev_b32 v48, 7, v48")
    a(f"  v_lshl_add_u32 v48, v47, 3, v48")
    a(f"  s_lshl_b32 {sT}, {sW}, 5")
    a(f"  s_add_u32 {sT}, {sT}, {WQS}")
    a(f"  v_add_u32 v{vQb}, {sT}, v48")
    a(f"  s_mul_i32 {sT}, {sH}, 6")
    a(f"  s_add_u32 {sT}, {sT}, {sU}")
    a(f"  s_lshl_b32 {sT}, {sT}, 11")
    a(f"  s_lshl_b32 {sT2}, {sW}, 7")
    a(f"  s_add_u32 {sT}, {sT}, {sT2}")
    a(f"  s_add_u32 {sT}, {sT}, {QP3}")
    a(f"  v_lshlrev_b32 v{vQp}, 9, v3")
    a(f"  v_bfe_u32 v49, v{vLane}, 1, 3")
    a(f"  v_lshl_add_u32 v{vQp}, v49, 4, v{vQp}")
    a(f"  v_add_u32 v{vQp}, {sT}, v{vQp}")
    MQ = ("s[72:73]", "s[70:71]", "s[24:25]")
    quarter_masks(3, MQ)
    a(f"  s_waitcnt vmcnt({CH*NA}) lgkmcnt(0)")
    if cfg.dyn:
        a(f"  v_readfirstlane_b32 {sC0}, v117")
    if cfg.dyn == 3:
        a(f"  v_mov_b32 v52, 0")
        a(f"  v_lshlrev_b32 v53, 2, v{vLane}")
        a(f"  ds_write_b32 v53, v52 offset:{TQ}")
        a("  s_waitcnt lgkmcnt(0)")
    a(f"  s_add_u32 {T0}, s28, 1")
    a(f"  s_add_u32 {T1}, s29, 1")
    a("  s_barrier")
    stamp("bar1", "pro,pro2")
    a(f"  s_cmp_ge_u32 {sU}, 6")
    a("  s_cbranch_scc1 L_noq")
    QD0, QD1 = 96, 100
    for e in range(8): a(f"  v_mov_b32 v{QD0+e}, 0")
    def breg(st):
        if st < 5: return 76 + 4*st
        return (104, 108, 112, 36, 40)[st-5]
    def areg(st): return (16 + 4*st) if st < 5 else (56 + 4*(st-5))
    for st in range(10):
        a(f"  ds_read_b128 v[{areg(st)}:{areg(st)+3}], v{vQa} offset:{XN + 64*st}")
        a(f"  ds_read_b64_tr_b16 v[{breg(st)}:{breg(st)+1}], v{vQb} offset:{4096*st}")
        a(f"  ds_read_b64_tr_b16 v[{breg(st)+2}:{breg(st)+3}], v{vQb} offset:{4096*st + 512}")
    for st in range(10):
        if st % 2 == 0: a(f"  s_waitcnt lgkmcnt({min(15, 3*(10-st-2))})") if st < 8 else a("  s_waitcnt lgkmcnt(0)")
        D = QD0 if st % 2 == 0 else QD1
        a(f"  v_mfma_f32_16x16x32_bf16 v[{D}:{D+3}], v[{areg(st)}:{areg(st)+3}], v[{breg(st)}:{breg(st)+3}], v[{D}:{D+3}]")
    for e in range(4): a(f"  v_add_f32 v{QD0+e}, v{QD0+e}, v{QD1+e}")
    GP = 48
    a(f"  v_mov_b32 v{GP+1}, {T0}")
    a(f"  v_mov_b32 v{GP+3}, {T1}")
    select4(GP, QD0, QD0+1, QD0+2, QD0+3, MQ)
    a(f"  v_mov_b32 v{GP+2}, v{GP} quad_perm:[1,0,3,2] row_mask:0xf bank_mask:0xf")
    a("  s_mov_b32 exec_lo, 0x55555555")
    a("  s_mov_b32 exec_hi, 0x55555555")
    a(f"  global_store_dwordx4 v{vQp}, v[{GP}:{GP+3}], s[26:27] {cfg.qst}")
    a("  s_mov_b64 exec, -1")
    if cfg.qwait:
        stamp("qst", "pro2")
        a("  s_waitcnt vmcnt(0)")
        stamp("qack", "pro2")
    a.label("L_noq")
    stamp("qpub", "main,pro,dbg")
    pace_on = [cfg.pace > 0]
    orig_a = a
    class Paced:
        def __call__(self, text):
            if pace_on[0] and ("buffer_load_dwordx4" in text):
                orig_a(f"  s_waitcnt vmcnt({cfg.pace - 1})")
            orig_a(text)
        def label(self, n): orig_a.label(n)
        def finalize(self): return orig_a.finalize()
    a = Paced()
    mk_srd(srdG, 16, 1966080)
    mk_srd(srdU, 18, 1966080)
    mk_srd(srdD, 20, 1966080)
    vWo = 41
    a(f"  s_cmp_ge_u32 {sCj}, 8")
    a("  s_cbranch_scc1 L_nowo")
    def wo_stage():
        a(f"  v_lshrrev_b32 v3, 4, v{vLane}")
        a(f"  v_mul_u32_u24 v{vWo}, 1280, v3")
        a(f"  v_and_b32 v42, 15, v{vLane}")
        a(f"  v_lshl_add_u32 v{vWo}, v42, 4, v{vWo}")
        a(f"  s_mul_i32 {sT}, {sH}, 192")
        a(f"  s_mul_i32 {sT2}, {sW}, 48")
        a(f"  s_add_u32 {sT}, {sT}, {sT2}")
        a(f"  s_mul_i32 {sT}, {sT}, 1280")
        a(f"  s_lshl_b32 {sT3}, {sCj}, 8")
        a(f"  s_add_u32 {sT}, {sT}, {sT3}")
        a(f"  s_mul_i32 {sT2}, {sW}, {48*256}")
        a(f"  s_add_u32 {sT2}, {sT2}, {WO}")
        for i in range(12):
            a(f"  s_add_u32 m0, {sT2}, {1024*i}")
            a(f"  buffer_load_dwordx4 v{vWo}, {srd(srdO)}, {sT} offen {NT} lds")
            if i < 11: a(f"  s_add_u32 {sT}, {sT}, {4*1280}")
    if cfg.wotail:
        a(f"  v_lshrrev_b32 v3, 4, v{vLane}")
        a(f"  v_mul_u32_u24 v{vWo}, 1280, v3")
        a(f"  v_and_b32 v42, 15, v{vLane}")
        a(f"  v_lshl_add_u32 v{vWo}, v42, 4, v{vWo}")
        a(f"  s_lshl_b32 {sT3}, {sCj}, 8")
    else:
        wo_stage()
    if not cfg.noffn:
        a(f"  s_cmp_ge_u32 {sH}, 24")
        a("  s_cbranch_scc1 L_stg_done")
        a(f"  s_lshl_b32 {sT}, {sH}, 6")
        a(f"  s_lshl_b32 {sT2}, {sW}, 4")
        a(f"  s_add_u32 {sT}, {sT}, {sT2}")
        a(f"  s_mul_i32 {sT}, {sT}, 1280")
        a(f"  s_add_u32 {sT}, {sT}, {sT3}")
        a(f"  s_lshl_b32 {sT2}, {sW}, 12")
        a(f"  s_add_u32 {sT2}, {sT2}, {F2S}")
        for i in range(4):
            a(f"  s_add_u32 m0, {sT2}, {1024*i}")
            a(f"  buffer_load_dwordx4 v{vWo}, {srd(srdD)}, {sT} offen {NT} lds")
            if i < 3: a(f"  s_add_u32 {sT}, {sT}, {4*1280}")
    a("  s_branch L_stg_done")
    a.label("L_nowo")
    if not cfg.noffn:
        a(f"  s_mul_i32 {sT}, {sH}, 3")
        a(f"  s_add_u32 {sT}, {sT}, {sB}")
        a(f"  s_lshr_b32 {sT2}, {sT}, 2")
        a(f"  s_and_b32 {sT}, {sT}, 3")
        a(f"  s_mul_i32 {sT}, {sT}, 160")
        a(f"  s_mul_i32 {sT3}, {sW}, 40")
        a(f"  s_add_u32 {sT}, {sT}, {sT3}")
        a(f"  s_mul_i32 {sT}, {sT}, 3072")
        a(f"  s_lshl_b32 {sT2}, {sT2}, 7")
        a(f"  s_add_u32 {sT}, {sT}, {sT2}")
        a(f"  s_lshl_b32 {sT2}, {sT3}, 7")
        a(f"  s_add_u32 {sT2}, {sT2}, {F1S}")
        a(f"  v_mul_u32_u24 v{vWo}, 3072, v{vG}")
        a(f"  v_lshl_add_u32 v{vWo}, v{vC}, 4, v{vWo}")
        for i in range(5):
            a(f"  s_add_u32 m0, {sT2}, {1024*i}")
            a(f"  buffer_load_dwordx4 v{vWo}, {srd(srdG)}, {sT} offen {NT} lds")
            a(f"  s_add_u32 m0, {sT2}, {20480 + 1024*i}")
            a(f"  buffer_load_dwordx4 v{vWo}, {srd(srdU)}, {sT} offen {NT} lds")
            if i < 4: a(f"  s_add_u32 {sT}, {sT}, {8*3072}")
    a.label("L_stg_done")
    for s in range(NA, R):
        issueT(s); issueK(s); issueV(s)
    sLb_set = True
    if NL:
        a(f"  s_mul_i32 {sLb}, {sW}, {12288 if cfg.wotail else NL*6144}")
        if cfg.wotail:
            a(f"  s_cmp_lt_u32 {sCj}, 8")
            a(f"  s_mov_b32 {sT}, {F2S}")
            a(f"  s_cselect_b32 {sT}, {WO}, {sT}")
            a(f"  s_add_u32 {sLb}, {sLb}, {sT}")
        else:
            a(f"  s_add_u32 {sLb}, {sLb}, {LA}")
    for k in range(NL): issueL(k)
    pace_on[0] = False
    pF, pFH, pMr, pMh, pMs, vH1, vH2, vTr, vP0, vSa, vOi, vXv, pGV, pOB1, pOB2, pAF = 56, 59, 60, 61, 62, 63, 64, 65, 66, 68, 69, 70, 71, 72, 73, 74
    a(f"  v_lshrrev_b32 v8, 4, v{vLane}")
    a(f"  v_mul_u32_u24 v9, 6, v8")
    a(f"  s_mul_i32 {sT}, {sW}, 800")
    a(f"  s_add_u32 {sT}, {sT}, {PART}")
    a(f"  v_lshl_add_u32 v10, v{vC}, 5, {sT}")
    for k in range(3):
        a(f"  v_add_u32 v11, {2*k}, v9")
        a(f"  v_lshrrev_b32 v12, 3, v11")
        a(f"  v_and_b32 v11, 7, v11")
        a(f"  v_lshlrev_b32 v12, 8, v12")
        a(f"  v_lshl_add_u32 v12, v11, 2, v12")
        a(f"  v_add_u32 v{pF+k}, v12, v10")
    a(f"  v_mov_b32 v{pFH}, {sT}")
    a(f"  v_lshlrev_b32 v{pMr}, 3, v{vTid}")
    a(f"  v_mov_b32 v{pMh}, {PART+768}")
    a(f"  s_lshl_b32 {sT}, {sH}, 3")
    a(f"  s_add_u32 {sT2}, {sT}, {sU}")
    a(f"  s_lshl_b32 {sT2}, {sT2}, 11")
    a(f"  s_add_u32 {sT2}, {sT2}, {AP}")
    a(f"  v_lshl_add_u32 v{pMs}, v{vTid}, 4, {sT2}")
    a(f"  s_lshl_b32 {sT2}, {sW}, 1")
    a(f"  s_add_u32 {sT}, {sT}, {sT2}")
    a(f"  s_lshl_b32 {sT}, {sT}, 11")
    a(f"  s_add_u32 {sT}, {sT}, {AP}")
    a(f"  v_lshlrev_b32 v9, 11, v{vHf}")
    a(f"  v_add_u32 v9, {sT}, v9")
    a(f"  v_lshl_add_u32 v{vH1}, v{vCc}, 4, v9")
    a(f"  v_add_u32 v{vH2}, {96*16}, v9")
    a(f"  v_bfe_u32 v9, v{vLane}, 2, 2")
    a(f"  v_lshl_add_u32 v10, v8, 3, v9")
    a(f"  v_lshlrev_b32 v10, 8, v10")
    a(f"  v_and_b32 v11, 3, v{vLane}")
    a(f"  v_lshl_add_u32 v10, v11, 3, v10")
    a(f"  s_lshl_b32 {sT}, {sW}, 6")
    a(f"  s_add_u32 {sT}, {sT}, {WO}")
    a(f"  v_add_u32 v{vTr}, {sT}, v10")
    a(f"  v_lshlrev_b32 v10, 12, v9")
    a(f"  v_and_b32 v12, 1, v8")
    a(f"  v_lshl_add_u32 v10, v12, 6, v10")
    a(f"  v_lshl_add_u32 v10, v11, 4, v10")
    a(f"  s_and_b32 {sT3}, {sCj}, 7")
    a(f"  s_lshl_b32 {sT}, {sT3}, 5")
    a(f"  s_lshl_b32 {sT2}, {sW}, 3")
    a(f"  s_add_u32 {sT}, {sT}, {sT2}")
    a(f"  s_lshl_b32 {sT}, {sT}, 12")
    a(f"  s_lshl_b32 {sT2}, {sH}, 7")
    a(f"  s_add_u32 {sT}, {sT}, {sT2}")
    a(f"  s_add_u32 {sT}, {sT}, {SP3}")
    a(f"  v_add_u32 v{vP0}, {sT}, v10")
    a(f"  v_add_u32 v{vP0+1}, {4*4096}, v{vP0}")
    a(f"  s_lshl_b32 {sT}, {sT3}, 5")
    a(f"  s_add_u32 {sT}, {sT}, {sH}")
    a(f"  s_lshl_b32 {sT}, {sT}, 12")
    a(f"  s_add_u32 {sT}, {sT}, {SP3}")
    a(f"  v_lshl_add_u32 v{vSa}, v{vLane}, 4, {sT}")
    a(f"  v_bfe_u32 v9, v{vLane}, 2, 1")
    a(f"  v_and_b32 v10, 1, v{vG}")
    a(f"  v_lshl_add_u32 v9, v9, 1, v10")
    a(f"  v_lshlrev_b32 v{pGV}, 4, v11")
    a(f"  v_lshl_add_u32 v{pGV}, v9, 2, v{pGV}")
    a(f"  v_mul_u32_u24 v9, 640, v9")
    a(f"  s_min_u32 {sT3}, {sT3}, 4")
    a(f"  s_lshl_b32 {sT}, {sT3}, 7")
    a(f"  s_lshl_b32 {sT2}, {sH}, 2")
    a(f"  s_add_u32 {sT}, {sT}, {sT2}")
    a(f"  v_add3_u32 v9, v9, v11, {sT}")
    a(f"  v_lshlrev_b32 v{vOi}, 1, v9")
    a(f"  global_load_ushort v{vXv}, v{vOi}, s[4:5]")
    a(f"  s_mul_i32 {sT}, {sW}, {OS}")
    a(f"  v_lshl_add_u32 v{pOB1}, v{vLane}, 2, {sT}")
    a(f"  v_lshl_add_u32 v{pOB2}, v{vCc}, 2, {sT}")
    a(f"  v_mul_u32_u24 v{pAF}, {OS}, v11")
    a(f"  v_lshl_add_u32 v{pAF}, v8, 4, v{pAF}")
    a(f"  v_lshlrev_b32 v3, 4, v{vC}")
    for t in range(24): a(f"  v_mov_b32 v{ACC+t}, 0")
    a(f"  v_mov_b32 v{vM}, 0xff800000")
    a(f"  v_mov_b32 v{vL}, 0")
    if not cfg.sflag: a(f"  s_waitcnt vmcnt({CH*(R-NA) + 6*NL + 1})")
    a("  s_barrier")
    for j in range(3):
        a(f"  ds_read_b128 v[{Q+4*j}:{Q+4*j+3}], v3 offset:{QB + 128*j}")
    LIM = (cfg.S if cfg.dyn else 64) - R - NL
    if cfg.dyn:
        P = 128 - 2 * cfg.S if cfg.dyn == 1 else 512 - 8 * cfg.S
        PG = P // 4
        assert cfg.S - NL >= 2 * R
        assert PG + 2 * R < 60
    a(f"  s_mov_b32 {sI}, 0")
    a(f"  s_mov_b32 {sNval}, {R}")
    a(f"  s_mov_b32 {sAlive}, 1")
    if NL: a(f"  s_mov_b32 {sFirst}, 1")
    if cfg.dyn == 3: a("  s_mov_b32 s101, 0")
    a("  s_waitcnt lgkmcnt(0)")
    stamp("qready", "main,pro,pro2,dbg")

    t0, t1, t2, sS, mn, al, ee, pl, ph = 100, 101, 102, 103, 104, 105, 106, 107, 108
    def scores(K0):
        for i in range(4):
            for j in range(3):
                a(f"  v_dot2c_f32_bf16 v{t0+j}, v{K0+4*j+i}, v{Q+4*j+i}")
    def softmax(tag):
        a(f"  v_add_f32 v{t0}, v{t0}, v{t1}")
        a(f"  v_add_f32 v{t0}, v{t0}, v{t2}")
        dpp("v_add_f32", t0, "quad_perm:[1,0,3,2]")
        dpp("v_add_f32", t0, "quad_perm:[2,3,0,1]")
        dpp("v_add_f32", t0, "row_half_mirror")
        bf16round(t1, t0)
        a(f"  v_mul_f32 v{t1}, {SCALE}, v{t1}")
        bf16round(sS, t1)
        if cfg.wmax:
            a(f"  v_max_f32 v{mn}, v{sS}, v{sS} row_ror:8 row_mask:0xf bank_mask:0xf")
            for sw in ("16", "32"):
                a(f"  v_mov_b32 v{al}, v{mn}")
                a(f"  v_permlane{sw}_swap_b32 v{mn}, v{al}")
                a(f"  v_max_f32 v{mn}, v{mn}, v{al}")
            a(f"  v_cmp_gt_f32 vcc, v{mn}, v{vM}")
            a(f"  v_max_f32 v{mn}, v{vM}, v{mn}")
        else:
            a(f"  v_max_f32 v{mn}, v{vM}, v{sS}")
            a(f"  v_cmp_gt_f32 vcc, v{sS}, v{vM}")
        a(f"  v_sub_f32 v{al}, v{vM}, v{mn}")
        a(f"  v_sub_f32 v{ee}, v{sS}, v{mn}")
        a(f"  v_mul_f32 v{al}, {LOG2E}, v{al}")
        a(f"  v_mul_f32 v{ee}, {LOG2E}, v{ee}")
        a(f"  v_exp_f32 v{al}, v{al}")
        a(f"  v_exp_f32 v{ee}, v{ee}")
        a(f"  v_mov_b32 v{vM}, v{mn}")
        a(f"  v_fma_f32 v{vL}, v{vL}, v{al}, v{ee}")
        if not cfg.pf32:
            a(f"  v_cvt_pk_bf16_f32 v{pl}, v{ee}, 0")
            a(f"  v_cvt_pk_bf16_f32 v{ph}, 0, v{ee}")
        a(f"  s_cbranch_vccz L_nors{tag}")
        for t in range(24): a(f"  v_mul_f32 v{ACC+t}, v{ACC+t}, v{al}")
        a.label(f"L_nors{tag}")
    def pv(V0):
        if cfg.pf32:
            tp = (110, 112, 114)
            items = [(j, i) for j in range(3) for i in range(4)]
            for n, (j, i) in enumerate(items):
                t = tp[n % 3]
                a(f"  v_lshlrev_b32 v{t}, 16, v{V0+4*j+i}")
                a(f"  v_and_b32 v{t+1}, 0xffff0000, v{V0+4*j+i}")
                if n >= 1:
                    jj, ii = items[n-1]; tt = tp[(n-1) % 3]; acc = ACC+8*jj+2*ii
                    a(f"  v_pk_fma_f32 v[{acc}:{acc+1}], v[{tt}:{tt+1}], v[{ee}:{ee+1}], v[{acc}:{acc+1}] op_sel_hi:[1,0,1]")
            jj, ii = items[-1]; tt = tp[11 % 3]; acc = ACC+8*jj+2*ii
            a(f"  v_pk_fma_f32 v[{acc}:{acc+1}], v[{tt}:{tt+1}], v[{ee}:{ee+1}], v[{acc}:{acc+1}] op_sel_hi:[1,0,1]")
            return
        for j in range(3):
            for i in range(4):
                a(f"  v_dot2c_f32_bf16 v{ACC+8*j+2*i}, v{V0+4*j+i}, v{pl}")
                a(f"  v_dot2c_f32_bf16 v{ACC+8*j+2*i+1}, v{V0+4*j+i}, v{ph}")
    def zero_t():
        for t in (t0, t1, t2): a(f"  v_mov_b32 v{t}, 0")
    a.label("L_loop")
    for s in range(R):
        zero_t()
        a(f"  s_waitcnt vmcnt({3 + CH*(R-1)})")
        if cfg.sflag and s == R - 1:
            a(f"  s_cmp_lg_u32 {sI}, {R-1}")
            a(f"  s_cbranch_scc1 L_nosig")
            a(f"  s_lshl_b32 {sT}, {sW}, 2")
            a(f"  v_mov_b32 v109, {sT}")
            a(f"  v_mov_b32 v110, 1")
            a(f"  ds_write_b32 v109, v110 offset:{TQ + 240}")
            a.label("L_nosig")
        if cfg.dyn:
            a(f"  v_readfirstlane_b32 {sT}, v{TKR+s}")
        scores(Kr(s, 0))
        if cfg.dyn == 3:
            a(f"  s_cmp_lt_u32 {sI}, {LIM}")
            a(f"  s_cbranch_scc1 L_st{s}")
            a(f"  s_cmp_eq_u32 {sAlive}, 0")
            a(f"  s_cbranch_scc1 L_st{s}")
            a(f"  s_sub_u32 {sT2}, {sI}, {LIM}")
            a(f"  s_lshl_b32 {sT2}, {sT2}, 2")
            a(f"  v_mov_b32 v109, {sT2}")
            a(f"  s_cmp_lg_u32 {sW}, 0")
            a(f"  s_cbranch_scc1 L_rd{s}")
            a(f"  s_sub_u32 {sT}, {sT}, {sC0}")
            a(f"  s_add_u32 {sT2}, {sT}, 1")
            a(f"  s_cmp_lt_u32 {sT}, {PG}")
            a(f"  s_cselect_b32 {sT}, {sT2}, 0xffff")
            a(f"  v_mov_b32 v110, {sT}")
            a(f"  ds_write_b32 v109, v110 offset:{TQ}")
            a(f"  s_branch L_hv{s}")
            a.label(f"L_rd{s}")
            a(f"  ds_read_b32 v110, v109 offset:{TQ}")
            a(f"  s_add_u32 s101, s101, 1")
            a(f"  s_cmp_gt_u32 s101, 0x400000")
            a("  s_cbranch_scc1 L_end")
            a("  s_waitcnt lgkmcnt(0)")
            a(f"  v_readfirstlane_b32 {sT}, v110")
            a(f"  s_cmp_eq_u32 {sT}, 0")
            a(f"  s_cbranch_scc1 L_rd{s}")
            a.label(f"L_hv{s}")
            a(f"  s_lshl_b32 {sT2}, {sT}, 2")
            a(f"  s_add_u32 {sT2}, {sT2}, {sW}")
            a(f"  s_sub_u32 {sT2}, {sT2}, 4")
            a(f"  s_mul_i32 {sT2}, {sT2}, 3072")
            a(f"  s_add_u32 {sOff}, {sT2}, {sPool}")
            a(f"  s_cmp_lg_u32 {sT}, 0xffff")
            a(f"  s_cselect_b32 {sAlive}, 1, 0")
            a.label(f"L_st{s}")
        elif cfg.dyn:
            a(f"  s_sub_u32 {sT}, {sT}, {sC0}")
            if cfg.dyn == 2:
                a(f"  s_mul_i32 {sT2}, {sT}, 3072")
                a(f"  s_add_u32 {sT2}, {sT2}, {sPool}")
            a(f"  s_cmp_lt_u32 {sT}, {P}")
            a(f"  s_cselect_b32 {sT}, {sAlive}, 0")
            a(f"  s_cmp_lt_u32 {sI}, {LIM}")
            a(f"  s_cselect_b32 {sAlive}, 1, {sT}")
            if cfg.dyn == 2:
                a(f"  s_cselect_b32 {sOff}, {sOff}, {sT2}")
        else:
            a(f"  s_cmp_lt_u32 {sI}, {LIM}")
            a(f"  s_cselect_b32 {sAlive}, 1, 0")
        a(f"  s_add_u32 {sNval}, {sNval}, {sAlive}")
        a(f"  s_cmp_eq_u32 {sAlive}, 0")
        a(f"  s_cselect_b32 s{srdK+2}, 0, s{srdK+2}")
        a(f"  s_cselect_b32 s{srdV+2}, 0, s{srdV+2}")
        if cfg.dyn:
            a(f"  s_cmp_ge_u32 {sI}, {LIM - R}")
            a(f"  s_cselect_b32 {sT}, {sAlive}, 0")
            if cfg.dyn == 3:
                a(f"  s_cmp_eq_u32 {sW}, 0")
                a(f"  s_cselect_b32 {sT}, {sT}, 0")
            a(f"  s_lshl_b32 s{srdT+2}, {sT}, 16")
            issueT(s)
        issueK(s)
        softmax(s)
        a(f"  s_waitcnt vmcnt({CH*(R-1) + (4 if cfg.dyn else 3)})")
        pv(Vr(s, 0))
        issueV(s)
        a(f"  s_add_u32 {sI}, {sI}, 1")
        a(f"  s_cmp_lt_u32 {sI}, {sNval}")
        if s < R - 1 or NL:
            a("  s_cbranch_scc0 L_tail")
        else:
            a("  s_cbranch_scc1 L_loop")
    if NL:
        a(f"  s_cmp_eq_u32 {sFirst}, 0")
        a("  s_cbranch_scc1 L_loop")
        LK = 16
        a(f"  s_mov_b32 {sFirst}, 0")
        a(f"  v_lshl_add_u32 v3, v{vLane}, 4, {sLb}")
        a(f"  s_waitcnt vmcnt({CH*R})")
        a(f"  s_mov_b32 {sT2}, 0")
        a.label("L_lds")
        for j in range(6):
            a(f"  ds_read_b128 v[{LK+4*j}:{LK+4*j+3}], v3 offset:{1024*j}")
        zero_t()
        a(f"  v_add_u32 v3, 6144, v3")
        a("  s_waitcnt lgkmcnt(3)")
        scores(LK)
        softmax("L")
        a("  s_waitcnt lgkmcnt(0)")
        pv(LK + 12)
        a(f"  s_add_u32 {sT2}, {sT2}, 1")
        a(f"  s_cmp_lt_u32 {sT2}, {NL}")
        a("  s_cbranch_scc1 L_lds")
        a("  s_branch L_loop")
    a.label("L_tail")
    stamp("loopend", "main,tail,tail2,tail3,pro2,dbg")

    vGv = 19
    assert cfg.wmax and not cfg.wotail
    tA, tB = 100, 101
    a(f"  v_mov_b32 v{tA}, v{vM}")
    dpp("v_add_f32", vL, "row_ror:8")
    for t in range(12): a(f"  v_permlane32_swap_b32 v{ACC+t}, v{ACC+t+12}")
    a(f"  v_mov_b32 v{tB}, v{vL}")
    a(f"  v_permlane16_swap_b32 v{vL}, v{tB}")
    for t in range(12): a(f"  v_add_f32 v{ACC+t}, v{ACC+t}, v{ACC+t+12}")
    a(f"  v_add_f32 v{vL}, v{vL}, v{tB}")
    for t in range(6): a(f"  v_permlane16_swap_b32 v{ACC+t}, v{ACC+t+6}")
    a(f"  v_mov_b32 v{tB}, v{vL}")
    a(f"  v_permlane32_swap_b32 v{vL}, v{tB}")
    for t in range(6): a(f"  v_add_f32 v{ACC+t}, v{ACC+t}, v{ACC+t+6}")
    a(f"  v_add_f32 v{tB}, v{vL}, v{tB}")
    for t in range(6): dpp("v_add_f32", ACC+t, "row_ror:8")
    for k in range(3):
        a(f"  ds_write_b64 v{pF+k}, v[{ACC+2*k}:{ACC+2*k+1}]")
    a(f"  ds_write_b64 v{pFH}, v[{tA}:{tB}] offset:768")
    a("  s_waitcnt lgkmcnt(0)")
    a("  s_barrier")
    stamp("tbar1", "tail")
    a(f"  s_cmp_ge_u32 {sW}, 2")
    a("  s_cbranch_scc1 L_nomerge")
    MB = 100
    for w2 in range(4):
        a(f"  ds_read_b64 v[{MB+8+2*w2}:{MB+8+2*w2+1}], v{pMh} offset:{800*w2}")
    for w2 in range(4):
        a(f"  ds_read_b64 v[{MB+2*w2}:{MB+2*w2+1}], v{pMr} offset:{PART+800*w2}")
    a(f"  v_cmp_eq_u32 vcc, 96, v{vTid}")
    a(f"  s_mov_b64 s[70:71], vcc")
    a(f"  v_cmp_ge_u32 vcc, 96, v{vTid}")
    a(f"  s_mov_b64 s[72:73], vcc")
    a(f"  v_mov_b32 v77, {T0}")
    a(f"  v_mov_b32 v79, {T1}")
    a("  s_waitcnt lgkmcnt(4)")
    mM = [MB+8+2*w2 for w2 in range(4)]; mL = [x+1 for x in mM]
    a(f"  v_max_f32 v29, v{mM[0]}, v{mM[1]}")
    a(f"  v_max3_f32 v29, v29, v{mM[2]}, v{mM[3]}")
    for w2 in range(4): a(f"  v_sub_f32 v{mM[w2]}, v{mM[w2]}, v29")
    for w2 in range(4): a(f"  v_mul_f32 v{mM[w2]}, {LOG2E}, v{mM[w2]}")
    for w2 in range(4): a(f"  v_exp_f32 v{mM[w2]}, v{mM[w2]}")
    a(f"  v_mul_f32 v30, v{mL[0]}, v{mM[0]}")
    for w2 in range(1, 4): a(f"  v_fmac_f32 v30, v{mL[w2]}, v{mM[w2]}")
    a("  s_waitcnt lgkmcnt(0)")
    a(f"  v_mul_f32 v76, v{MB}, v{mM[0]}")
    a(f"  v_mul_f32 v78, v{MB+1}, v{mM[0]}")
    for w2 in range(1, 4):
        a(f"  v_fmac_f32 v76, v{MB+2*w2}, v{mM[w2]}")
        a(f"  v_fmac_f32 v78, v{MB+2*w2+1}, v{mM[w2]}")
    a(f"  v_cndmask_b32 v76, v76, v29, s[70:71]")
    a(f"  v_cndmask_b32 v78, v78, v30, s[70:71]")
    a(f"  s_mov_b64 exec, s[72:73]")
    restamp("stiss", "tail3")
    a(f"  global_store_dwordx4 v{pMs}, v[76:79], s[26:27] {cfg.tst}")
    if cfg.diag == "tail3":
        a("  s_waitcnt vmcnt(0)")
        restamp("stack", "tail3")
    a(f"  s_mov_b64 exec, -1")
    a.label("L_nomerge")
    stamp("apub", "main,tail,tail2,dbg")
    a(f"  s_cmp_ge_u32 {sCj}, 8")
    a("  s_cbranch_scc1 L_diag")
    HG = 80
    def h1_data():
        for k in range(3):
            a(f"  global_load_dwordx4 v[{HG+4*k}:{HG+4*k+3}], v{vH1}, s[26:27] offset:{512*k} {cfg.tld}")
    def h1_head():
        a(f"  global_load_dwordx4 v[{HG+12}:{HG+15}], v{vH2}, s[26:27] {cfg.tld}")
    restamp("h1iss", "tail2")
    if cfg.pp:
        a(f"  global_load_dwordx4 v[44:47], v{vH2}, s[26:27] {cfg.tld}")
        for k in range(3):
            a(f"  global_load_dwordx4 v[{32+4*k}:{35+4*k}], v{vH1}, s[26:27] offset:{512*k} {cfg.tld}")
    else:
        h1_head(); h1_data()
    BFt = (208, 232) if R <= 2 else (232, 32)
    assert R <= 3 and not (R > 2 and cfg.pp)
    def b_frags():
        for tt in range(2):
            for s in range(6):
                r = BFt[tt] + 4*s
                a(f"  ds_read_b64_tr_b16 v[{r}:{r+1}], v{vTr} offset:{8192*s + 32*tt}")
                a(f"  ds_read_b64_tr_b16 v[{r+2}:{r+3}], v{vTr} offset:{8192*s + 32*tt + 1024}")
    b_frags()
    a(f"  ds_read_b32 v{vGv}, v{pGV} offset:{GV}")
    if cfg.pp:
        def h1_issue(base):
            a(f"  global_load_dwordx4 v[{base+12}:{base+15}], v{vH2}, s[26:27] {cfg.tld}")
            for k in range(3):
                a(f"  global_load_dwordx4 v[{base+4*k}:{base+4*k+3}], v{vH1}, s[26:27] offset:{512*k} {cfg.tld}")
        pipelined_poll("h1", h1_issue, 4, 32, 120, HG, [0, 4, 8, 12], 20, True)
    else:
        a("  s_waitcnt vmcnt(0)")
        check_tags([HG, HG+4, HG+8, HG+12], 20)
        a("  s_cbranch_vccz L_h1ok")
        a.label("L_h1hdr")
        spin_guard(cfg.sleep)
        h1_head(); h1_data()
        a("  s_waitcnt vmcnt(0)")
        check_tags([HG, HG+4, HG+8, HG+12], 20)
        a("  s_cbranch_vccnz L_h1hdr")
    a.label("L_h1ok")
    stamp("h1ok", "tail,tail2")
    gm, gl = HG+12, HG+14
    a(f"  v_mov_b32 v20, v{gm}")
    a(f"  v_mov_b32 v21, v{gm}")
    a(f"  v_permlane32_swap_b32 v20, v21")
    a(f"  v_max_f32 v20, v20, v21")
    a(f"  v_sub_f32 v21, v{gm}, v20")
    a(f"  v_mul_f32 v21, {LOG2E}, v21")
    a(f"  v_exp_f32 v21, v21")
    a(f"  v_mul_f32 v24, v{gl}, v21")
    a(f"  v_mov_b32 v25, v24")
    a(f"  v_permlane32_swap_b32 v24, v25")
    a(f"  v_add_f32 v24, v24, v25")
    a(f"  v_rcp_f32 v24, v24")
    a(f"  v_mul_f32 v21, v21, v24")
    vals = [HG, HG+2, HG+4, HG+6, HG+8, HG+10]
    for r in vals: a(f"  v_mul_f32 v{r}, v{r}, v21")
    a(f"  v_permlane32_swap_b32 v{vals[0]}, v{vals[2]}")
    a(f"  v_permlane32_swap_b32 v{vals[1]}, v{vals[3]}")
    a(f"  v_mov_b32 v24, v{vals[4]}")
    a(f"  v_mov_b32 v25, v{vals[5]}")
    a(f"  v_add_f32 v{vals[0]}, v{vals[0]}, v{vals[2]}")
    a(f"  v_add_f32 v{vals[1]}, v{vals[1]}, v{vals[3]}")
    a(f"  v_permlane32_swap_b32 v{vals[4]}, v24")
    a(f"  v_permlane32_swap_b32 v{vals[5]}, v25")
    a(f"  v_cvt_pk_bf16_f32 v26, v{vals[0]}, v{vals[1]}")
    a(f"  v_add_f32 v{vals[4]}, v{vals[4]}, v24")
    a(f"  v_add_f32 v{vals[5]}, v{vals[5]}, v25")
    a(f"  v_cvt_pk_bf16_f32 v27, v{vals[4]}, v{vals[5]}")
    a(f"  ds_write_b32 v{pOB1}, v26 offset:{OB}")
    a(f"  ds_write_b32 v{pOB2}, v27 offset:{OB+256}")
    a(f"  v_and_b32 v8, 16, v{vLane}")
    a(f"  v_cmp_ne_u32 s[72:73], 0, v8")
    D0, D1 = 100, 104
    for e in range(8): a(f"  v_mov_b32 v{D0+e}, 0")
    a(f"  v_mov_b32 v109, {T0}")
    a(f"  v_mov_b32 v111, {T1}")
    a(f"  v_mov_b32 v113, {T0}")
    a(f"  v_mov_b32 v115, {T1}")
    a("  s_waitcnt lgkmcnt(0)")
    a("  s_barrier")
    AF = ACC
    for s in range(6):
        a(f"  ds_read_b128 v[{AF+4*s}:{AF+4*s+3}], v{pAF} offset:{OB+64*s}")
    a("  s_waitcnt lgkmcnt(4)")
    for s in range(6):
        if s in (2, 4): a(f"  s_waitcnt lgkmcnt({4 - s})")
        for tt, D in ((0, D0), (1, D1)):
            r = BFt[tt] + 4*s
            a(f"  v_mfma_f32_16x16x32_bf16 v[{D}:{D+3}], v[{AF+4*s}:{AF+4*s+3}], v[{r}:{r+3}], v[{D}:{D+3}]")
    for tt, D in ((0, D0), (1, D1)):
        g = 108 + 4*tt
        a(f"  v_cndmask_b32 v{g}, v{D}, v{D+2}, s[72:73]")
        a(f"  v_cndmask_b32 v{g+2}, v{D+1}, v{D+3}, s[72:73]")
    a("  s_mov_b32 exec_hi, 0")
    a(f"  global_store_dwordx4 v{vP0}, v[108:111], s[26:27] {cfg.tst}")
    a(f"  global_store_dwordx4 v{vP0+1}, v[112:115], s[26:27] {cfg.tst}")
    if cfg.diag == "tail3":
        restamp("st2iss", "tail3")
        a("  s_waitcnt vmcnt(0)")
        restamp("st2ack", "tail3")
    a("  s_mov_b32 exec_hi, -1")
    stamp("spub", "main,tail,tail2,dbg")
    a(f"  s_cmp_lg_u32 {sW}, 0")
    a("  s_cbranch_scc1 L_fin_end")
    SG = 80
    if cfg.pp:
        def s_issue(base):
            for i in range(4):
                a(f"  global_load_dwordx4 v[{base+4*i}:{base+4*i+3}], v{vSa}, s[26:27] offset:{1024*i} {cfg.tld}")
        pipelined_poll("h2", s_issue, 4, 32, 120, SG, [0, 4, 8, 12], 20, False)
    else:
        a.label("L_spoll")
        restamp("h2iss", "tail2")
        for i in range(4):
            a(f"  global_load_dwordx4 v[{SG+4*i}:{SG+4*i+3}], v{vSa}, s[26:27] offset:{1024*i} {cfg.tld}")
        a("  s_waitcnt vmcnt(0)")
        check_tags([SG, SG+4, SG+8, SG+12], 20)
        a("  s_cbranch_vccz L_sok")
        spin_guard(cfg.sleep)
        a("  s_branch L_spoll")
    a.label("L_sok")
    stamp("h2ok", "tail,tail2")
    for i in range(1, 4):
        a(f"  v_add_f32 v{SG}, v{SG}, v{SG+4*i}")
        a(f"  v_add_f32 v{SG+2}, v{SG+2}, v{SG+4*i+2}")
    reduce_hi([SG, SG+2], [20, 21])
    a(f"  v_and_b32 v20, 8, v{vLane}")
    a(f"  v_cmp_ne_u32 vcc, 0, v20")
    a(f"  v_cndmask_b32 v21, v{SG}, v{SG+2}, vcc")
    bf16round(21, 21)
    a(f"  v_mul_f32 v21, v21, v{vGv}")
    bf16round(21, 21)
    a(f"  v_lshlrev_b32 v22, 16, v{vXv}")
    a(f"  v_add_f32 v21, v21, v22")
    a(f"  v_cvt_pk_bf16_f32 v21, v21, v21")
    a("  s_mov_b64 exec, 0xffff")
    a(f"  global_store_short v{vOi}, v21, s[22:23] {cfg.ost}")
    a("  s_mov_b64 exec, -1")
    a(f"  s_add_u32 {sT}, {sH}, {sCj}")
    a(f"  s_cmp_lg_u32 {sT}, 0")
    a("  s_cbranch_scc1 L_fin_end")
    a(f"  v_mov_b32 v22, {T0}")
    a(f"  v_mov_b32 v23, {T1}")
    a(f"  v_mov_b32 v24, 0")
    a("  s_mov_b64 exec, 1")
    a(f"  global_store_dwordx2 v24, v[22:23], s[26:27] sc1")
    a("  s_mov_b64 exec, -1")
    a.label("L_fin_end")
    stamp("end", "main,tail,pro2")
    a("  s_branch L_diag")

    a.label("L_svc")
    a("  s_mov_b32 s101, 0")
    sCb, sS_ = "s61", "s62"
    qA = 8
    a(f"  v_lshlrev_b32 v3, 11, v{vHf}")
    a(f"  v_lshl_add_u32 v3, v{vCc}, 4, v3")
    a(f"  s_mul_i32 {sT}, {sH}, {6*2048}")
    a(f"  s_lshl_b32 {sT2}, {sB}, 9")
    a(f"  s_add_u32 {sT}, {sT}, {sT2}")
    a(f"  s_add_u32 {sT}, {sT}, {QP3}")
    a(f"  v_add_u32 v{qA}, {sT}, v3")
    a(f"  v_add_u32 v{qA+1}, 4096, v{qA}")
    a(f"  v_add_u32 v{qA+2}, 8192, v{qA}")
    a(f"  v_lshlrev_b32 v11, 2, v{vCc}")
    a("  s_waitcnt lgkmcnt(0)")
    a("  s_load_dwordx2 s[28:29], s[26:27], 0")
    mk_srd(srdG, 16, 1966080)
    mk_srd(srdU, 18, 1966080)
    mk_srd(srdD, 20, 1966080)
    a("  s_waitcnt lgkmcnt(0)")
    a(f"  s_add_u32 {T0}, s28, 1")
    a(f"  s_add_u32 {T1}, s29, 1")
    a("  s_barrier")
    GQ = 16
    if cfg.dyn:
        a(f"  s_lshl_b32 {sT}, {sH}, 3")
        a(f"  s_add_u32 {sT2}, {sT}, {sU}")
        a(f"  s_lshl_b32 {sT2}, {sT2}, 4")
        a(f"  s_add_u32 {sT2}, {sT2}, {RD}")
        a(f"  v_mov_b32 v12, {sT2}")
        a(f"  v_mov_b32 v40, 0")
        a(f"  v_mov_b32 v41, {T0}")
        a(f"  v_mov_b32 v42, 0")
        a(f"  v_mov_b32 v43, {T1}")
        a("  s_mov_b64 exec, 1")
        a(f"  global_store_dwordx4 v12, v[40:43], s[26:27] sc1")
        a("  s_mov_b64 exec, -1")
        a(f"  s_xor_b32 {sT2}, {sU}, 1")
        a(f"  s_add_u32 {sT2}, {sT2}, {sT}")
        a(f"  s_lshl_b32 {sT2}, {sT2}, 4")
        a(f"  s_add_u32 {sT2}, {sT2}, {RD}")
        a(f"  v_mov_b32 v12, {sT2}")
    if cfg.qpp:
        def q_issue(base):
            for k in range(3):
                a(f"  global_load_dwordx4 v[{base+4*k}:{base+4*k+3}], v{qA+k}, s[26:27] {cfg.qld}")
            a(f"  global_load_dwordx4 v[{base+12}:{base+15}], v12, s[26:27] sc1")
        assert cfg.dyn
        save = cfg.ppsleep; cfg.ppsleep = cfg.qppsleep
        pipelined_poll("q", q_issue, 4, 44, 60, GQ, [0, 4, 8, 12], 34, False)
        cfg.ppsleep = save
    else:
        a.label("L_qpoll")
        for k in range(3):
            a(f"  global_load_dwordx4 v[{GQ+4*k}:{GQ+4*k+3}], v{qA+k}, s[26:27] {cfg.qld}")
        if cfg.dyn:
            a(f"  global_load_dwordx4 v[{GQ+12}:{GQ+15}], v12, s[26:27] sc1")
        a("  s_waitcnt vmcnt(0)")
        check_tags([GQ, GQ+4, GQ+8] + ([GQ+12] if cfg.dyn else []), 34)
        a("  s_cbranch_vccz L_qgot")
        spin_guard()
        a("  s_branch L_qpoll")
    a.label("L_qgot")
    qv = [GQ, GQ+2, GQ+4, GQ+6, GQ+8, GQ+10]
    for r, t in zip(qv, range(34, 40)): a(f"  v_mov_b32 v{t}, v{r}")
    for r, t in zip(qv, range(34, 40)): a(f"  v_permlane32_swap_b32 v{r}, v{t}")
    for r, t in zip(qv, range(34, 40)): a(f"  v_add_f32 v{r}, v{r}, v{t}")
    for k in range(3): a(f"  v_cvt_pk_bf16_f32 v{34+k}, v{GQ+4*k}, v{GQ+4*k+2}")
    for k in range(3): a(f"  ds_write_b32 v11, v{34+k} offset:{QB + 128*k}")
    a("  s_waitcnt lgkmcnt(0)")
    a("  s_barrier")
    a("  s_waitcnt vmcnt(0)")
    stamp("fstart", "ffn")
    if cfg.noffn:
        a(f"  v_mov_b32 v8, 1.0")
        a(f"  v_mov_b32 v9, 1.0")
        a(f"  v_mov_b32 v10, 1.0")
        a(f"  v_mov_b32 v11, 1.0")
        a(f"  v_lshlrev_b32 v3, 4, v{vLane}")
        a("  s_mov_b64 exec, 0xf")
        a(f"  ds_write_b128 v3, v[8:11] offset:{GV}")
        a("  s_waitcnt lgkmcnt(0)")
        a("  s_branch L_end")
    fA, fB, fB2 = 10, 11, 12
    if cfg.sflag:
        a(f"  v_mov_b32 v3, {TQ + 240}")
        a.label("L_sfw")
        a("  s_sleep 2")
        a("  ds_read_b128 v[16:19], v3")
        a(f"  s_add_u32 s101, s101, 1")
        a(f"  s_cmp_gt_u32 s101, 0x400000")
        a("  s_cbranch_scc1 L_end")
        a("  s_waitcnt lgkmcnt(0)")
        a("  v_and_b32 v16, v16, v17")
        a("  v_and_b32 v18, v18, v19")
        a("  v_and_b32 v16, v16, v18")
        a("  v_readfirstlane_b32 s61, v16")
        a("  s_cmp_eq_u32 s61, 1")
        a("  s_cbranch_scc0 L_sfw")
    a(f"  s_cmp_lt_u32 {sCj}, 8")
    a("  s_cbranch_scc1 L_nof1")
    a(f"  s_mul_i32 {sI}, {sH}, 3")
    a(f"  s_add_u32 {sI}, {sI}, {sB}")
    a(f"  s_lshr_b32 {sCb}, {sI}, 2")
    a(f"  s_and_b32 {sS_}, {sI}, 3")
    a(f"  v_lshrrev_b32 v3, 4, v{vLane}")
    a(f"  v_and_b32 v13, 3, v{vLane}")
    a(f"  v_bfe_u32 v14, v{vLane}, 2, 2")
    a(f"  v_mul_u32_u24 v{fA}, {XS}, v13")
    a(f"  v_lshl_add_u32 v{fA}, v3, 4, v{fA}")
    a(f"  s_mul_i32 {sT}, {sS_}, 320")
    a(f"  v_add_u32 v{fA}, {sT}, v{fA}")
    a(f"  v_lshl_add_u32 v15, v3, 3, v14")
    a(f"  v_lshlrev_b32 v15, 7, v15")
    a(f"  v_lshl_add_u32 v{fB}, v13, 3, v15")
    a(f"  v_add_u32 v{fB}, {F1S}, v{fB}")
    FA, FB, FDd = 16, 40, 120
    for st in range(5):
        a(f"  ds_read_b128 v[{FA+4*st}:{FA+4*st+3}], v{fA} offset:{XN + 64*st}")
    for t in range(32): a(f"  v_mov_b32 v{FDd+t}, 0")
    quarter_masks(3, MQ)
    for mat in range(2):
        for t in range(4):
            for st in range(5):
                r = FB + 4*(5*t + st)
                a(f"  ds_read_b64_tr_b16 v[{r}:{r+1}], v{fB} offset:{20480*mat + 4096*st + 32*t}")
                a(f"  ds_read_b64_tr_b16 v[{r+2}:{r+3}], v{fB} offset:{20480*mat + 4096*st + 32*t + 512}")
            a("  s_waitcnt lgkmcnt(0)")
        for st in range(5):
            for t in range(4):
                r = FB + 4*(5*t + st); D = FDd + 4*(4*mat + t)
                a(f"  v_mfma_f32_16x16x32_bf16 v[{D}:{D+3}], v[{FA+4*st}:{FA+4*st+3}], v[{r}:{r+3}], v[{D}:{D+3}]")
    a(f"  s_lshl_b32 {sT}, {sI}, 11")
    a(f"  s_add_u32 {sT}, {sT}, {G1}")
    a(f"  v_lshl_add_u32 v13, v{vLane}, 4, {sT}")
    for mat in range(2):
        g = 32 + 4*mat
        for i in range(4):
            Dm = FDd + 16*mat + i
            select4(g+i, Dm, Dm+4, Dm+8, Dm+12, MQ)
        a(f"  global_store_dwordx4 v13, v[{g}:{g+3}], s[26:27] offset:{1024*mat} {cfg.hst}")
    def flag_store(vaddr):
        a("  v_mov_b32 v40, 0")
        a(f"  v_mov_b32 v41, {T0}")
        a("  v_mov_b32 v42, 0")
        a(f"  v_mov_b32 v43, {T1}")
        a("  s_waitcnt vmcnt(0)")
        a("  s_mov_b64 exec, 1")
        a(f"  global_store_dwordx4 v{vaddr}, v[40:43], s[26:27] {cfg.pst}")
        a("  s_mov_b64 exec, -1")
    a(f"  s_lshl_b32 {sT}, {sI}, 4")
    a(f"  s_add_u32 {sT}, {sT}, {F1}")
    a(f"  v_mov_b32 v14, {sT}")
    flag_store(14)
    stamp("f1pub", "ffn")
    a(f"  s_lshl_b32 {sT}, {sCb}, 6")
    a(f"  s_add_u32 {sT}, {sT}, {F1}")
    a(f"  v_and_b32 v15, 3, v{vLane}")
    a(f"  v_lshl_add_u32 v15, v15, 4, {sT}")
    a.label("L_f1poll")
    a(f"  global_load_dwordx4 v[44:47], v15, s[26:27] {cfg.pld}")
    a("  s_waitcnt vmcnt(0)")
    check_tags([44], 64)
    a("  s_cbranch_vccz L_f1ok")
    spin_guard(cfg.fsleep)
    a("  s_branch L_f1poll")
    a.label("L_f1ok")
    a(f"  s_lshl_b32 {sT}, {sCb}, 13")
    a(f"  s_lshl_b32 {sT2}, {sS_}, 8")
    a(f"  s_add_u32 {sT}, {sT}, {sT2}")
    a(f"  s_add_u32 {sT}, {sT}, {G1}")
    a(f"  v_lshrrev_b32 v3, 4, v{vLane}")
    a(f"  v_lshlrev_b32 v14, 11, v3")
    a(f"  v_and_b32 v15, 15, v{vLane}")
    a(f"  v_lshl_add_u32 v14, v15, 4, v14")
    a(f"  v_add_u32 v14, {sT}, v14")
    FGg = 48
    for mat in range(2):
        a(f"  global_load_dwordx4 v[{FGg+4*mat}:{FGg+4*mat+3}], v14, s[26:27] offset:{1024*mat} {cfg.hld}")
    a("  s_waitcnt vmcnt(0)")
    stamp("f1ok", "ffn")
    fv = list(range(FGg, FGg+8))
    reduce_hi(fv, list(range(64, 72)), rors=())
    select4(72, FGg, FGg+1, FGg+2, FGg+3, MQ)
    select4(73, FGg+4, FGg+5, FGg+6, FGg+7, MQ)
    bf16round(72, 72)
    bf16round(73, 73)
    a("  v_mul_f32 v74, v72, v72")
    a("  v_mul_f32 v74, v74, v72")
    a(f"  v_mul_f32 v74, {f32(0.044715)}, v74")
    a("  v_add_f32 v74, v72, v74")
    a(f"  v_mul_f32 v74, {f32(-2.0*0.7978845608028654*1.4426950408889634)}, v74")
    a("  v_exp_f32 v74, v74")
    a("  v_add_f32 v74, 1.0, v74")
    a("  v_rcp_f32 v74, v74")
    a("  v_mul_f32 v74, v72, v74")
    bf16round(74, 74)
    a("  v_mul_f32 v74, v74, v73")
    a("  v_cvt_pk_bf16_f32 v74, v74, v74")
    a("  v_mov_b32 v75, v74 quad_perm:[1,0,3,2] row_mask:0xf bank_mask:0xf")
    a(f"  v_perm_b32 v76, v75, v74, {sPermLo}")
    a("  v_mov_b32 v78, v76")
    a("  v_permlane16_swap_b32 v76, v78")
    a(f"  v_mov_b32 v77, {T0}")
    a(f"  v_mov_b32 v79, {T1}")
    a(f"  s_lshl_b32 {sT}, {sI}, 8")
    a(f"  s_add_u32 {sT}, {sT}, {G2}")
    a(f"  v_lshlrev_b32 v3, 7, v{vHf}")
    a(f"  v_lshl_add_u32 v3, v15, 3, v3")
    a(f"  v_add_u32 v3, {sT}, v3")
    a("  s_mov_b32 exec_lo, 0x00005555")
    a("  s_mov_b32 exec_hi, 0x00005555")
    a(f"  global_store_dwordx4 v3, v[76:79], s[26:27] {cfg.pst}")
    a("  s_mov_b64 exec, -1")
    a("  s_branch L_diag")
    a.label("L_nof1")
    a(f"  s_cmp_ge_u32 {sH}, 24")
    a("  s_cbranch_scc1 L_nof2")
    a(f"  s_lshl_b32 {sT}, {sH}, 10")
    a(f"  s_add_u32 {sT}, {sT}, {G2}")
    a(f"  v_lshl_add_u32 v14, v{vLane}, 4, {sT}")
    a(f"  v_lshrrev_b32 v3, 4, v{vLane}")
    a(f"  v_bfe_u32 v15, v{vLane}, 2, 2")
    a(f"  v_lshl_add_u32 v15, v3, 3, v15")
    a(f"  v_lshlrev_b32 v15, 8, v15")
    a(f"  v_and_b32 v13, 3, v{vLane}")
    a(f"  v_lshl_add_u32 v{fB2}, v13, 3, v15")
    a(f"  v_add_u32 v{fB2}, {F2S}, v{fB2}")
    a.label("L_f2poll")
    a(f"  global_load_dwordx4 v[48:51], v14, s[26:27] {cfg.pld}")
    a("  s_waitcnt vmcnt(0)")
    check_tags([48], 64)
    a("  s_cbranch_vccz L_f2ok")
    spin_guard(cfg.fsleep)
    a("  s_branch L_f2poll")
    a.label("L_f2ok")
    stamp("f2ok", "ffn")
    F2B = 80
    for t in range(8):
        for st in range(2):
            r = F2B + 8*t + 4*st
            a(f"  ds_read_b64_tr_b16 v[{r}:{r+1}], v{fB2} offset:{8192*st + 32*t}")
            a(f"  ds_read_b64_tr_b16 v[{r+2}:{r+3}], v{fB2} offset:{8192*st + 32*t + 1024}")
        if t % 2 == 1: a("  s_waitcnt lgkmcnt(0)")
    a(f"  v_and_b32 v3, 1, v{vG}")
    a(f"  v_mul_u32_u24 v3, {2*HS}, v3")
    a(f"  v_lshrrev_b32 v14, 4, v{vLane}")
    a(f"  v_lshl_add_u32 v3, v14, 5, v3")
    a(f"  v_lshl_add_u32 v3, v{vC}, 2, v3")
    a(f"  ds_write_b32 v3, v48 offset:{HID}")
    a(f"  ds_write_b32 v3, v50 offset:{HID+HS}")
    a(f"  v_mul_u32_u24 v3, {HS}, v13")
    a(f"  v_lshrrev_b32 v14, 4, v{vLane}")
    a(f"  v_lshl_add_u32 v3, v14, 4, v3")
    a("  s_waitcnt lgkmcnt(0)")
    a(f"  ds_read_b128 v[52:55], v3 offset:{HID}")
    a(f"  ds_read_b128 v[56:59], v3 offset:{HID+64}")
    F2D = 144
    for t in range(32): a(f"  v_mov_b32 v{F2D+t}, 0")
    quarter_masks(14, MQ)
    a(f"  s_mul_i32 {sI}, {sCj}, 24")
    a(f"  s_add_u32 {sI}, {sI}, {sH}")
    a(f"  s_lshl_b32 {sT}, {sI}, 11")
    a(f"  s_add_u32 {sT}, {sT}, {FP3}")
    a(f"  v_lshl_add_u32 v13, v{vLane}, 4, {sT}")
    a("  s_waitcnt lgkmcnt(0)")
    for st in range(2):
        for t in range(8):
            r = F2B + 8*t + 4*st; D = F2D + 4*t
            a(f"  v_mfma_f32_16x16x32_bf16 v[{D}:{D+3}], v[{52+4*st}:{55+4*st}], v[{r}:{r+3}], v[{D}:{D+3}]")
    for rr in range(2):
        g = 32 + 4*rr
        for i in range(4):
            Dm = F2D + 16*rr + i
            select4(g+i, Dm, Dm+4, Dm+8, Dm+12, MQ)
        a(f"  global_store_dwordx4 v13, v[{g}:{g+3}], s[26:27] offset:{1024*rr} {cfg.hst}")
    a(f"  s_lshl_b32 {sT}, {sCj}, 9")
    a(f"  s_lshl_b32 {sT2}, {sH}, 4")
    a(f"  s_add_u32 {sT}, {sT}, {sT2}")
    a(f"  s_add_u32 {sT}, {sT}, {F3}")
    a(f"  v_mov_b32 v14, {sT}")
    flag_store(14)
    a.label("L_nof2")
    stamp("f2pub", "ffn")
    a(f"  s_lshl_b32 {sT}, {sCj}, 9")
    a(f"  s_add_u32 {sT}, {sT}, {F3}")
    a(f"  v_min_u32 v3, 23, v{vLane}")
    a(f"  v_lshl_add_u32 v15, v3, 4, {sT}")
    a.label("L_f3poll")
    a(f"  global_load_dwordx4 v[44:47], v15, s[26:27] {cfg.pld}")
    a("  s_waitcnt vmcnt(0)")
    check_tags([44], 64)
    a("  s_cbranch_vccz L_f3ok")
    spin_guard(cfg.fsleep3)
    a("  s_branch L_f3poll")
    a.label("L_f3ok")
    a(f"  s_mul_i32 {sT}, {sCj}, {24*2048}")
    a(f"  s_lshl_b32 {sT2}, {sH}, 6")
    a(f"  s_add_u32 {sT}, {sT}, {sT2}")
    a(f"  s_add_u32 {sT}, {sT}, {FP3}")
    a(f"  v_lshrrev_b32 v3, 2, v{vLane}")
    a(f"  v_lshlrev_b32 v3, 11, v3")
    a(f"  v_and_b32 v13, 3, v{vLane}")
    a(f"  v_lshl_add_u32 v3, v13, 4, v3")
    a(f"  v_add_u32 v14, {sT}, v3")
    a(f"  v_add_u32 v15, {16*2048}, v14")
    for e in range(4): a(f"  v_mov_b32 v{52+e}, 0")
    a(f"  global_load_dwordx4 v[48:51], v14, s[26:27] {cfg.hld}")
    a("  s_mov_b32 exec_hi, 0")
    a(f"  global_load_dwordx4 v[52:55], v15, s[26:27] {cfg.hld}")
    a("  s_mov_b32 exec_hi, -1")
    a("  s_waitcnt vmcnt(0)")
    for e in range(4): a(f"  v_add_f32 v{48+e}, v{48+e}, v{52+e}")
    reduce_hi([48, 49, 50, 51], [56, 57, 58, 59], rors=(4, 8))
    for e in range(4):
        r = 48 + e
        bf16round(r, r)
        a(f"  v_mul_f32 v{56+e}, {f32(-1.4426950408889634)}, v{r}")
    for e in range(4): a(f"  v_exp_f32 v{56+e}, v{56+e}")
    for e in range(4): a(f"  v_add_f32 v{56+e}, 1.0, v{56+e}")
    for e in range(4): a(f"  v_rcp_f32 v{56+e}, v{56+e}")
    for e in range(4): a(f"  v_mul_f32 v{48+e}, v{48+e}, v{56+e}")
    for e in range(4): bf16round(48+e, 48+e)
    a(f"  v_lshlrev_b32 v3, 4, v13")
    a("  s_mov_b64 exec, 0xf")
    a(f"  ds_write_b128 v3, v[48:51] offset:{GV}")
    a("  s_mov_b64 exec, -1")
    a("  s_waitcnt lgkmcnt(0)")
    stamp("fend", "ffn")
    a.label("L_diag")
    if cfg.diag == "dbg":
        a(f"  s_cmp_lg_u32 {sW}, 0")
        a("  s_cbranch_scc1 L_end")
        a(f"  s_cmp_ge_u32 {sCj}, 8")
        a("  s_cbranch_scc1 L_end")
        a("  s_load_dwordx2 s[24:25], s[0:1], 80")
        a("  s_memrealtime s[98:99]")
        a("  s_waitcnt lgkmcnt(0)")
        a("  s_mov_b64 exec, 1")
        a("  s_not_b32 s64, s84")
        vals = ["s64"] + [f"s{84+2*i}" for i in range(1, nst[0])] + ["s98"]
        for i, r in enumerate(vals):
            a(f"  v_mov_b32 v3, {4*i}")
            a(f"  v_mov_b32 v4, {r}")
            a(f"  global_atomic_umax v3, v4, s[24:25] sc1")
            a("  s_nop 1")
    elif cfg.diag:
        a("  s_waitcnt lgkmcnt(0)")
        a(f"  s_mul_i32 {sT}, s2, 5")
        a(f"  s_add_u32 {sT}, {sT}, {sW}")
        a(f"  s_lshl_b32 {sT}, {sT}, 7")
        a(f"  s_add_u32 {sT}, {sT}, {STAMP}")
        a(f"  v_mov_b32 v3, {sT}")
        a("  s_mov_b64 exec, 1")
        for i in range(8):
            a(f"  v_mov_b32 v4, s{84+2*i}")
            a(f"  v_mov_b32 v5, s{85+2*i}")
            a(f"  global_store_dwordx2 v3, v[4:5], s[26:27] offset:{8*i}")
            a("  s_nop 1")
        a("  s_getreg_b32 s84, hwreg(HW_REG_HW_ID)")
        a("  s_getreg_b32 s85, hwreg(HW_REG_XCC_ID)")
        a(f"  v_mov_b32 v4, s84")
        a(f"  v_mov_b32 v5, s85")
        a(f"  global_store_dwordx2 v3, v[4:5], s[26:27] offset:64")
        a("  s_nop 1")
        a(f"  v_mov_b32 v4, {sNval}")
        a(f"  v_mov_b32 v5, {sU}")
        a(f"  global_store_dwordx2 v3, v[4:5], s[26:27] offset:72")
    a.label("L_end")
    a("  s_endpgm")
    a('.section .rodata,"a"')
    a(".p2align 6")
    a(f".amdhsa_kernel {KN}")
    a("  .amdhsa_next_free_vgpr 256")
    a("  .amdhsa_next_free_sgpr 102")
    a("  .amdhsa_accum_offset 256")
    a("  .amdhsa_group_segment_fixed_size 0")
    a("  .amdhsa_kernarg_size 96")
    a("  .amdhsa_user_sgpr_count 2")
    a("  .amdhsa_user_sgpr_kernarg_segment_ptr 1")
    a("  .amdhsa_system_sgpr_workgroup_id_x 1")
    a(".end_amdhsa_kernel")
    body = a.finalize()
    if cfg.diag: hdr.append("; stamps: " + ",".join(names))
    return "\n".join(hdr) + "\n" + body

if __name__ == "__main__":
    ap = argparse.ArgumentParser()
    ap.add_argument("-o", default="recurrent_scan__mha_block_cached__geglu_ffn__decode.s")
    for k, v in vars(Cfg).items():
        if k.startswith("_"): continue
        if isinstance(v, bool): ap.add_argument("--" + k, type=int, default=int(v))
        else: ap.add_argument("--" + k, type=type(v), default=v)
    ap.add_argument("--wo_late", type=int, default=0)
    args = ap.parse_args()
    cfg = Cfg()
    for k, v in vars(args).items(): setattr(cfg, k, v)
    open(args.o, "w").write(build(cfg))
    print("wrote", args.o)
```

```python
import struct, sys, argparse
from asmdsl import Asm

KN = "recurrent_scan__mha_block_cached__geglu_ffn__decode_kernel"
def f32(x): return "0x%08x" % struct.unpack("<I", struct.pack("<f", x))[0]
LOG2E = f32(1.4426950408889634)
SCALE = f32(192 ** -0.5)

STAMP = 0x10000
QP3 = 0x100000
AP  = 0x180000
SP3 = 0x200000
G1  = 0x2A0000
F1  = 0x300000
G2  = 0x301000
FP3 = 0x308000
F3  = 0x344000
TK  = 0x350000
RD  = 0x360000
XN  = 0
XS  = 1344
QB  = 5376
HID = 5760
HS  = 320
GV  = 7040
PART = 7168
OB  = 10368
OS  = 448
TQ  = 12160
WQS = 12544
WO  = WQS + 40960
F1S = WO
F2S = WQS
LA  = WO + 49152

class Cfg:
    R = 2; NL = 0; NA = 1; diag = ''; nt = "nt"; dyn = 3; S = 56; match = 2
    sleep = 0; fsleep = 32; hst = "sc1 nt"; hld = "sc1 nt"; qst = "sc1"; qld = "sc1"; tst = "sc1"; tld = "sc1"
    pst = "sc1"; pld = "sc1"; fsleep3 = 120
    noffn = 0
    fstop = 0
    sflag = 0
    early1 = 0
    pace = 8
    qwait = 0
    qpp = 0
    qppsleep = 12
    ost = ''
    pp = 0
    ppsleep = 3
    wotail = 0
    wsbase = 0
    h1full = 1
    wmax = 1
    pf32 = 1

def build(cfg):
    global QP3, AP, SP3, G1, F1, G2, FP3, F3, TK, RD
    QP3, AP, SP3, G1, F1, G2, FP3, F3, TK, RD = [x + cfg.wsbase for x in (0x100000, 0x180000, 0x200000, 0x2A0000, 0x300000, 0x301000, 0x308000, 0x344000, 0x350000, 0x360000)]
    a = Asm()
    R, NL, NT = cfg.R, cfg.NL, cfg.nt
    assert NL <= 2
    assert not cfg.wotail
    LDS_BYTES = LA + NL * 4 * 6144
    assert LDS_BYTES <= 163840, LDS_BYTES
    sW = "s3"
    sAlive, sNval = "s14", "s15"
    T0, T1 = "s30", "s31"
    srdK, srdV, srdW, srdO, srdG, srdU, srdD, srdT = 32, 36, 40, 44, 48, 52, 76, 80
    sH, sX, sB, sHalf, sU = "s56", "s57", "s58", "s59", "s60"
    sOff, sStr, sI, sT, sT2, sT3 = "s61", "s62", "s63", "s64", "s65", "s66"
    sOnes, sPermLo, sFirst = "s67", "s68", "s24"
    sSpin, sC0 = "s74", "s75"
    sCj = "s100"
    def srd(i): return f"s[{i}:{i+3}]"
    nst = [0]; names = []
    def stamp(name=None, sets="main"):
        if cfg.diag and cfg.diag in sets.split(","):
            i = 84 + 2 * nst[0]; nst[0] += 1
            assert i <= 98, name
            names.append(name)
            a(f"  s_memrealtime s[{i}:{i+1}]")
    slots = {}
    def restamp(name, sets):
        if cfg.diag and cfg.diag in sets.split(","):
            if name not in slots:
                slots[name] = 84 + 2 * nst[0]; nst[0] += 1; names.append(name)
                assert slots[name] <= 98
            i = slots[name]
            a(f"  s_memrealtime s[{i}:{i+1}]")
    vTid, vLane, vKV = 0, 1, 2
    vHf, vCc, vG, vC = 4, 5, 6, 7
    RING = 160
    def Kr(s, j): return RING + 24 * s + 4 * j
    def Vr(s, j): return RING + 24 * s + 12 + 4 * j
    ACC, Q, vM, vL, TKR, vTKo = 136, 124, 122, 123, 118, 116

    def mk_srd(i, lo, size):
        a(f"  s_mov_b32 s{i}, s{lo}")
        a(f"  s_mov_b32 s{i+1}, s{lo+1}")
        a(f"  s_mov_b32 s{i+2}, {size}")
        a(f"  s_mov_b32 s{i+3}, 0x20000")
    def dpp(op, v, ctrl): a(f"  {op} v{v}, v{v}, v{v} {ctrl} row_mask:0xf bank_mask:0xf")
    def allreduce64(v, t, op):
        for n in (1, 2, 4, 8): dpp(op, v, f"row_ror:{n}")
        for sw in ("16", "32"):
            a(f"  v_mov_b32 v{t}, v{v}")
            a(f"  v_permlane{sw}_swap_b32 v{v}, v{t}")
            a(f"  {op} v{v}, v{v}, v{t}")
    def reduce_hi(regs, tmps, rors=(8,)):
        for n in rors:
            for r in regs: dpp("v_add_f32", r, f"row_ror:{n}")
        for sw in ("16", "32"):
            for r, t in zip(regs, tmps): a(f"  v_mov_b32 v{t}, v{r}")
            for r, t in zip(regs, tmps): a(f"  v_permlane{sw}_swap_b32 v{r}, v{t}")
            for r, t in zip(regs, tmps): a(f"  v_add_f32 v{r}, v{r}, v{t}")
    def bf16round(dst, src):
        a(f"  v_cvt_pk_bf16_f32 v{dst}, v{src}, v{src}")
        a(f"  v_lshlrev_b32 v{dst}, 16, v{dst}")
    def check_tags(bases, vflag):
        first = True
        for r in bases:
            if first: a(f"  v_xor_b32 v{vflag}, {T0}, v{r+1}")
            else: a(f"  v_bitop3_b32 v{vflag}, v{vflag}, v{r+1}, {T0} bitop3:0xf6")
            first = False
            a(f"  v_bitop3_b32 v{vflag}, v{vflag}, v{r+3}, {T1} bitop3:0xf6")
        a(f"  v_cmp_ne_u32 vcc, 0, v{vflag}")
    def spin_guard(sleep=0):
        a(f"  s_add_u32 {sSpin}, {sSpin}, 1")
        a(f"  s_cmp_gt_u32 {sSpin}, 100000")
        a("  s_cbranch_scc1 L_end")
        if sleep: a(f"  s_sleep {sleep}")
    def pipelined_poll(tag, issue, n, setA, setB, setC, bases, vflag, first_issued):
        if not first_issued: issue(setA)
        a(f"  s_sleep {cfg.ppsleep}")
        a.label(f"L_pp{tag}")
        issue(setB)
        a(f"  s_waitcnt vmcnt({n})")
        check_tags([setA + o for o in bases], vflag)
        a(f"  s_cbranch_vccnz L_pp{tag}_b")
        for o in bases:
            a(f"  v_mov_b32 v{setC+o}, v{setA+o}")
            a(f"  v_mov_b32 v{setC+o+2}, v{setA+o+2}")
        a(f"  s_branch L_pp{tag}_ok")
        a.label(f"L_pp{tag}_b")
        spin_guard()
        issue(setA)
        a(f"  s_waitcnt vmcnt({n})")
        check_tags([setB + o for o in bases], vflag)
        a(f"  s_cbranch_vccnz L_pp{tag}")
        for o in bases:
            a(f"  v_mov_b32 v{setC+o}, v{setB+o}")
            a(f"  v_mov_b32 v{setC+o+2}, v{setB+o+2}")
        a.label(f"L_pp{tag}_ok")
    def select4(dst, r0, r1, r2, r3, masks):
        a(f"  v_cndmask_b32 v{dst}, v{r0}, v{r1}, {masks[0]}")
        a(f"  v_cndmask_b32 v{dst}, v{dst}, v{r2}, {masks[1]}")
        a(f"  v_cndmask_b32 v{dst}, v{dst}, v{r3}, {masks[2]}")
    def quarter_masks(vsel, masks):
        for i, m in enumerate(masks): a(f"  v_cmp_eq_u32 {m}, {i+1}, v{vsel}")

    def layernorm(vx, tb):
        d = [tb + 10 + j for j in range(10)]
        acc, t, mean, mbf, r = tb + 20, tb + 21, tb + 22, tb + 23, tb + 24
        a(f"  v_mov_b32 v{acc}, 0")
        for j in range(5): a(f"  v_dot2c_f32_bf16 v{acc}, {sOnes}, v{vx+j}")
        for j in range(5):
            a(f"  v_lshlrev_b32 v{tb+2*j}, 16, v{vx+j}")
            a(f"  v_and_b32 v{tb+2*j+1}, 0xffff0000, v{vx+j}")
        allreduce64(acc, t, "v_add_f32")
        a(f"  v_mul_f32 v{mean}, {f32(1.0/640)}, v{acc}")
        bf16round(mbf, mean)
        a(f"  v_mov_b32 v{acc}, 0")
        for j in range(10): a(f"  v_sub_f32 v{d[j]}, v{tb+j}, v{mean}")
        for j in range(10): a(f"  v_fmac_f32 v{acc}, v{d[j]}, v{d[j]}")
        for j in range(10): a(f"  v_sub_f32 v{d[j]}, v{tb+j}, v{mbf}")
        allreduce64(acc, t, "v_add_f32")
        a(f"  v_mul_f32 v{acc}, {f32(1.0/640)}, v{acc}")
        bf16round(acc, acc)
        a(f"  v_add_f32 v{acc}, {f32(1e-5)}, v{acc}")
        bf16round(acc, acc)
        a(f"  v_sqrt_f32 v{acc}, v{acc}")
        bf16round(acc, acc)
        a(f"  v_rcp_f32 v{r}, v{acc}")
        for j in range(5): a(f"  v_cvt_pk_bf16_f32 v{tb+j}, v{d[2*j]}, v{d[2*j+1]}")
        for j in range(5):
            a(f"  v_lshlrev_b32 v{d[2*j]}, 16, v{tb+j}")
            a(f"  v_and_b32 v{d[2*j+1]}, 0xffff0000, v{tb+j}")
        for j in range(10): a(f"  v_mul_f32 v{d[j]}, v{d[j]}, v{r}")
        for j in range(5): a(f"  v_cvt_pk_bf16_f32 v{tb+j}, v{d[2*j]}, v{d[2*j+1]}")
        a(f"  s_mul_i32 {sT}, {sW}, {XS}")
        a(f"  v_lshl_add_u32 v{t}, v{vLane}, 2, {sT}")
        for j in range(5): a(f"  ds_write_b32 v{t}, v{tb+j} offset:{XN + j*256}")

    hdr = [f"; @launch grid=(256,1,1) block=(320,1,1) lds={LDS_BYTES}"]
    if not cfg.diag:
        hdr += """; out = x + (attention(LN x) @ wo) * silu(GEGLU(LN x))          (generated by a script, hand-designed schedule)
; kernarg: 0 x, 8 K, 16 V, 24 wq, 32 wo, 40 (unused), 48 w_gate, 56 w_up, 64 w_down, 72 out, 80 debug, 88 ws
; One persistent launch, 256 workgroups = 32 heads x 8 members, one per CU, 5 waves each.
;  waves 0..3 stream K/V of one (batch, head) row shared by two workgroups: a static share first, then
;             groups of four 8-key chunks drawn from a per-row ticket counter (online softmax, fp32).
;  wave 4     service wave: gathers q, runs the FFN branch (gate/up -> gelu*up -> down -> silu).
;  side jobs  q projection slices (roles 0..5), wo / w_down column groups (roles 0,2,4,6,7), gate/up (1,3,5).
; Hand-offs between workgroups go through d_ws with device-scope stores/loads; every 16-byte granule
; {d0,T0,d1,T1} carries a launch tag T = (word found at ws[0..1]) + 1, dense payloads are followed by a
; tagged flag after the stores have drained.  Ticket counters are counted relative to their value on entry.
; The bf16 roundings of the reference (LN, q, scores, o, s, FFN) are reproduced.""".split("\n")
    a('.amdgcn_target "amdgcn-amd-amdhsa--gfx950"')
    a(".text")
    a(f".globl {KN}")
    a(".p2align 8")
    a(f".type {KN},@function")
    a.label(KN)
    a("  s_cmp_ge_u32 s2, 256")
    a("  s_cbranch_scc1 L_end")
    if cfg.diag:
        for i in range(84, 100): a(f"  s_mov_b32 s{i}, 0")
    stamp("start", "main,pro,tail,ffn,tail2,tail3,pro2,dbg")
    a("  s_load_dwordx8 s[4:11], s[0:1], 0")
    a("  s_load_dwordx2 s[12:13], s[0:1], 32")
    a("  s_load_dwordx8 s[16:23], s[0:1], 48")
    a("  s_load_dwordx4 s[24:27], s[0:1], 80")
    a(f"  v_lshrrev_b32 v3, 6, v{vTid}")
    a(f"  v_and_b32 v{vLane}, 63, v{vTid}")
    a(f"  v_readfirstlane_b32 {sW}, v3")
    a(f"  s_mov_b32 {sSpin}, 0")
    a(f"  s_mov_b32 {sOnes}, 0x3f803f80")
    a(f"  s_mov_b32 {sPermLo}, 0x05040100")
    a(f"  s_lshr_b32 {sH}, s2, 3")
    a(f"  s_and_b32 {sX}, s2, 7")
    a(f"  v_lshrrev_b32 v{vHf}, 5, v{vLane}")
    a(f"  v_and_b32 v{vCc}, 31, v{vLane}")
    a(f"  v_lshrrev_b32 v{vG}, 3, v{vLane}")
    a(f"  v_and_b32 v{vC}, 7, v{vLane}")
    if cfg.match == 2:
        a(f"  s_and_b32 {sT}, {sH}, 1")
        a(f"  s_lshl_b32 {sT}, {sT}, 1")
        a(f"  s_add_u32 {sT}, {sT}, 3")
        a(f"  s_and_b32 {sHalf}, {sX}, 1")
        a(f"  s_mul_i32 {sT}, {sT}, {sHalf}")
        a(f"  s_xor_b32 {sT}, {sT}, {sX}")
        a(f"  s_lshr_b32 {sB}, {sT}, 1")
    else:
        a(f"  s_lshr_b32 {sB}, {sX}, 1")
        a(f"  s_and_b32 {sHalf}, {sX}, 1")
    a(f"  s_lshl_b32 {sU}, {sB}, 1")
    a(f"  s_add_u32 {sU}, {sU}, {sHalf}")
    a(f"  s_cmp_eq_u32 {sHalf}, 0")
    a(f"  s_cselect_b32 {sCj}, {sB}, 8")
    a(f"  s_cmp_eq_u32 {sU}, 7")
    a(f"  s_cselect_b32 {sCj}, 4, {sCj}")
    a(f"  s_cmp_eq_u32 {sW}, 4")
    a("  s_cbranch_scc1 L_svc")

    vXo, vWq = 8, 9
    a(f"  v_mul_u32_u24 v{vKV}, 384, v{vG}")
    a(f"  v_lshl_add_u32 v{vKV}, v{vC}, 4, v{vKV}")
    a(f"  v_mul_u32_u24 v{vWq}, 12288, v{vG}")
    a(f"  v_lshl_add_u32 v{vWq}, v{vC}, 4, v{vWq}")
    a(f"  s_mul_i32 {sT}, {sW}, 1280")
    a(f"  v_lshl_add_u32 v{vXo}, v{vLane}, 2, {sT}")
    a("  s_waitcnt lgkmcnt(0)")
    stamp("karg", "pro")
    a("  s_load_dwordx2 s[28:29], s[26:27], 0")
    VX = 11
    for j in range(5):
        a(f"  global_load_dword v{VX+j}, v{vXo}, s[4:5] offset:{j*256}")
    mk_srd(srdW, 10, 7864320)
    a(f"  s_cmp_ge_u32 {sU}, 6")
    a("  s_cbranch_scc1 L_nowq")
    a(f"  s_mul_i32 {sT}, {sHalf}, 320")
    a(f"  s_mul_i32 {sT2}, {sW}, 80")
    a(f"  s_add_u32 {sT}, {sT}, {sT2}")
    a(f"  s_mul_i32 {sT}, {sT}, 12288")
    a(f"  s_mul_i32 {sT3}, {sH}, 384")
    a(f"  s_add_u32 {sT}, {sT}, {sT3}")
    a(f"  s_lshl_b32 {sT3}, {sB}, 7")
    a(f"  s_add_u32 {sT}, {sT}, {sT3}")
    a(f"  s_lshl_b32 {sT2}, {sT2}, 7")
    a(f"  s_add_u32 {sT2}, {sT2}, {WQS}")
    for i in range(10):
        a(f"  s_add_u32 m0, {sT2}, {1024*i}")
        a(f"  buffer_load_dwordx4 v{vWq}, {srd(srdW)}, {sT} offen {NT} lds")
        if i < 9: a(f"  s_add_u32 {sT}, {sT}, {8*12288}")
    a.label("L_nowq")
    mk_srd(srdK, 6, 201326592)
    mk_srd(srdV, 8, 201326592)
    mk_srd(srdO, 12, 7864320)
    CH = 7 if cfg.dyn else 6
    nb = 1 if cfg.dyn else 0
    if cfg.dyn:
        a(f"  s_lshl_b32 {sT}, {sH}, 2")
        a(f"  s_add_u32 {sT}, {sT}, {sB}")
        if cfg.dyn == 1:
            a(f"  s_lshl_b32 {sT}, {sT}, 2")
            a(f"  s_add_u32 {sT}, {sT}, {sW}")
            a(f"  s_lshl_b32 {sT}, {sT}, 7")
        else:
            a(f"  s_lshl_b32 {sT}, {sT}, 9")
        a(f"  v_mov_b32 v{vTKo}, 0x7ffffff0")
        a(f"  v_mov_b32 v3, {sT}")
        a(f"  v_cmp_eq_u32 vcc, 0, v{vLane}")
        a(f"  v_cndmask_b32 v{vTKo}, v{vTKo}, v3, vcc")
        a(f"  s_add_u32 s{srdT}, s26, {TK}")
        a(f"  s_addc_u32 s{srdT+1}, s27, 0")
        a(f"  s_mov_b32 s{srdT+2}, 65536")
        a(f"  s_mov_b32 s{srdT+3}, 0x20000")
        a(f"  buffer_load_dword v117, v{vTKo}, {srd(srdT)}, 0 offen sc1")
        a(f"  s_mov_b32 s{srdT+2}, 0")
    a(f"  s_lshl_b32 {sT}, {sB}, 5")
    a(f"  s_add_u32 {sT}, {sT}, {sH}")
    a(f"  s_mul_i32 {sOff}, {sT}, 1572864")
    sPool = "s69"
    if cfg.dyn >= 2:
        a(f"  s_add_u32 {sPool}, {sOff}, {8*cfg.S*3072}")
        a(f"  s_lshl_b32 {sT}, {sHalf}, 2")
        a(f"  s_add_u32 {sT}, {sT}, {sW}")
        a(f"  s_mul_i32 {sT}, {sT}, {cfg.S*3072}")
        a(f"  s_add_u32 {sOff}, {sOff}, {sT}")
        a(f"  s_mov_b32 {sStr}, 3072")
    elif not cfg.dyn:
        a(f"  s_mul_i32 {sT}, {sHalf}, 786432")
        a(f"  s_add_u32 {sOff}, {sOff}, {sT}")
        a(f"  s_mul_i32 {sT}, {sW}, 196608")
        a(f"  s_add_u32 {sOff}, {sOff}, {sT}")
        a(f"  s_mov_b32 {sStr}, 3072")
    else:
        a(f"  s_mul_i32 {sT}, {sW}, 393216")
        a(f"  s_add_u32 {sOff}, {sOff}, {sT}")
        a(f"  s_mul_i32 {sT}, {sHalf}, {393216-3072}")
        a(f"  s_add_u32 {sOff}, {sOff}, {sT}")
        a(f"  s_mul_i32 {sStr}, {sHalf}, -6144")
        a(f"  s_add_u32 {sStr}, {sStr}, 3072")
    def issueT(s):
        if cfg.dyn:
            a(f"  v_mov_b32 v{TKR+s}, 1")
            a(f"  buffer_atomic_add v{TKR+s}, v{vTKo}, {srd(srdT)}, 0 offen sc0 sc1")
    def issueK(s):
        for j in range(3):
            a(f"  buffer_load_dwordx4 v[{Kr(s,j)}:{Kr(s,j)+3}], v{vKV}, {srd(srdK)}, {sOff} offen offset:{128*j} {NT}")
    def issueV(s):
        for j in range(3):
            a(f"  buffer_load_dwordx4 v[{Vr(s,j)}:{Vr(s,j)+3}], v{vKV}, {srd(srdV)}, {sOff} offen offset:{128*j} {NT}")
        a(f"  s_add_u32 {sOff}, {sOff}, {sStr}")
    sLb = "s25"
    def issueL(k):
        for srdx, o in ((srdK, 0), (srdV, 3072)):
            for j in range(3):
                a(f"  s_add_u32 m0, {sLb}, {6144*k + o + 896*j}")
                a(f"  buffer_load_dwordx4 v{vKV}, {srd(srdx)}, {sOff} offen offset:{128*j} {NT} lds")
        a(f"  s_add_u32 {sOff}, {sOff}, {sStr}")
    NA = cfg.NA
    for s in range(NA):
        issueT(s); issueK(s); issueV(s)
    stamp("issued", "main")
    a(f"  s_cmp_ge_u32 {sU}, 6")
    a("  s_cbranch_scc1 L_xw2")
    a(f"  s_waitcnt vmcnt({10 + nb + CH*NA})")
    a("  s_branch L_xw3")
    a.label("L_xw2")
    a(f"  s_waitcnt vmcnt({nb + CH*NA})")
    a.label("L_xw3")
    stamp("xarr", "pro")
    layernorm(VX, 16)
    NA0 = NA
    if cfg.early1:
        issueT(NA); issueK(NA); issueV(NA)
        NA += 1
    vQa, vQb, vQp = 10, 44, 45
    a(f"  v_lshrrev_b32 v3, 4, v{vLane}")
    a(f"  v_and_b32 v47, 3, v{vLane}")
    a(f"  v_mul_u32_u24 v{vQa}, {XS}, v47")
    a(f"  v_lshl_add_u32 v{vQa}, v3, 4, v{vQa}")
    a(f"  s_mul_i32 {sT}, {sHalf}, 640")
    a(f"  v_add_u32 v{vQa}, {sT}, v{vQa}")
    a(f"  v_bfe_u32 v50, v{vLane}, 2, 2")
    a(f"  v_lshl_add_u32 v48, v3, 3, v50")
    a(f"  v_lshlrev_b32 v48, 7, v48")
    a(f"  v_lshl_add_u32 v48, v47, 3, v48")
    a(f"  s_lshl_b32 {sT}, {sW}, 5")
    a(f"  s_add_u32 {sT}, {sT}, {WQS}")
    a(f"  v_add_u32 v{vQb}, {sT}, v48")
    a(f"  s_mul_i32 {sT}, {sH}, 6")
    a(f"  s_add_u32 {sT}, {sT}, {sU}")
    a(f"  s_lshl_b32 {sT}, {sT}, 11")
    a(f"  s_lshl_b32 {sT2}, {sW}, 7")
    a(f"  s_add_u32 {sT}, {sT}, {sT2}")
    a(f"  s_add_u32 {sT}, {sT}, {QP3}")
    a(f"  v_lshlrev_b32 v{vQp}, 9, v3")
    a(f"  v_bfe_u32 v49, v{vLane}, 1, 3")
    a(f"  v_lshl_add_u32 v{vQp}, v49, 4, v{vQp}")
    a(f"  v_add_u32 v{vQp}, {sT}, v{vQp}")
    MQ = ("s[72:73]", "s[70:71]", "s[24:25]")
    quarter_masks(3, MQ)
    a(f"  s_waitcnt vmcnt({CH*NA}) lgkmcnt(0)")
    if cfg.dyn:
        a(f"  v_readfirstlane_b32 {sC0}, v117")
    if cfg.dyn == 3:
        a(f"  v_mov_b32 v52, 0")
        a(f"  v_lshlrev_b32 v53, 2, v{vLane}")
        a(f"  ds_write_b32 v53, v52 offset:{TQ}")
        a("  s_waitcnt lgkmcnt(0)")
    a(f"  s_add_u32 {T0}, s28, 1")
    a(f"  s_add_u32 {T1}, s29, 1")
    a("  s_barrier")
    stamp("bar1", "pro,pro2")
    a(f"  s_cmp_ge_u32 {sU}, 6")
    a("  s_cbranch_scc1 L_noq")
    QD0, QD1 = 96, 100
    for e in range(8): a(f"  v_mov_b32 v{QD0+e}, 0")
    def breg(st):
        if st < 5: return 76 + 4*st
        return (104, 108, 112, 36, 40)[st-5]
    def areg(st): return (16 + 4*st) if st < 5 else (56 + 4*(st-5))
    for st in range(10):
        a(f"  ds_read_b128 v[{areg(st)}:{areg(st)+3}], v{vQa} offset:{XN + 64*st}")
        a(f"  ds_read_b64_tr_b16 v[{breg(st)}:{breg(st)+1}], v{vQb} offset:{4096*st}")
        a(f"  ds_read_b64_tr_b16 v[{breg(st)+2}:{breg(st)+3}], v{vQb} offset:{4096*st + 512}")
    for st in range(10):
        if st % 2 == 0: a(f"  s_waitcnt lgkmcnt({min(15, 3*(10-st-2))})") if st < 8 else a("  s_waitcnt lgkmcnt(0)")
        D = QD0 if st % 2 == 0 else QD1
        a(f"  v_mfma_f32_16x16x32_bf16 v[{D}:{D+3}], v[{areg(st)}:{areg(st)+3}], v[{breg(st)}:{breg(st)+3}], v[{D}:{D+3}]")
    for e in range(4): a(f"  v_add_f32 v{QD0+e}, v{QD0+e}, v{QD1+e}")
    GP = 48
    a(f"  v_mov_b32 v{GP+1}, {T0}")
    a(f"  v_mov_b32 v{GP+3}, {T1}")
    select4(GP, QD0, QD0+1, QD0+2, QD0+3, MQ)
    a(f"  v_mov_b32 v{GP+2}, v{GP} quad_perm:[1,0,3,2] row_mask:0xf bank_mask:0xf")
    a("  s_mov_b32 exec_lo, 0x55555555")
    a("  s_mov_b32 exec_hi, 0x55555555")
    a(f"  global_store_dwordx4 v{vQp}, v[{GP}:{GP+3}], s[26:27] {cfg.qst}")
    a("  s_mov_b64 exec, -1")
    if cfg.qwait:
        stamp("qst", "pro2")
        a("  s_waitcnt vmcnt(0)")
        stamp("qack", "pro2")
    a.label("L_noq")
    stamp("qpub", "main,pro,dbg")
    pace_on = [cfg.pace > 0]
    orig_a = a
    class Paced:
        def __call__(self, text):
            if pace_on[0] and ("buffer_load_dwordx4" in text):
                orig_a(f"  s_waitcnt vmcnt({cfg.pace - 1})")
            orig_a(text)
        def label(self, n): orig_a.label(n)
        def finalize(self): return orig_a.finalize()
    a = Paced()
    mk_srd(srdG, 16, 1966080)
    mk_srd(srdU, 18, 1966080)
    mk_srd(srdD, 20, 1966080)
    vWo = 41
    a(f"  s_cmp_ge_u32 {sCj}, 8")
    a("  s_cbranch_scc1 L_nowo")
    def wo_stage():
        a(f"  v_lshrrev_b32 v3, 4, v{vLane}")
        a(f"  v_mul_u32_u24 v{vWo}, 1280, v3")
        a(f"  v_and_b32 v42, 15, v{vLane}")
        a(f"  v_lshl_add_u32 v{vWo}, v42, 4, v{vWo}")
        a(f"  s_mul_i32 {sT}, {sH}, 192")
        a(f"  s_mul_i32 {sT2}, {sW}, 48")
        a(f"  s_add_u32 {sT}, {sT}, {sT2}")
        a(f"  s_mul_i32 {sT}, {sT}, 1280")
        a(f"  s_lshl_b32 {sT3}, {sCj}, 8")
        a(f"  s_add_u32 {sT}, {sT}, {sT3}")
        a(f"  s_mul_i32 {sT2}, {sW}, {48*256}")
        a(f"  s_add_u32 {sT2}, {sT2}, {WO}")
        for i in range(12):
            a(f"  s_add_u32 m0, {sT2}, {1024*i}")
            a(f"  buffer_load_dwordx4 v{vWo}, {srd(srdO)}, {sT} offen {NT} lds")
            if i < 11: a(f"  s_add_u32 {sT}, {sT}, {4*1280}")
    if cfg.wotail:
        a(f"  v_lshrrev_b32 v3, 4, v{vLane}")
        a(f"  v_mul_u32_u24 v{vWo}, 1280, v3")
        a(f"  v_and_b32 v42, 15, v{vLane}")
        a(f"  v_lshl_add_u32 v{vWo}, v42, 4, v{vWo}")
        a(f"  s_lshl_b32 {sT3}, {sCj}, 8")
    else:
        wo_stage()
    if cfg.noffn != 1:
        a(f"  s_cmp_lt_u32 {sU}, 6")
        a("  s_cbranch_scc1 L_stg_done")
        a(f"  s_lshl_b32 {sT}, {sH}, 1")
        a(f"  s_add_u32 {sT}, {sT}, {sHalf}")
        a(f"  s_cmp_ge_u32 {sT}, 60")
        a("  s_cbranch_scc1 L_stg_done")
        a(f"  s_mul_i32 {sT2}, {sT}, 52")
        a(f"  s_lshr_b32 {sT2}, {sT2}, 8")
        a(f"  s_mul_i32 {sT3}, {sT2}, 5")
        a(f"  s_sub_u32 {sT3}, {sT}, {sT3}")
        a(f"  s_lshl_b32 {sT}, {sT2}, 7")
        a(f"  s_lshl_b32 {sT2}, {sW}, 5")
        a(f"  s_add_u32 {sT}, {sT}, {sT2}")
        a(f"  s_mul_i32 {sT}, {sT}, 1280")
        a(f"  s_lshl_b32 {sT3}, {sT3}, 8")
        a(f"  s_add_u32 {sT}, {sT}, {sT3}")
        a(f"  s_lshl_b32 {sT2}, {sW}, 13")
        a(f"  s_add_u32 {sT2}, {sT2}, {F2S}")
        for i in range(8):
            a(f"  s_add_u32 m0, {sT2}, {1024*i}")
            a(f"  buffer_load_dwordx4 v{vWo}, {srd(srdD)}, {sT} offen {NT} lds")
            if i < 7: a(f"  s_add_u32 {sT}, {sT}, {4*1280}")
    a("  s_branch L_stg_done")
    a.label("L_nowo")
    if cfg.noffn != 1:
        a(f"  s_mul_i32 {sT}, {sH}, 3")
        a(f"  s_add_u32 {sT}, {sT}, {sB}")
        a(f"  s_lshr_b32 {sT2}, {sT}, 2")
        a(f"  s_and_b32 {sT}, {sT}, 3")
        a(f"  s_mul_i32 {sT}, {sT}, 160")
        a(f"  s_mul_i32 {sT3}, {sW}, 40")
        a(f"  s_add_u32 {sT}, {sT}, {sT3}")
        a(f"  s_mul_i32 {sT}, {sT}, 3072")
        a(f"  s_lshl_b32 {sT2}, {sT2}, 7")
        a(f"  s_add_u32 {sT}, {sT}, {sT2}")
        a(f"  s_lshl_b32 {sT2}, {sT3}, 7")
        a(f"  s_add_u32 {sT2}, {sT2}, {F1S}")
        a(f"  v_mul_u32_u24 v{vWo}, 3072, v{vG}")
        a(f"  v_lshl_add_u32 v{vWo}, v{vC}, 4, v{vWo}")
        for i in range(5):
            a(f"  s_add_u32 m0, {sT2}, {1024*i}")
            a(f"  buffer_load_dwordx4 v{vWo}, {srd(srdG)}, {sT} offen {NT} lds")
            a(f"  s_add_u32 m0, {sT2}, {20480 + 1024*i}")
            a(f"  buffer_load_dwordx4 v{vWo}, {srd(srdU)}, {sT} offen {NT} lds")
            if i < 4: a(f"  s_add_u32 {sT}, {sT}, {8*3072}")
    a.label("L_stg_done")
    for s in range(NA, R):
        issueT(s); issueK(s); issueV(s)
    sLb_set = True
    if NL:
        a(f"  s_mul_i32 {sLb}, {sW}, {12288 if cfg.wotail else NL*6144}")
        if cfg.wotail:
            a(f"  s_cmp_lt_u32 {sCj}, 8")
            a(f"  s_mov_b32 {sT}, {F2S}")
            a(f"  s_cselect_b32 {sT}, {WO}, {sT}")
            a(f"  s_add_u32 {sLb}, {sLb}, {sT}")
        else:
            a(f"  s_add_u32 {sLb}, {sLb}, {LA}")
    for k in range(NL): issueL(k)
    pace_on[0] = False
    pF, pFH, pMr, pMh, pMs, vH1, vH2, vTr, vP0, vSa, vOi, vXv, pGV, pOB1, pOB2, pAF = 56, 59, 60, 61, 62, 63, 64, 65, 66, 68, 69, 70, 71, 72, 73, 74
    a(f"  v_lshrrev_b32 v8, 4, v{vLane}")
    a(f"  v_mul_u32_u24 v9, 6, v8")
    a(f"  s_mul_i32 {sT}, {sW}, 800")
    a(f"  s_add_u32 {sT}, {sT}, {PART}")
    a(f"  v_lshl_add_u32 v10, v{vC}, 5, {sT}")
    for k in range(3):
        a(f"  v_add_u32 v11, {2*k}, v9")
        a(f"  v_lshrrev_b32 v12, 3, v11")
        a(f"  v_and_b32 v11, 7, v11")
        a(f"  v_lshlrev_b32 v12, 8, v12")
        a(f"  v_lshl_add_u32 v12, v11, 2, v12")
        a(f"  v_add_u32 v{pF+k}, v12, v10")
    a(f"  v_mov_b32 v{pFH}, {sT}")
    a(f"  v_lshlrev_b32 v{pMr}, 3, v{vTid}")
    a(f"  v_mov_b32 v{pMh}, {PART+768}")
    a(f"  s_lshl_b32 {sT}, {sH}, 3")
    a(f"  s_add_u32 {sT2}, {sT}, {sU}")
    a(f"  s_lshl_b32 {sT2}, {sT2}, 11")
    a(f"  s_add_u32 {sT2}, {sT2}, {AP}")
    a(f"  v_lshl_add_u32 v{pMs}, v{vTid}, 4, {sT2}")
    a(f"  s_lshl_b32 {sT2}, {sW}, 1")
    a(f"  s_add_u32 {sT}, {sT}, {sT2}")
    a(f"  s_lshl_b32 {sT}, {sT}, 11")
    a(f"  s_add_u32 {sT}, {sT}, {AP}")
    a(f"  v_lshlrev_b32 v9, 11, v{vHf}")
    a(f"  v_add_u32 v9, {sT}, v9")
    a(f"  v_lshl_add_u32 v{vH1}, v{vCc}, 4, v9")
    a(f"  v_add_u32 v{vH2}, {96*16}, v9")
    a(f"  v_bfe_u32 v9, v{vLane}, 2, 2")
    a(f"  v_lshl_add_u32 v10, v8, 3, v9")
    a(f"  v_lshlrev_b32 v10, 8, v10")
    a(f"  v_and_b32 v11, 3, v{vLane}")
    a(f"  v_lshl_add_u32 v10, v11, 3, v10")
    a(f"  s_lshl_b32 {sT}, {sW}, 6")
    a(f"  s_add_u32 {sT}, {sT}, {WO}")
    a(f"  v_add_u32 v{vTr}, {sT}, v10")
    a(f"  v_lshlrev_b32 v10, 12, v9")
    a(f"  v_and_b32 v12, 1, v8")
    a(f"  v_lshl_add_u32 v10, v12, 6, v10")
    a(f"  v_lshl_add_u32 v10, v11, 4, v10")
    a(f"  s_and_b32 {sT3}, {sCj}, 7")
    a(f"  s_lshl_b32 {sT}, {sT3}, 5")
    a(f"  s_lshl_b32 {sT2}, {sW}, 3")
    a(f"  s_add_u32 {sT}, {sT}, {sT2}")
    a(f"  s_lshl_b32 {sT}, {sT}, 12")
    a(f"  s_lshl_b32 {sT2}, {sH}, 7")
    a(f"  s_add_u32 {sT}, {sT}, {sT2}")
    a(f"  s_add_u32 {sT}, {sT}, {SP3}")
    a(f"  v_add_u32 v{vP0}, {sT}, v10")
    a(f"  v_add_u32 v{vP0+1}, {4*4096}, v{vP0}")
    a(f"  s_lshl_b32 {sT}, {sT3}, 5")
    a(f"  s_add_u32 {sT}, {sT}, {sH}")
    a(f"  s_lshl_b32 {sT}, {sT}, 12")
    a(f"  s_add_u32 {sT}, {sT}, {SP3}")
    a(f"  v_lshl_add_u32 v{vSa}, v{vLane}, 4, {sT}")
    a(f"  v_bfe_u32 v9, v{vLane}, 2, 1")
    a(f"  v_and_b32 v10, 1, v{vG}")
    a(f"  v_lshl_add_u32 v9, v9, 1, v10")
    a(f"  v_lshlrev_b32 v{pGV}, 4, v11")
    a(f"  v_lshl_add_u32 v{pGV}, v9, 2, v{pGV}")
    a(f"  v_mul_u32_u24 v9, 640, v9")
    a(f"  s_min_u32 {sT3}, {sT3}, 4")
    a(f"  s_lshl_b32 {sT}, {sT3}, 7")
    a(f"  s_lshl_b32 {sT2}, {sH}, 2")
    a(f"  s_add_u32 {sT}, {sT}, {sT2}")
    a(f"  v_add3_u32 v9, v9, v11, {sT}")
    a(f"  v_lshlrev_b32 v{vOi}, 1, v9")
    a(f"  global_load_ushort v{vXv}, v{vOi}, s[4:5]")
    a(f"  s_mul_i32 {sT}, {sW}, {OS}")
    a(f"  v_lshl_add_u32 v{pOB1}, v{vLane}, 2, {sT}")
    a(f"  v_lshl_add_u32 v{pOB2}, v{vCc}, 2, {sT}")
    a(f"  v_mul_u32_u24 v{pAF}, {OS}, v11")
    a(f"  v_lshl_add_u32 v{pAF}, v8, 4, v{pAF}")
    a(f"  v_lshlrev_b32 v3, 4, v{vC}")
    for t in range(24): a(f"  v_mov_b32 v{ACC+t}, 0")
    a(f"  v_mov_b32 v{vM}, 0xff800000")
    a(f"  v_mov_b32 v{vL}, 0")
    if not cfg.sflag: a(f"  s_waitcnt vmcnt({CH*(R-NA) + 6*NL + 1})")
    a("  s_barrier")
    for j in range(3):
        a(f"  ds_read_b128 v[{Q+4*j}:{Q+4*j+3}], v3 offset:{QB + 128*j}")
    LIM = (cfg.S if cfg.dyn else 64) - R - NL
    if cfg.dyn:
        P = 128 - 2 * cfg.S if cfg.dyn == 1 else 512 - 8 * cfg.S
        PG = P // 4
        assert cfg.S - NL >= 2 * R
        assert PG + 2 * R < 60
    a(f"  s_mov_b32 {sI}, 0")
    a(f"  s_mov_b32 {sNval}, {R}")
    a(f"  s_mov_b32 {sAlive}, 1")
    if NL: a(f"  s_mov_b32 {sFirst}, 1")
    if cfg.dyn == 3: a("  s_mov_b32 s101, 0")
    a("  s_waitcnt lgkmcnt(0)")
    stamp("qready", "main,pro,pro2,dbg")

    t0, t1, t2, sS, mn, al, ee, pl, ph = 100, 101, 102, 103, 104, 105, 106, 107, 108
    def scores(K0):
        for i in range(4):
            for j in range(3):
                a(f"  v_dot2c_f32_bf16 v{t0+j}, v{K0+4*j+i}, v{Q+4*j+i}")
    def softmax(tag):
        a(f"  v_add_f32 v{t0}, v{t0}, v{t1}")
        a(f"  v_add_f32 v{t0}, v{t0}, v{t2}")
        dpp("v_add_f32", t0, "quad_perm:[1,0,3,2]")
        dpp("v_add_f32", t0, "quad_perm:[2,3,0,1]")
        dpp("v_add_f32", t0, "row_half_mirror")
        bf16round(t1, t0)
        a(f"  v_mul_f32 v{t1}, {SCALE}, v{t1}")
        bf16round(sS, t1)
        if cfg.wmax:
            a(f"  v_max_f32 v{mn}, v{sS}, v{sS} row_ror:8 row_mask:0xf bank_mask:0xf")
            for sw in ("16", "32"):
                a(f"  v_mov_b32 v{al}, v{mn}")
                a(f"  v_permlane{sw}_swap_b32 v{mn}, v{al}")
                a(f"  v_max_f32 v{mn}, v{mn}, v{al}")
            a(f"  v_cmp_gt_f32 vcc, v{mn}, v{vM}")
            a(f"  v_max_f32 v{mn}, v{vM}, v{mn}")
        else:
            a(f"  v_max_f32 v{mn}, v{vM}, v{sS}")
            a(f"  v_cmp_gt_f32 vcc, v{sS}, v{vM}")
        a(f"  v_sub_f32 v{al}, v{vM}, v{mn}")
        a(f"  v_sub_f32 v{ee}, v{sS}, v{mn}")
        a(f"  v_mul_f32 v{al}, {LOG2E}, v{al}")
        a(f"  v_mul_f32 v{ee}, {LOG2E}, v{ee}")
        a(f"  v_exp_f32 v{al}, v{al}")
        a(f"  v_exp_f32 v{ee}, v{ee}")
        a(f"  v_mov_b32 v{vM}, v{mn}")
        a(f"  v_fma_f32 v{vL}, v{vL}, v{al}, v{ee}")
        if not cfg.pf32:
            a(f"  v_cvt_pk_bf16_f32 v{pl}, v{ee}, 0")
            a(f"  v_cvt_pk_bf16_f32 v{ph}, 0, v{ee}")
        a(f"  s_cbranch_vccz L_nors{tag}")
        for t in range(24): a(f"  v_mul_f32 v{ACC+t}, v{ACC+t}, v{al}")
        a.label(f"L_nors{tag}")
    def pv(V0):
        if cfg.pf32:
            tp = (110, 112, 114)
            items = [(j, i) for j in range(3) for i in range(4)]
            for n, (j, i) in enumerate(items):
                t = tp[n % 3]
                a(f"  v_lshlrev_b32 v{t}, 16, v{V0+4*j+i}")
                a(f"  v_and_b32 v{t+1}, 0xffff0000, v{V0+4*j+i}")
                if n >= 1:
                    jj, ii = items[n-1]; tt = tp[(n-1) % 3]; acc = ACC+8*jj+2*ii
                    a(f"  v_pk_fma_f32 v[{acc}:{acc+1}], v[{tt}:{tt+1}], v[{ee}:{ee+1}], v[{acc}:{acc+1}] op_sel_hi:[1,0,1]")
            jj, ii = items[-1]; tt = tp[11 % 3]; acc = ACC+8*jj+2*ii
            a(f"  v_pk_fma_f32 v[{acc}:{acc+1}], v[{tt}:{tt+1}], v[{ee}:{ee+1}], v[{acc}:{acc+1}] op_sel_hi:[1,0,1]")
            return
        for j in range(3):
            for i in range(4):
                a(f"  v_dot2c_f32_bf16 v{ACC+8*j+2*i}, v{V0+4*j+i}, v{pl}")
                a(f"  v_dot2c_f32_bf16 v{ACC+8*j+2*i+1}, v{V0+4*j+i}, v{ph}")
    def zero_t():
        for t in (t0, t1, t2): a(f"  v_mov_b32 v{t}, 0")
    a.label("L_loop")
    for s in range(R):
        zero_t()
        a(f"  s_waitcnt vmcnt({3 + CH*(R-1)})")
        if cfg.sflag and s == R - 1:
            a(f"  s_cmp_lg_u32 {sI}, {R-1}")
            a(f"  s_cbranch_scc1 L_nosig")
            a(f"  s_lshl_b32 {sT}, {sW}, 2")
            a(f"  v_mov_b32 v109, {sT}")
            a(f"  v_mov_b32 v110, 1")
            a(f"  ds_write_b32 v109, v110 offset:{TQ + 240}")
            a.label("L_nosig")
        if cfg.dyn:
            a(f"  v_readfirstlane_b32 {sT}, v{TKR+s}")
        scores(Kr(s, 0))
        if cfg.dyn == 3:
            a(f"  s_cmp_lt_u32 {sI}, {LIM}")
            a(f"  s_cbranch_scc1 L_st{s}")
            a(f"  s_cmp_eq_u32 {sAlive}, 0")
            a(f"  s_cbranch_scc1 L_st{s}")
            a(f"  s_sub_u32 {sT2}, {sI}, {LIM}")
            a(f"  s_lshl_b32 {sT2}, {sT2}, 2")
            a(f"  v_mov_b32 v109, {sT2}")
            a(f"  s_cmp_lg_u32 {sW}, 0")
            a(f"  s_cbranch_scc1 L_rd{s}")
            a(f"  s_sub_u32 {sT}, {sT}, {sC0}")
            a(f"  s_add_u32 {sT2}, {sT}, 1")
            a(f"  s_cmp_lt_u32 {sT}, {PG}")
            a(f"  s_cselect_b32 {sT}, {sT2}, 0xffff")
            a(f"  v_mov_b32 v110, {sT}")
            a(f"  ds_write_b32 v109, v110 offset:{TQ}")
            a(f"  s_branch L_hv{s}")
            a.label(f"L_rd{s}")
            a(f"  ds_read_b32 v110, v109 offset:{TQ}")
            a(f"  s_add_u32 s101, s101, 1")
            a(f"  s_cmp_gt_u32 s101, 0x400000")
            a("  s_cbranch_scc1 L_end")
            a("  s_waitcnt lgkmcnt(0)")
            a(f"  v_readfirstlane_b32 {sT}, v110")
            a(f"  s_cmp_eq_u32 {sT}, 0")
            a(f"  s_cbranch_scc1 L_rd{s}")
            a.label(f"L_hv{s}")
            a(f"  s_lshl_b32 {sT2}, {sT}, 2")
            a(f"  s_add_u32 {sT2}, {sT2}, {sW}")
            a(f"  s_sub_u32 {sT2}, {sT2}, 4")
            a(f"  s_mul_i32 {sT2}, {sT2}, 3072")
            a(f"  s_add_u32 {sOff}, {sT2}, {sPool}")
            a(f"  s_cmp_lg_u32 {sT}, 0xffff")
            a(f"  s_cselect_b32 {sAlive}, 1, 0")
            a.label(f"L_st{s}")
        elif cfg.dyn:
            a(f"  s_sub_u32 {sT}, {sT}, {sC0}")
            if cfg.dyn == 2:
                a(f"  s_mul_i32 {sT2}, {sT}, 3072")
                a(f"  s_add_u32 {sT2}, {sT2}, {sPool}")
            a(f"  s_cmp_lt_u32 {sT}, {P}")
            a(f"  s_cselect_b32 {sT}, {sAlive}, 0")
            a(f"  s_cmp_lt_u32 {sI}, {LIM}")
            a(f"  s_cselect_b32 {sAlive}, 1, {sT}")
            if cfg.dyn == 2:
                a(f"  s_cselect_b32 {sOff}, {sOff}, {sT2}")
        else:
            a(f"  s_cmp_lt_u32 {sI}, {LIM}")
            a(f"  s_cselect_b32 {sAlive}, 1, 0")
        a(f"  s_add_u32 {sNval}, {sNval}, {sAlive}")
        a(f"  s_cmp_eq_u32 {sAlive}, 0")
        a(f"  s_cselect_b32 s{srdK+2}, 0, s{srdK+2}")
        a(f"  s_cselect_b32 s{srdV+2}, 0, s{srdV+2}")
        if cfg.dyn:
            a(f"  s_cmp_ge_u32 {sI}, {LIM - R}")
            a(f"  s_cselect_b32 {sT}, {sAlive}, 0")
            if cfg.dyn == 3:
                a(f"  s_cmp_eq_u32 {sW}, 0")
                a(f"  s_cselect_b32 {sT}, {sT}, 0")
            a(f"  s_lshl_b32 s{srdT+2}, {sT}, 16")
            issueT(s)
        issueK(s)
        softmax(s)
        a(f"  s_waitcnt vmcnt({CH*(R-1) + (4 if cfg.dyn else 3)})")
        pv(Vr(s, 0))
        issueV(s)
        a(f"  s_add_u32 {sI}, {sI}, 1")
        a(f"  s_cmp_lt_u32 {sI}, {sNval}")
        if s < R - 1 or NL:
            a("  s_cbranch_scc0 L_tail")
        else:
            a("  s_cbranch_scc1 L_loop")
    if NL:
        a(f"  s_cmp_eq_u32 {sFirst}, 0")
        a("  s_cbranch_scc1 L_loop")
        LK = 16
        a(f"  s_mov_b32 {sFirst}, 0")
        a(f"  v_lshl_add_u32 v3, v{vLane}, 4, {sLb}")
        a(f"  s_waitcnt vmcnt({CH*R})")
        a(f"  s_mov_b32 {sT2}, 0")
        a.label("L_lds")
        for j in range(6):
            a(f"  ds_read_b128 v[{LK+4*j}:{LK+4*j+3}], v3 offset:{1024*j}")
        zero_t()
        a(f"  v_add_u32 v3, 6144, v3")
        a("  s_waitcnt lgkmcnt(3)")
        scores(LK)
        softmax("L")
        a("  s_waitcnt lgkmcnt(0)")
        pv(LK + 12)
        a(f"  s_add_u32 {sT2}, {sT2}, 1")
        a(f"  s_cmp_lt_u32 {sT2}, {NL}")
        a("  s_cbranch_scc1 L_lds")
        a("  s_branch L_loop")
    a.label("L_tail")
    stamp("loopend", "main,tail,tail2,tail3,pro2,dbg")

    vGv = 19
    assert cfg.wmax and not cfg.wotail
    tA, tB = 100, 101
    a(f"  v_mov_b32 v{tA}, v{vM}")
    dpp("v_add_f32", vL, "row_ror:8")
    for t in range(12): a(f"  v_permlane32_swap_b32 v{ACC+t}, v{ACC+t+12}")
    a(f"  v_mov_b32 v{tB}, v{vL}")
    a(f"  v_permlane16_swap_b32 v{vL}, v{tB}")
    for t in range(12): a(f"  v_add_f32 v{ACC+t}, v{ACC+t}, v{ACC+t+12}")
    a(f"  v_add_f32 v{vL}, v{vL}, v{tB}")
    for t in range(6): a(f"  v_permlane16_swap_b32 v{ACC+t}, v{ACC+t+6}")
    a(f"  v_mov_b32 v{tB}, v{vL}")
    a(f"  v_permlane32_swap_b32 v{vL}, v{tB}")
    for t in range(6): a(f"  v_add_f32 v{ACC+t}, v{ACC+t}, v{ACC+t+6}")
    a(f"  v_add_f32 v{tB}, v{vL}, v{tB}")
    for t in range(6): dpp("v_add_f32", ACC+t, "row_ror:8")
    for k in range(3):
        a(f"  ds_write_b64 v{pF+k}, v[{ACC+2*k}:{ACC+2*k+1}]")
    a(f"  ds_write_b64 v{pFH}, v[{tA}:{tB}] offset:768")
    a("  s_waitcnt lgkmcnt(0)")
    a("  s_barrier")
    stamp("tbar1", "tail")
    a(f"  s_cmp_ge_u32 {sW}, 2")
    a("  s_cbranch_scc1 L_nomerge")
    MB = 100
    for w2 in range(4):
        a(f"  ds_read_b64 v[{MB+8+2*w2}:{MB+8+2*w2+1}], v{pMh} offset:{800*w2}")
    for w2 in range(4):
        a(f"  ds_read_b64 v[{MB+2*w2}:{MB+2*w2+1}], v{pMr} offset:{PART+800*w2}")
    a(f"  v_cmp_eq_u32 vcc, 96, v{vTid}")
    a(f"  s_mov_b64 s[70:71], vcc")
    a(f"  v_cmp_ge_u32 vcc, 96, v{vTid}")
    a(f"  s_mov_b64 s[72:73], vcc")
    a(f"  v_mov_b32 v77, {T0}")
    a(f"  v_mov_b32 v79, {T1}")
    a("  s_waitcnt lgkmcnt(4)")
    mM = [MB+8+2*w2 for w2 in range(4)]; mL = [x+1 for x in mM]
    a(f"  v_max_f32 v29, v{mM[0]}, v{mM[1]}")
    a(f"  v_max3_f32 v29, v29, v{mM[2]}, v{mM[3]}")
    for w2 in range(4): a(f"  v_sub_f32 v{mM[w2]}, v{mM[w2]}, v29")
    for w2 in range(4): a(f"  v_mul_f32 v{mM[w2]}, {LOG2E}, v{mM[w2]}")
    for w2 in range(4): a(f"  v_exp_f32 v{mM[w2]}, v{mM[w2]}")
    a(f"  v_mul_f32 v30, v{mL[0]}, v{mM[0]}")
    for w2 in range(1, 4): a(f"  v_fmac_f32 v30, v{mL[w2]}, v{mM[w2]}")
    a("  s_waitcnt lgkmcnt(0)")
    a(f"  v_mul_f32 v76, v{MB}, v{mM[0]}")
    a(f"  v_mul_f32 v78, v{MB+1}, v{mM[0]}")
    for w2 in range(1, 4):
        a(f"  v_fmac_f32 v76, v{MB+2*w2}, v{mM[w2]}")
        a(f"  v_fmac_f32 v78, v{MB+2*w2+1}, v{mM[w2]}")
    a(f"  v_cndmask_b32 v76, v76, v29, s[70:71]")
    a(f"  v_cndmask_b32 v78, v78, v30, s[70:71]")
    a(f"  s_mov_b64 exec, s[72:73]")
    restamp("stiss", "tail3")
    a(f"  global_store_dwordx4 v{pMs}, v[76:79], s[26:27] {cfg.tst}")
    if cfg.diag == "tail3":
        a("  s_waitcnt vmcnt(0)")
        restamp("stack", "tail3")
    a(f"  s_mov_b64 exec, -1")
    a.label("L_nomerge")
    stamp("apub", "main,tail,tail2,dbg")
    a(f"  s_cmp_ge_u32 {sCj}, 8")
    a("  s_cbranch_scc1 L_diag")
    HG = 80
    def h1_data():
        for k in range(3):
            a(f"  global_load_dwordx4 v[{HG+4*k}:{HG+4*k+3}], v{vH1}, s[26:27] offset:{512*k} {cfg.tld}")
    def h1_head():
        a(f"  global_load_dwordx4 v[{HG+12}:{HG+15}], v{vH2}, s[26:27] {cfg.tld}")
    restamp("h1iss", "tail2")
    if cfg.pp:
        a(f"  global_load_dwordx4 v[44:47], v{vH2}, s[26:27] {cfg.tld}")
        for k in range(3):
            a(f"  global_load_dwordx4 v[{32+4*k}:{35+4*k}], v{vH1}, s[26:27] offset:{512*k} {cfg.tld}")
    else:
        h1_head(); h1_data()
    BFt = (208, 232) if R <= 2 else (232, 32)
    assert R <= 3 and not (R > 2 and cfg.pp)
    def b_frags():
        for tt in range(2):
            for s in range(6):
                r = BFt[tt] + 4*s
                a(f"  ds_read_b64_tr_b16 v[{r}:{r+1}], v{vTr} offset:{8192*s + 32*tt}")
                a(f"  ds_read_b64_tr_b16 v[{r+2}:{r+3}], v{vTr} offset:{8192*s + 32*tt + 1024}")
    b_frags()
    a(f"  ds_read_b32 v{vGv}, v{pGV} offset:{GV}")
    if cfg.pp:
        def h1_issue(base):
            a(f"  global_load_dwordx4 v[{base+12}:{base+15}], v{vH2}, s[26:27] {cfg.tld}")
            for k in range(3):
                a(f"  global_load_dwordx4 v[{base+4*k}:{base+4*k+3}], v{vH1}, s[26:27] offset:{512*k} {cfg.tld}")
        pipelined_poll("h1", h1_issue, 4, 32, 120, HG, [0, 4, 8, 12], 20, True)
    else:
        a("  s_waitcnt vmcnt(0)")
        check_tags([HG, HG+4, HG+8, HG+12], 20)
        a("  s_cbranch_vccz L_h1ok")
        a.label("L_h1hdr")
        spin_guard(cfg.sleep)
        h1_head(); h1_data()
        a("  s_waitcnt vmcnt(0)")
        check_tags([HG, HG+4, HG+8, HG+12], 20)
        a("  s_cbranch_vccnz L_h1hdr")
    a.label("L_h1ok")
    stamp("h1ok", "tail,tail2")
    gm, gl = HG+12, HG+14
    a(f"  v_mov_b32 v20, v{gm}")
    a(f"  v_mov_b32 v21, v{gm}")
    a(f"  v_permlane32_swap_b32 v20, v21")
    a(f"  v_max_f32 v20, v20, v21")
    a(f"  v_sub_f32 v21, v{gm}, v20")
    a(f"  v_mul_f32 v21, {LOG2E}, v21")
    a(f"  v_exp_f32 v21, v21")
    a(f"  v_mul_f32 v24, v{gl}, v21")
    a(f"  v_mov_b32 v25, v24")
    a(f"  v_permlane32_swap_b32 v24, v25")
    a(f"  v_add_f32 v24, v24, v25")
    a(f"  v_rcp_f32 v24, v24")
    a(f"  v_mul_f32 v21, v21, v24")
    vals = [HG, HG+2, HG+4, HG+6, HG+8, HG+10]
    for r in vals: a(f"  v_mul_f32 v{r}, v{r}, v21")
    a(f"  v_permlane32_swap_b32 v{vals[0]}, v{vals[2]}")
    a(f"  v_permlane32_swap_b32 v{vals[1]}, v{vals[3]}")
    a(f"  v_mov_b32 v24, v{vals[4]}")
    a(f"  v_mov_b32 v25, v{vals[5]}")
    a(f"  v_add_f32 v{vals[0]}, v{vals[0]}, v{vals[2]}")
    a(f"  v_add_f32 v{vals[1]}, v{vals[1]}, v{vals[3]}")
    a(f"  v_permlane32_swap_b32 v{vals[4]}, v24")
    a(f"  v_permlane32_swap_b32 v{vals[5]}, v25")
    a(f"  v_cvt_pk_bf16_f32 v26, v{vals[0]}, v{vals[1]}")
    a(f"  v_add_f32 v{vals[4]}, v{vals[4]}, v24")
    a(f"  v_add_f32 v{vals[5]}, v{vals[5]}, v25")
    a(f"  v_cvt_pk_bf16_f32 v27, v{vals[4]}, v{vals[5]}")
    a(f"  ds_write_b32 v{pOB1}, v26 offset:{OB}")
    a(f"  ds_write_b32 v{pOB2}, v27 offset:{OB+256}")
    a(f"  v_and_b32 v8, 16, v{vLane}")
    a(f"  v_cmp_ne_u32 s[72:73], 0, v8")
    D0, D1 = 100, 104
    for e in range(8): a(f"  v_mov_b32 v{D0+e}, 0")
    a(f"  v_mov_b32 v109, {T0}")
    a(f"  v_mov_b32 v111, {T1}")
    a(f"  v_mov_b32 v113, {T0}")
    a(f"  v_mov_b32 v115, {T1}")
    a("  s_waitcnt lgkmcnt(0)")
    a("  s_barrier")
    AF = ACC
    for s in range(6):
        a(f"  ds_read_b128 v[{AF+4*s}:{AF+4*s+3}], v{pAF} offset:{OB+64*s}")
    a("  s_waitcnt lgkmcnt(4)")
    for s in range(6):
        if s in (2, 4): a(f"  s_waitcnt lgkmcnt({4 - s})")
        for tt, D in ((0, D0), (1, D1)):
            r = BFt[tt] + 4*s
            a(f"  v_mfma_f32_16x16x32_bf16 v[{D}:{D+3}], v[{AF+4*s}:{AF+4*s+3}], v[{r}:{r+3}], v[{D}:{D+3}]")
    for tt, D in ((0, D0), (1, D1)):
        g = 108 + 4*tt
        a(f"  v_cndmask_b32 v{g}, v{D}, v{D+2}, s[72:73]")
        a(f"  v_cndmask_b32 v{g+2}, v{D+1}, v{D+3}, s[72:73]")
    a("  s_mov_b32 exec_hi, 0")
    a(f"  global_store_dwordx4 v{vP0}, v[108:111], s[26:27] {cfg.tst}")
    a(f"  global_store_dwordx4 v{vP0+1}, v[112:115], s[26:27] {cfg.tst}")
    if cfg.diag == "tail3":
        restamp("st2iss", "tail3")
        a("  s_waitcnt vmcnt(0)")
        restamp("st2ack", "tail3")
    a("  s_mov_b32 exec_hi, -1")
    stamp("spub", "main,tail,tail2,dbg")
    a(f"  s_cmp_lg_u32 {sW}, 0")
    a("  s_cbranch_scc1 L_fin_end")
    SG = 80
    if cfg.pp:
        def s_issue(base):
            for i in range(4):
                a(f"  global_load_dwordx4 v[{base+4*i}:{base+4*i+3}], v{vSa}, s[26:27] offset:{1024*i} {cfg.tld}")
        pipelined_poll("h2", s_issue, 4, 32, 120, SG, [0, 4, 8, 12], 20, False)
    else:
        a.label("L_spoll")
        restamp("h2iss", "tail2")
        for i in range(4):
            a(f"  global_load_dwordx4 v[{SG+4*i}:{SG+4*i+3}], v{vSa}, s[26:27] offset:{1024*i} {cfg.tld}")
        a("  s_waitcnt vmcnt(0)")
        check_tags([SG, SG+4, SG+8, SG+12], 20)
        a("  s_cbranch_vccz L_sok")
        spin_guard(cfg.sleep)
        a("  s_branch L_spoll")
    a.label("L_sok")
    stamp("h2ok", "tail,tail2")
    for i in range(1, 4):
        a(f"  v_add_f32 v{SG}, v{SG}, v{SG+4*i}")
        a(f"  v_add_f32 v{SG+2}, v{SG+2}, v{SG+4*i+2}")
    reduce_hi([SG, SG+2], [20, 21])
    a(f"  v_and_b32 v20, 8, v{vLane}")
    a(f"  v_cmp_ne_u32 vcc, 0, v20")
    a(f"  v_cndmask_b32 v21, v{SG}, v{SG+2}, vcc")
    bf16round(21, 21)
    a(f"  v_mul_f32 v21, v21, v{vGv}")
    bf16round(21, 21)
    a(f"  v_lshlrev_b32 v22, 16, v{vXv}")
    a(f"  v_add_f32 v21, v21, v22")
    a(f"  v_cvt_pk_bf16_f32 v21, v21, v21")
    a("  s_mov_b64 exec, 0xffff")
    a(f"  global_store_short v{vOi}, v21, s[22:23] {cfg.ost}")
    a("  s_mov_b64 exec, -1")
    a(f"  s_add_u32 {sT}, {sH}, {sCj}")
    a(f"  s_cmp_lg_u32 {sT}, 0")
    a("  s_cbranch_scc1 L_fin_end")
    a(f"  v_mov_b32 v22, {T0}")
    a(f"  v_mov_b32 v23, {T1}")
    a(f"  v_mov_b32 v24, 0")
    a("  s_mov_b64 exec, 1")
    a(f"  global_store_dwordx2 v24, v[22:23], s[26:27] sc1")
    a("  s_mov_b64 exec, -1")
    a.label("L_fin_end")
    stamp("end", "main,tail,pro2")
    a("  s_branch L_diag")

    a.label("L_svc")
    a("  s_mov_b32 s101, 0")
    sCb, sS_ = "s61", "s62"
    qA = 8
    a(f"  v_lshlrev_b32 v3, 11, v{vHf}")
    a(f"  v_lshl_add_u32 v3, v{vCc}, 4, v3")
    a(f"  s_mul_i32 {sT}, {sH}, {6*2048}")
    a(f"  s_lshl_b32 {sT2}, {sB}, 9")
    a(f"  s_add_u32 {sT}, {sT}, {sT2}")
    a(f"  s_add_u32 {sT}, {sT}, {QP3}")
    a(f"  v_add_u32 v{qA}, {sT}, v3")
    a(f"  v_add_u32 v{qA+1}, 4096, v{qA}")
    a(f"  v_add_u32 v{qA+2}, 8192, v{qA}")
    a(f"  v_lshlrev_b32 v11, 2, v{vCc}")
    a("  s_waitcnt lgkmcnt(0)")
    a("  s_load_dwordx2 s[28:29], s[26:27], 0")
    mk_srd(srdG, 16, 1966080)
    mk_srd(srdU, 18, 1966080)
    mk_srd(srdD, 20, 1966080)
    a("  s_waitcnt lgkmcnt(0)")
    a(f"  s_add_u32 {T0}, s28, 1")
    a(f"  s_add_u32 {T1}, s29, 1")
    a("  s_barrier")
    GQ = 16
    if cfg.dyn:
        a(f"  s_lshl_b32 {sT}, {sH}, 3")
        a(f"  s_add_u32 {sT2}, {sT}, {sU}")
        a(f"  s_lshl_b32 {sT2}, {sT2}, 4")
        a(f"  s_add_u32 {sT2}, {sT2}, {RD}")
        a(f"  v_mov_b32 v12, {sT2}")
        a(f"  v_mov_b32 v40, 0")
        a(f"  v_mov_b32 v41, {T0}")
        a(f"  v_mov_b32 v42, 0")
        a(f"  v_mov_b32 v43, {T1}")
        a("  s_mov_b64 exec, 1")
        a(f"  global_store_dwordx4 v12, v[40:43], s[26:27] sc1")
        a("  s_mov_b64 exec, -1")
        a(f"  s_xor_b32 {sT2}, {sU}, 1")
        a(f"  s_add_u32 {sT2}, {sT2}, {sT}")
        a(f"  s_lshl_b32 {sT2}, {sT2}, 4")
        a(f"  s_add_u32 {sT2}, {sT2}, {RD}")
        a(f"  v_mov_b32 v12, {sT2}")
    if cfg.qpp:
        def q_issue(base):
            for k in range(3):
                a(f"  global_load_dwordx4 v[{base+4*k}:{base+4*k+3}], v{qA+k}, s[26:27] {cfg.qld}")
            a(f"  global_load_dwordx4 v[{base+12}:{base+15}], v12, s[26:27] sc1")
        assert cfg.dyn
        save = cfg.ppsleep; cfg.ppsleep = cfg.qppsleep
        pipelined_poll("q", q_issue, 4, 44, 60, GQ, [0, 4, 8, 12], 34, False)
        cfg.ppsleep = save
    else:
        a.label("L_qpoll")
        for k in range(3):
            a(f"  global_load_dwordx4 v[{GQ+4*k}:{GQ+4*k+3}], v{qA+k}, s[26:27] {cfg.qld}")
        if cfg.dyn:
            a(f"  global_load_dwordx4 v[{GQ+12}:{GQ+15}], v12, s[26:27] sc1")
        a("  s_waitcnt vmcnt(0)")
        check_tags([GQ, GQ+4, GQ+8] + ([GQ+12] if cfg.dyn else []), 34)
        a("  s_cbranch_vccz L_qgot")
        spin_guard()
        a("  s_branch L_qpoll")
    a.label("L_qgot")
    qv = [GQ, GQ+2, GQ+4, GQ+6, GQ+8, GQ+10]
    for r, t in zip(qv, range(34, 40)): a(f"  v_mov_b32 v{t}, v{r}")
    for r, t in zip(qv, range(34, 40)): a(f"  v_permlane32_swap_b32 v{r}, v{t}")
    for r, t in zip(qv, range(34, 40)): a(f"  v_add_f32 v{r}, v{r}, v{t}")
    for k in range(3): a(f"  v_cvt_pk_bf16_f32 v{34+k}, v{GQ+4*k}, v{GQ+4*k+2}")
    for k in range(3): a(f"  ds_write_b32 v11, v{34+k} offset:{QB + 128*k}")
    a("  s_waitcnt lgkmcnt(0)")
    a("  s_barrier")
    a("  s_waitcnt vmcnt(0)")
    stamp("fstart", "ffn")
    if cfg.noffn:
        a(f"  v_mov_b32 v8, 1.0")
        a(f"  v_mov_b32 v9, 1.0")
        a(f"  v_mov_b32 v10, 1.0")
        a(f"  v_mov_b32 v11, 1.0")
        a(f"  v_lshlrev_b32 v3, 4, v{vLane}")
        a("  s_mov_b64 exec, 0xf")
        a(f"  ds_write_b128 v3, v[8:11] offset:{GV}")
        a("  s_waitcnt lgkmcnt(0)")
        a("  s_branch L_end")
    fA, fB, fB2 = 10, 11, 12
    if cfg.sflag:
        a(f"  v_mov_b32 v3, {TQ + 240}")
        a.label("L_sfw")
        a("  s_sleep 2")
        a("  ds_read_b128 v[16:19], v3")
        a(f"  s_add_u32 s101, s101, 1")
        a(f"  s_cmp_gt_u32 s101, 0x400000")
        a("  s_cbranch_scc1 L_end")
        a("  s_waitcnt lgkmcnt(0)")
        a("  v_and_b32 v16, v16, v17")
        a("  v_and_b32 v18, v18, v19")
        a("  v_and_b32 v16, v16, v18")
        a("  v_readfirstlane_b32 s61, v16")
        a("  s_cmp_eq_u32 s61, 1")
        a("  s_cbranch_scc0 L_sfw")
    a(f"  s_cmp_lt_u32 {sCj}, 8")
    a("  s_cbranch_scc1 L_nof1")
    a(f"  s_mul_i32 {sI}, {sH}, 3")
    a(f"  s_add_u32 {sI}, {sI}, {sB}")
    a(f"  s_lshr_b32 {sCb}, {sI}, 2")
    a(f"  s_and_b32 {sS_}, {sI}, 3")
    a(f"  v_lshrrev_b32 v3, 4, v{vLane}")
    a(f"  v_and_b32 v13, 3, v{vLane}")
    a(f"  v_bfe_u32 v14, v{vLane}, 2, 2")
    a(f"  v_mul_u32_u24 v{fA}, {XS}, v13")
    a(f"  v_lshl_add_u32 v{fA}, v3, 4, v{fA}")
    a(f"  s_mul_i32 {sT}, {sS_}, 320")
    a(f"  v_add_u32 v{fA}, {sT}, v{fA}")
    a(f"  v_lshl_add_u32 v15, v3, 3, v14")
    a(f"  v_lshlrev_b32 v15, 7, v15")
    a(f"  v_lshl_add_u32 v{fB}, v13, 3, v15")
    a(f"  v_add_u32 v{fB}, {F1S}, v{fB}")
    FA, FB, FDd = 16, 40, 120
    for st in range(5):
        a(f"  ds_read_b128 v[{FA+4*st}:{FA+4*st+3}], v{fA} offset:{XN + 64*st}")
    for t in range(32): a(f"  v_mov_b32 v{FDd+t}, 0")
    quarter_masks(3, MQ)
    for mat in range(2):
        for t in range(4):
            for st in range(5):
                r = FB + 4*(5*t + st)
                a(f"  ds_read_b64_tr_b16 v[{r}:{r+1}], v{fB} offset:{20480*mat + 4096*st + 32*t}")
                a(f"  ds_read_b64_tr_b16 v[{r+2}:{r+3}], v{fB} offset:{20480*mat + 4096*st + 32*t + 512}")
            a("  s_waitcnt lgkmcnt(0)")
        for st in range(5):
            for t in range(4):
                r = FB + 4*(5*t + st); D = FDd + 4*(4*mat + t)
                a(f"  v_mfma_f32_16x16x32_bf16 v[{D}:{D+3}], v[{FA+4*st}:{FA+4*st+3}], v[{r}:{r+3}], v[{D}:{D+3}]")
    a(f"  s_lshl_b32 {sT}, {sI}, 11")
    a(f"  s_add_u32 {sT}, {sT}, {G1}")
    a(f"  v_lshl_add_u32 v13, v{vLane}, 4, {sT}")
    for mat in range(2):
        g = 32 + 4*mat
        for i in range(4):
            Dm = FDd + 16*mat + i
            select4(g+i, Dm, Dm+4, Dm+8, Dm+12, MQ)
        a(f"  global_store_dwordx4 v13, v[{g}:{g+3}], s[26:27] offset:{1024*mat} {cfg.hst}")
    def flag_store(vaddr):
        a("  v_mov_b32 v40, 0")
        a(f"  v_mov_b32 v41, {T0}")
        a("  v_mov_b32 v42, 0")
        a(f"  v_mov_b32 v43, {T1}")
        a("  s_waitcnt vmcnt(0)")
        a("  s_mov_b64 exec, 1")
        a(f"  global_store_dwordx4 v{vaddr}, v[40:43], s[26:27] {cfg.pst}")
        a("  s_mov_b64 exec, -1")
    a(f"  s_lshl_b32 {sT}, {sI}, 4")
    a(f"  s_add_u32 {sT}, {sT}, {F1}")
    a(f"  v_mov_b32 v14, {sT}")
    flag_store(14)
    stamp("f1pub", "ffn")
    if cfg.fstop == 1: a("  s_branch L_diag")
    a(f"  s_lshl_b32 {sT}, {sCb}, 6")
    a(f"  s_add_u32 {sT}, {sT}, {F1}")
    a(f"  v_and_b32 v15, 3, v{vLane}")
    a(f"  v_lshl_add_u32 v15, v15, 4, {sT}")
    a.label("L_f1poll")
    a(f"  global_load_dwordx4 v[44:47], v15, s[26:27] {cfg.pld}")
    a("  s_waitcnt vmcnt(0)")
    check_tags([44], 64)
    a("  s_cbranch_vccz L_f1ok")
    spin_guard(cfg.fsleep)
    a("  s_branch L_f1poll")
    a.label("L_f1ok")
    a(f"  s_lshl_b32 {sT}, {sCb}, 13")
    a(f"  s_lshl_b32 {sT2}, {sS_}, 8")
    a(f"  s_add_u32 {sT}, {sT}, {sT2}")
    a(f"  s_add_u32 {sT}, {sT}, {G1}")
    a(f"  v_lshrrev_b32 v3, 4, v{vLane}")
    a(f"  v_lshlrev_b32 v14, 11, v3")
    a(f"  v_and_b32 v15, 15, v{vLane}")
    a(f"  v_lshl_add_u32 v14, v15, 4, v14")
    a(f"  v_add_u32 v14, {sT}, v14")
    FGg = 48
    for mat in range(2):
        a(f"  global_load_dwordx4 v[{FGg+4*mat}:{FGg+4*mat+3}], v14, s[26:27] offset:{1024*mat} {cfg.hld}")
    a("  s_waitcnt vmcnt(0)")
    stamp("f1ok", "ffn")
    fv = list(range(FGg, FGg+8))
    reduce_hi(fv, list(range(64, 72)), rors=())
    select4(72, FGg, FGg+1, FGg+2, FGg+3, MQ)
    select4(73, FGg+4, FGg+5, FGg+6, FGg+7, MQ)
    bf16round(72, 72)
    bf16round(73, 73)
    a("  v_mul_f32 v74, v72, v72")
    a("  v_mul_f32 v74, v74, v72")
    a(f"  v_mul_f32 v74, {f32(0.044715)}, v74")
    a("  v_add_f32 v74, v72, v74")
    a(f"  v_mul_f32 v74, {f32(-2.0*0.7978845608028654*1.4426950408889634)}, v74")
    a("  v_exp_f32 v74, v74")
    a("  v_add_f32 v74, 1.0, v74")
    a("  v_rcp_f32 v74, v74")
    a("  v_mul_f32 v74, v72, v74")
    bf16round(74, 74)
    a("  v_mul_f32 v74, v74, v73")
    a("  v_cvt_pk_bf16_f32 v74, v74, v74")
    a("  v_mov_b32 v75, v74 quad_perm:[1,0,3,2] row_mask:0xf bank_mask:0xf")
    a(f"  v_perm_b32 v76, v75, v74, {sPermLo}")
    a("  v_mov_b32 v78, v76")
    a("  v_permlane16_swap_b32 v76, v78")
    a(f"  v_mov_b32 v77, {T0}")
    a(f"  v_mov_b32 v79, {T1}")
    a(f"  s_lshl_b32 {sT}, {sI}, 8")
    a(f"  s_add_u32 {sT}, {sT}, {G2}")
    a(f"  v_lshlrev_b32 v3, 7, v{vHf}")
    a(f"  v_lshl_add_u32 v3, v15, 3, v3")
    a(f"  v_add_u32 v3, {sT}, v3")
    a("  s_mov_b32 exec_lo, 0x00005555")
    a("  s_mov_b32 exec_hi, 0x00005555")
    a(f"  global_store_dwordx4 v3, v[76:79], s[26:27] {cfg.pst}")
    a("  s_mov_b64 exec, -1")
    a("  s_branch L_diag")
    a.label("L_nof1")
    if cfg.fstop:
        a(f"  v_mov_b32 v8, 1.0")
        a(f"  v_mov_b32 v9, 1.0")
        a(f"  v_mov_b32 v10, 1.0")
        a(f"  v_mov_b32 v11, 1.0")
        a(f"  v_lshlrev_b32 v3, 4, v{vLane}")
        a("  s_mov_b64 exec, 0xf")
        a(f"  ds_write_b128 v3, v[8:11] offset:{GV}")
        a("  s_mov_b64 exec, -1")
        a("  s_waitcnt lgkmcnt(0)")
        if cfg.fstop <= 2: a("  s_branch L_diag")
    a(f"  s_cmp_lt_u32 {sU}, 6")
    a("  s_cbranch_scc1 L_nof2")
    a(f"  s_lshl_b32 {sI}, {sH}, 1")
    a(f"  s_add_u32 {sI}, {sI}, {sHalf}")
    a(f"  s_cmp_ge_u32 {sI}, 60")
    a("  s_cbranch_scc1 L_nof2")
    a(f"  s_mul_i32 {sCb}, {sI}, 52")
    a(f"  s_lshr_b32 {sCb}, {sCb}, 8")
    a(f"  s_mul_i32 {sS_}, {sCb}, 5")
    a(f"  s_sub_u32 {sS_}, {sI}, {sS_}")
    a(f"  s_lshl_b32 {sT}, {sCb}, 11")
    a(f"  s_add_u32 {sT}, {sT}, {G2}")
    a(f"  v_lshl_add_u32 v14, v{vLane}, 4, {sT}")
    a(f"  v_lshrrev_b32 v3, 4, v{vLane}")
    a(f"  v_bfe_u32 v15, v{vLane}, 2, 2")
    a(f"  v_lshl_add_u32 v15, v3, 3, v15")
    a(f"  v_lshlrev_b32 v15, 8, v15")
    a(f"  v_and_b32 v13, 3, v{vLane}")
    a(f"  v_lshl_add_u32 v{fB2}, v13, 3, v15")
    a(f"  v_add_u32 v{fB2}, {F2S}, v{fB2}")
    a.label("L_f2poll")
    a(f"  global_load_dwordx4 v[48:51], v14, s[26:27] {cfg.pld}")
    a(f"  global_load_dwordx4 v[52:55], v14, s[26:27] offset:1024 {cfg.pld}")
    a("  s_waitcnt vmcnt(0)")
    check_tags([48, 52], 64)
    a("  s_cbranch_vccz L_f2ok")
    spin_guard(cfg.fsleep)
    a("  s_branch L_f2poll")
    a.label("L_f2ok")
    stamp("f2ok", "ffn")
    a(f"  v_and_b32 v3, 1, v{vG}")
    a(f"  v_mul_u32_u24 v3, {2*HS}, v3")
    a(f"  v_lshrrev_b32 v14, 4, v{vLane}")
    a(f"  v_lshl_add_u32 v3, v14, 5, v3")
    a(f"  v_lshl_add_u32 v3, v{vC}, 2, v3")
    a(f"  ds_write_b32 v3, v48 offset:{HID}")
    a(f"  ds_write_b32 v3, v50 offset:{HID+HS}")
    a(f"  ds_write_b32 v3, v52 offset:{HID+128}")
    a(f"  ds_write_b32 v3, v54 offset:{HID+HS+128}")
    a(f"  v_mul_u32_u24 v3, {HS}, v13")
    a(f"  v_lshl_add_u32 v3, v14, 4, v3")
    a("  s_waitcnt lgkmcnt(0)")
    F2A = 48
    for st in range(4):
        a(f"  ds_read_b128 v[{F2A+4*st}:{F2A+4*st+3}], v3 offset:{HID+64*st}")
    F2B = 80
    F2D = 144
    for t in range(32): a(f"  v_mov_b32 v{F2D+t}, 0")
    quarter_masks(14, MQ)
    a(f"  s_mul_i32 {sI}, {sS_}, 12")
    a(f"  s_add_u32 {sI}, {sI}, {sCb}")
    a(f"  s_lshl_b32 {sT}, {sI}, 11")
    a(f"  s_add_u32 {sT}, {sT}, {FP3}")
    a(f"  v_lshl_add_u32 v13, v{vLane}, 4, {sT}")
    for hf in range(2):
        for t in range(8):
            for st in range(2):
                r = F2B + 8*t + 4*st; sg = 2*hf + st
                a(f"  ds_read_b64_tr_b16 v[{r}:{r+1}], v{fB2} offset:{8192*sg + 32*t}")
                a(f"  ds_read_b64_tr_b16 v[{r+2}:{r+3}], v{fB2} offset:{8192*sg + 32*t + 1024}")
            if t % 2 == 1: a("  s_waitcnt lgkmcnt(0)")
        for st in range(2):
            for t in range(8):
                r = F2B + 8*t + 4*st; D = F2D + 4*t; sg = 2*hf + st
                a(f"  v_mfma_f32_16x16x32_bf16 v[{D}:{D+3}], v[{F2A+4*sg}:{F2A+4*sg+3}], v[{r}:{r+3}], v[{D}:{D+3}]")
        if hf == 0: a("  s_nop 7")
    for rr in range(2):
        g = 32 + 4*rr
        for i in range(4):
            Dm = F2D + 16*rr + i
            select4(g+i, Dm, Dm+4, Dm+8, Dm+12, MQ)
        a(f"  global_store_dwordx4 v13, v[{g}:{g+3}], s[26:27] offset:{1024*rr} {cfg.hst}")
    a(f"  s_lshl_b32 {sT}, {sS_}, 9")
    a(f"  s_lshl_b32 {sT2}, {sCb}, 4")
    a(f"  s_add_u32 {sT}, {sT}, {sT2}")
    a(f"  s_add_u32 {sT}, {sT}, {F3}")
    a(f"  v_mov_b32 v14, {sT}")
    flag_store(14)
    a.label("L_nof2")
    if cfg.fstop == 3: a("  s_branch L_diag")
    stamp("f2pub", "ffn")
    a(f"  s_lshl_b32 {sT}, {sCj}, 9")
    a(f"  s_add_u32 {sT}, {sT}, {F3}")
    a(f"  v_min_u32 v3, 11, v{vLane}")
    a(f"  v_lshl_add_u32 v15, v3, 4, {sT}")
    a.label("L_f3poll")
    a(f"  global_load_dwordx4 v[44:47], v15, s[26:27] {cfg.pld}")
    a("  s_waitcnt vmcnt(0)")
    check_tags([44], 64)
    a("  s_cbranch_vccz L_f3ok")
    spin_guard(cfg.fsleep3)
    a("  s_branch L_f3poll")
    a.label("L_f3ok")
    a(f"  s_mul_i32 {sT}, {sCj}, {12*2048}")
    a(f"  s_lshl_b32 {sT2}, {sH}, 6")
    a(f"  s_add_u32 {sT}, {sT}, {sT2}")
    a(f"  s_add_u32 {sT}, {sT}, {FP3}")
    a(f"  v_lshrrev_b32 v3, 2, v{vLane}")
    a(f"  v_lshlrev_b32 v3, 11, v3")
    a(f"  v_and_b32 v13, 3, v{vLane}")
    a(f"  v_lshl_add_u32 v3, v13, 4, v3")
    a(f"  v_add_u32 v14, {sT}, v3")
    for e in range(4): a(f"  v_mov_b32 v{48+e}, 0")
    a("  s_mov_b32 exec_hi, 0xffff")
    a(f"  global_load_dwordx4 v[48:51], v14, s[26:27] {cfg.hld}")
    a("  s_mov_b32 exec_hi, -1")
    a("  s_waitcnt vmcnt(0)")
    reduce_hi([48, 49, 50, 51], [56, 57, 58, 59], rors=(4, 8))
    for e in range(4):
        r = 48 + e
        bf16round(r, r)
        a(f"  v_mul_f32 v{56+e}, {f32(-1.4426950408889634)}, v{r}")
    for e in range(4): a(f"  v_exp_f32 v{56+e}, v{56+e}")
    for e in range(4): a(f"  v_add_f32 v{56+e}, 1.0, v{56+e}")
    for e in range(4): a(f"  v_rcp_f32 v{56+e}, v{56+e}")
    for e in range(4): a(f"  v_mul_f32 v{48+e}, v{48+e}, v{56+e}")
    for e in range(4): bf16round(48+e, 48+e)
    a(f"  v_lshlrev_b32 v3, 4, v13")
    a("  s_mov_b64 exec, 0xf")
    a(f"  ds_write_b128 v3, v[48:51] offset:{GV}")
    a("  s_mov_b64 exec, -1")
    a("  s_waitcnt lgkmcnt(0)")
    stamp("fend", "ffn")
    a.label("L_diag")
    if cfg.diag == "dbg":
        a(f"  s_cmp_lg_u32 {sW}, 0")
        a("  s_cbranch_scc1 L_end")
        a(f"  s_cmp_ge_u32 {sCj}, 8")
        a("  s_cbranch_scc1 L_end")
        a("  s_load_dwordx2 s[24:25], s[0:1], 80")
        a("  s_memrealtime s[98:99]")
        a("  s_waitcnt lgkmcnt(0)")
        a("  s_mov_b64 exec, 1")
        a("  s_not_b32 s64, s84")
        vals = ["s64"] + [f"s{84+2*i}" for i in range(1, nst[0])] + ["s98"]
        for i, r in enumerate(vals):
            a(f"  v_mov_b32 v3, {4*i}")
            a(f"  v_mov_b32 v4, {r}")
            a(f"  global_atomic_umax v3, v4, s[24:25] sc1")
            a("  s_nop 1")
    elif cfg.diag:
        a("  s_waitcnt lgkmcnt(0)")
        a(f"  s_mul_i32 {sT}, s2, 5")
        a(f"  s_add_u32 {sT}, {sT}, {sW}")
        a(f"  s_lshl_b32 {sT}, {sT}, 7")
        a(f"  s_add_u32 {sT}, {sT}, {STAMP}")
        a(f"  v_mov_b32 v3, {sT}")
        a("  s_mov_b64 exec, 1")
        for i in range(8):
            a(f"  v_mov_b32 v4, s{84+2*i}")
            a(f"  v_mov_b32 v5, s{85+2*i}")
            a(f"  global_store_dwordx2 v3, v[4:5], s[26:27] offset:{8*i}")
            a("  s_nop 1")
        a("  s_getreg_b32 s84, hwreg(HW_REG_HW_ID)")
        a("  s_getreg_b32 s85, hwreg(HW_REG_XCC_ID)")
        a(f"  v_mov_b32 v4, s84")
        a(f"  v_mov_b32 v5, s85")
        a(f"  global_store_dwordx2 v3, v[4:5], s[26:27] offset:64")
        a("  s_nop 1")
        a(f"  v_mov_b32 v4, {sNval}")
        a(f"  v_mov_b32 v5, {sU}")
        a(f"  global_store_dwordx2 v3, v[4:5], s[26:27] offset:72")
    a.label("L_end")
    a("  s_endpgm")
    a('.section .rodata,"a"')
    a(".p2align 6")
    a(f".amdhsa_kernel {KN}")
    a("  .amdhsa_next_free_vgpr 256")
    a("  .amdhsa_next_free_sgpr 102")
    a("  .amdhsa_accum_offset 256")
    a("  .amdhsa_group_segment_fixed_size 0")
    a("  .amdhsa_kernarg_size 96")
    a("  .amdhsa_user_sgpr_count 2")
    a("  .amdhsa_user_sgpr_kernarg_segment_ptr 1")
    a("  .amdhsa_system_sgpr_workgroup_id_x 1")
    a(".end_amdhsa_kernel")
    body = a.finalize()
    if cfg.diag: hdr.append("; stamps: " + ",".join(names))
    return "\n".join(hdr) + "\n" + body

if __name__ == "__main__":
    ap = argparse.ArgumentParser()
    ap.add_argument("-o", default="recurrent_scan__mha_block_cached__geglu_ffn__decode.s")
    for k, v in vars(Cfg).items():
        if k.startswith("_"): continue
        if isinstance(v, bool): ap.add_argument("--" + k, type=int, default=int(v))
        else: ap.add_argument("--" + k, type=type(v), default=v)
    ap.add_argument("--wo_late", type=int, default=0)
    args = ap.parse_args()
    cfg = Cfg()
    for k, v in vars(args).items(): setattr(cfg, k, v)
    open(args.o, "w").write(build(cfg))
    print("wrote", args.o)
```

```python
import struct, sys, argparse
from asmdsl import Asm

KN = "recurrent_scan__mha_block_cached__geglu_ffn__decode_kernel"
def f32(x): return "0x%08x" % struct.unpack("<I", struct.pack("<f", x))[0]
LOG2E = f32(1.4426950408889634)
SCALE = f32(192 ** -0.5)

STAMP = 0x10000
QP3 = 0x100000
AP  = 0x180000
SP3 = 0x200000
G1  = 0x2A0000
F1  = 0x300000
G2  = 0x301000
FP3 = 0x308000
F3  = 0x344000
TK  = 0x350000
RD  = 0x360000
XN  = 0
XS  = 1344
QB  = 5376
HID = 5760
HS  = 320
GV  = 7040
PART = 7168
OB  = 10368
OS  = 448
TQ  = 12160
WQS = 12544
WO  = WQS + 40960
F1S = WO
F2S = WQS
LA  = WO + 49152

class Cfg:
    R = 2; NL = 0; NA = 1; diag = ''; nt = "nt"; dyn = 3; S = 56; match = 2
    sleep = 2; fsleep = 32; hst = "sc1 nt"; hld = "sc1 nt"; qst = "sc1"; qld = "sc1"; tst = "sc1"; tld = "sc1"
    pst = "sc1"; pld = "sc1"; fsleep3 = 120
    noffn = 0
    fstop = 0
    sflag = 0
    rot = 2
    early1 = 0
    pace = 8
    qwait = 0
    qpp = 0
    qppsleep = 12
    ost = ''
    pp = 0
    ppsleep = 3
    wotail = 0
    wsbase = 0
    h1full = 1
    wmax = 1
    pf32 = 1

def build(cfg):
    global QP3, AP, SP3, G1, F1, G2, FP3, F3, TK, RD
    QP3, AP, SP3, G1, F1, G2, FP3, F3, TK, RD = [x + cfg.wsbase for x in (0x100000, 0x180000, 0x200000, 0x2A0000, 0x300000, 0x301000, 0x308000, 0x344000, 0x350000, 0x360000)]
    a = Asm()
    R, NL, NT = cfg.R, cfg.NL, cfg.nt
    assert NL <= 2
    LDS_BYTES = LA + NL * 4 * 6144
    assert LDS_BYTES <= 163840, LDS_BYTES
    sW = "s3"
    sAlive, sNval = "s14", "s15"
    T0, T1 = "s30", "s31"
    srdK, srdV, srdW, srdO, srdG, srdU, srdD, srdT = 32, 36, 40, 44, 48, 52, 76, 80
    sH, sX, sB, sHalf, sU = "s56", "s57", "s58", "s59", "s60"
    sOff, sStr, sI, sT, sT2, sT3 = "s61", "s62", "s63", "s64", "s65", "s66"
    sOnes, sPermLo, sFirst = "s67", "s68", "s24"
    sSpin, sC0 = "s74", "s75"
    sCj = "s100"
    def srd(i): return f"s[{i}:{i+3}]"
    nst = [0]; names = []
    def stamp(name=None, sets="main"):
        if cfg.diag and cfg.diag in sets.split(","):
            i = 84 + 2 * nst[0]; nst[0] += 1
            assert i <= 98, name
            names.append(name)
            a(f"  s_memrealtime s[{i}:{i+1}]")
    slots = {}
    def restamp(name, sets):
        if cfg.diag and cfg.diag in sets.split(","):
            if name not in slots:
                slots[name] = 84 + 2 * nst[0]; nst[0] += 1; names.append(name)
                assert slots[name] <= 98
            i = slots[name]
            a(f"  s_memrealtime s[{i}:{i+1}]")
    vTid, vLane, vKV = 0, 1, 2
    vHf, vCc, vG, vC = 4, 5, 6, 7
    RING = 160
    def Kr(s, j): return RING + 24 * s + 4 * j
    def Vr(s, j): return RING + 24 * s + 12 + 4 * j
    ACC, Q, vM, vL, TKR, vTKo = 136, 124, 122, 123, 118, 116

    def mk_srd(i, lo, size):
        a(f"  s_mov_b32 s{i}, s{lo}")
        a(f"  s_mov_b32 s{i+1}, s{lo+1}")
        a(f"  s_mov_b32 s{i+2}, {size}")
        a(f"  s_mov_b32 s{i+3}, 0x20000")
    def dpp(op, v, ctrl): a(f"  {op} v{v}, v{v}, v{v} {ctrl} row_mask:0xf bank_mask:0xf")
    def allreduce64(v, t, op):
        for n in (1, 2, 4, 8): dpp(op, v, f"row_ror:{n}")
        for sw in ("16", "32"):
            a(f"  v_mov_b32 v{t}, v{v}")
            a(f"  v_permlane{sw}_swap_b32 v{v}, v{t}")
            a(f"  {op} v{v}, v{v}, v{t}")
    def reduce_hi(regs, tmps, rors=(8,)):
        for n in rors:
            for r in regs: dpp("v_add_f32", r, f"row_ror:{n}")
        for sw in ("16", "32"):
            for r, t in zip(regs, tmps): a(f"  v_mov_b32 v{t}, v{r}")
            for r, t in zip(regs, tmps): a(f"  v_permlane{sw}_swap_b32 v{r}, v{t}")
            for r, t in zip(regs, tmps): a(f"  v_add_f32 v{r}, v{r}, v{t}")
    def bf16round(dst, src):
        a(f"  v_cvt_pk_bf16_f32 v{dst}, v{src}, v{src}")
        a(f"  v_lshlrev_b32 v{dst}, 16, v{dst}")
    def check_tags(bases, vflag):
        first = True
        for r in bases:
            if first: a(f"  v_xor_b32 v{vflag}, {T0}, v{r+1}")
            else: a(f"  v_bitop3_b32 v{vflag}, v{vflag}, v{r+1}, {T0} bitop3:0xf6")
            first = False
            a(f"  v_bitop3_b32 v{vflag}, v{vflag}, v{r+3}, {T1} bitop3:0xf6")
        a(f"  v_cmp_ne_u32 vcc, 0, v{vflag}")
    def spin_guard(sleep=0):
        a(f"  s_add_u32 {sSpin}, {sSpin}, 1")
        a(f"  s_cmp_gt_u32 {sSpin}, 100000")
        a("  s_cbranch_scc1 L_end")
        if sleep: a(f"  s_sleep {sleep}")
    def pipelined_poll(tag, issue, n, setA, setB, setC, bases, vflag, first_issued):
        if not first_issued: issue(setA)
        a(f"  s_sleep {cfg.ppsleep}")
        a.label(f"L_pp{tag}")
        issue(setB)
        a(f"  s_waitcnt vmcnt({n})")
        check_tags([setA + o for o in bases], vflag)
        a(f"  s_cbranch_vccnz L_pp{tag}_b")
        for o in bases:
            a(f"  v_mov_b32 v{setC+o}, v{setA+o}")
            a(f"  v_mov_b32 v{setC+o+2}, v{setA+o+2}")
        a(f"  s_branch L_pp{tag}_ok")
        a.label(f"L_pp{tag}_b")
        spin_guard()
        issue(setA)
        a(f"  s_waitcnt vmcnt({n})")
        check_tags([setB + o for o in bases], vflag)
        a(f"  s_cbranch_vccnz L_pp{tag}")
        for o in bases:
            a(f"  v_mov_b32 v{setC+o}, v{setB+o}")
            a(f"  v_mov_b32 v{setC+o+2}, v{setB+o+2}")
        a.label(f"L_pp{tag}_ok")
    def select4(dst, r0, r1, r2, r3, masks):
        a(f"  v_cndmask_b32 v{dst}, v{r0}, v{r1}, {masks[0]}")
        a(f"  v_cndmask_b32 v{dst}, v{dst}, v{r2}, {masks[1]}")
        a(f"  v_cndmask_b32 v{dst}, v{dst}, v{r3}, {masks[2]}")
    def quarter_masks(vsel, masks):
        for i, m in enumerate(masks): a(f"  v_cmp_eq_u32 {m}, {i+1}, v{vsel}")

    def layernorm(vx, tb):
        d = [tb + 10 + j for j in range(10)]
        acc, t, mean, mbf, r = tb + 20, tb + 21, tb + 22, tb + 23, tb + 24
        a(f"  v_mov_b32 v{acc}, 0")
        for j in range(5): a(f"  v_dot2c_f32_bf16 v{acc}, {sOnes}, v{vx+j}")
        for j in range(5):
            a(f"  v_lshlrev_b32 v{tb+2*j}, 16, v{vx+j}")
            a(f"  v_and_b32 v{tb+2*j+1}, 0xffff0000, v{vx+j}")
        allreduce64(acc, t, "v_add_f32")
        a(f"  v_mul_f32 v{mean}, {f32(1.0/640)}, v{acc}")
        bf16round(mbf, mean)
        a(f"  v_mov_b32 v{acc}, 0")
        for j in range(10): a(f"  v_sub_f32 v{d[j]}, v{tb+j}, v{mean}")
        for j in range(10): a(f"  v_fmac_f32 v{acc}, v{d[j]}, v{d[j]}")
        for j in range(10): a(f"  v_sub_f32 v{d[j]}, v{tb+j}, v{mbf}")
        allreduce64(acc, t, "v_add_f32")
        a(f"  v_mul_f32 v{acc}, {f32(1.0/640)}, v{acc}")
        bf16round(acc, acc)
        a(f"  v_add_f32 v{acc}, {f32(1e-5)}, v{acc}")
        bf16round(acc, acc)
        a(f"  v_sqrt_f32 v{acc}, v{acc}")
        bf16round(acc, acc)
        a(f"  v_rcp_f32 v{r}, v{acc}")
        for j in range(5): a(f"  v_cvt_pk_bf16_f32 v{tb+j}, v{d[2*j]}, v{d[2*j+1]}")
        for j in range(5):
            a(f"  v_lshlrev_b32 v{d[2*j]}, 16, v{tb+j}")
            a(f"  v_and_b32 v{d[2*j+1]}, 0xffff0000, v{tb+j}")
        for j in range(10): a(f"  v_mul_f32 v{d[j]}, v{d[j]}, v{r}")
        for j in range(5): a(f"  v_cvt_pk_bf16_f32 v{tb+j}, v{d[2*j]}, v{d[2*j+1]}")
        a(f"  s_mul_i32 {sT}, {sW}, {XS}")
        a(f"  v_lshl_add_u32 v{t}, v{vLane}, 2, {sT}")
        for j in range(5): a(f"  ds_write_b32 v{t}, v{tb+j} offset:{XN + j*256}")

    hdr = [f"; @launch grid=(256,1,1) block=(320,1,1) lds={LDS_BYTES}"]
    if not cfg.diag:
        hdr += """; out = x + (attention(LN x) @ wo) * silu(GEGLU(LN x))          (generated by a script, hand-designed schedule)
; kernarg: 0 x, 8 K, 16 V, 24 wq, 32 wo, 40 (unused), 48 w_gate, 56 w_up, 64 w_down, 72 out, 80 debug, 88 ws
; One persistent launch, 256 workgroups = 32 heads x 8 members, one per CU, 5 waves each.
;  waves 0..3 stream K/V of one (batch, head) row shared by two workgroups: a static share first, then
;             groups of four 8-key chunks drawn from a per-row ticket counter (online softmax, fp32).
;  wave 4     service wave: gathers q, runs the FFN branch (gate/up -> gelu*up -> down -> silu).
;  side jobs  q projection slices (roles 0..5), wo / w_down column groups (roles 0,2,4,6,7), gate/up (1,3,5).
; Hand-offs between workgroups go through d_ws with device-scope stores/loads; every 16-byte granule
; {d0,T0,d1,T1} carries a launch tag T = (word found at ws[0..1]) + 1, dense payloads are followed by a
; tagged flag after the stores have drained.  Ticket counters are counted relative to their value on entry.
; The bf16 roundings of the reference (LN, q, scores, o, s, FFN) are reproduced.""".split("\n")
    a('.amdgcn_target "amdgcn-amd-amdhsa--gfx950"')
    a(".text")
    a(f".globl {KN}")
    a(".p2align 8")
    a(f".type {KN},@function")
    a.label(KN)
    a("  s_cmp_ge_u32 s2, 256")
    a("  s_cbranch_scc1 L_end")
    if cfg.diag:
        for i in range(84, 100): a(f"  s_mov_b32 s{i}, 0")
    stamp("start", "main,pro,tail,ffn,tail2,tail3,pro2,dbg")
    a("  s_load_dwordx8 s[4:11], s[0:1], 0")
    a("  s_load_dwordx2 s[12:13], s[0:1], 32")
    a("  s_load_dwordx8 s[16:23], s[0:1], 48")
    a("  s_load_dwordx4 s[24:27], s[0:1], 80")
    a(f"  v_lshrrev_b32 v3, 6, v{vTid}")
    a(f"  v_and_b32 v{vLane}, 63, v{vTid}")
    a(f"  v_readfirstlane_b32 {sW}, v3")
    a(f"  s_mov_b32 {sSpin}, 0")
    a(f"  s_mov_b32 {sOnes}, 0x3f803f80")
    a(f"  s_mov_b32 {sPermLo}, 0x05040100")
    a(f"  s_lshr_b32 {sH}, s2, 3")
    a(f"  s_and_b32 {sX}, s2, 7")
    a(f"  v_lshrrev_b32 v{vHf}, 5, v{vLane}")
    a(f"  v_and_b32 v{vCc}, 31, v{vLane}")
    a(f"  v_lshrrev_b32 v{vG}, 3, v{vLane}")
    a(f"  v_and_b32 v{vC}, 7, v{vLane}")
    if cfg.match == 2:
        a(f"  s_and_b32 {sT}, {sH}, 1")
        a(f"  s_lshl_b32 {sT}, {sT}, 1")
        a(f"  s_add_u32 {sT}, {sT}, 3")
        a(f"  s_and_b32 {sHalf}, {sX}, 1")
        a(f"  s_mul_i32 {sT}, {sT}, {sHalf}")
        a(f"  s_xor_b32 {sT}, {sT}, {sX}")
        a(f"  s_lshr_b32 {sB}, {sT}, 1")
        if cfg.rot:
            a(f"  s_lshr_b32 {sT}, {sH}, 1")
            a(f"  s_add_u32 {sB}, {sB}, {sT}")
            a(f"  s_and_b32 {sB}, {sB}, 3")
            if cfg.rot == 2:
                a(f"  s_lshr_b32 {sT}, {sH}, 3")
                a(f"  s_and_b32 {sT}, {sT}, 1")
                a(f"  s_xor_b32 {sHalf}, {sHalf}, {sT}")
            if cfg.rot == 3:
                a(f"  s_lshr_b32 {sT}, {sH}, 1")
                a(f"  s_lshr_b32 {sT2}, {sH}, 3")
                a(f"  s_xor_b32 {sT}, {sT}, {sT2}")
                a(f"  s_and_b32 {sT}, {sT}, 1")
                a(f"  s_xor_b32 {sHalf}, {sHalf}, {sT}")
    else:
        a(f"  s_lshr_b32 {sB}, {sX}, 1")
        a(f"  s_and_b32 {sHalf}, {sX}, 1")
    a(f"  s_lshl_b32 {sU}, {sB}, 1")
    a(f"  s_add_u32 {sU}, {sU}, {sHalf}")
    a(f"  s_cmp_eq_u32 {sHalf}, 0")
    a(f"  s_cselect_b32 {sCj}, {sB}, 8")
    a(f"  s_cmp_eq_u32 {sU}, 7")
    a(f"  s_cselect_b32 {sCj}, 4, {sCj}")
    a(f"  s_cmp_eq_u32 {sW}, 4")
    a("  s_cbranch_scc1 L_svc")

    vXo, vWq = 8, 9
    a(f"  v_mul_u32_u24 v{vKV}, 384, v{vG}")
    a(f"  v_lshl_add_u32 v{vKV}, v{vC}, 4, v{vKV}")
    a(f"  v_mul_u32_u24 v{vWq}, 12288, v{vG}")
    a(f"  v_lshl_add_u32 v{vWq}, v{vC}, 4, v{vWq}")
    a(f"  s_mul_i32 {sT}, {sW}, 1280")
    a(f"  v_lshl_add_u32 v{vXo}, v{vLane}, 2, {sT}")
    a("  s_waitcnt lgkmcnt(0)")
    stamp("karg", "pro")
    a("  s_load_dwordx2 s[28:29], s[26:27], 0")
    VX = 11
    for j in range(5):
        a(f"  global_load_dword v{VX+j}, v{vXo}, s[4:5] offset:{j*256}")
    mk_srd(srdW, 10, 7864320)
    a(f"  s_cmp_ge_u32 {sU}, 6")
    a("  s_cbranch_scc1 L_nowq")
    a(f"  s_mul_i32 {sT}, {sHalf}, 320")
    a(f"  s_mul_i32 {sT2}, {sW}, 80")
    a(f"  s_add_u32 {sT}, {sT}, {sT2}")
    a(f"  s_mul_i32 {sT}, {sT}, 12288")
    a(f"  s_mul_i32 {sT3}, {sH}, 384")
    a(f"  s_add_u32 {sT}, {sT}, {sT3}")
    a(f"  s_lshl_b32 {sT3}, {sB}, 7")
    a(f"  s_add_u32 {sT}, {sT}, {sT3}")
    a(f"  s_lshl_b32 {sT2}, {sT2}, 7")
    a(f"  s_add_u32 {sT2}, {sT2}, {WQS}")
    for i in range(10):
        a(f"  s_add_u32 m0, {sT2}, {1024*i}")
        a(f"  buffer_load_dwordx4 v{vWq}, {srd(srdW)}, {sT} offen {NT} lds")
        if i < 9: a(f"  s_add_u32 {sT}, {sT}, {8*12288}")
    a.label("L_nowq")
    mk_srd(srdK, 6, 201326592)
    mk_srd(srdV, 8, 201326592)
    mk_srd(srdO, 12, 7864320)
    CH = 7 if cfg.dyn else 6
    nb = 1 if cfg.dyn else 0
    if cfg.dyn:
        a(f"  s_lshl_b32 {sT}, {sH}, 2")
        a(f"  s_add_u32 {sT}, {sT}, {sB}")
        if cfg.dyn == 1:
            a(f"  s_lshl_b32 {sT}, {sT}, 2")
            a(f"  s_add_u32 {sT}, {sT}, {sW}")
            a(f"  s_lshl_b32 {sT}, {sT}, 7")
        else:
            a(f"  s_lshl_b32 {sT}, {sT}, 9")
        a(f"  v_mov_b32 v{vTKo}, 0x7ffffff0")
        a(f"  v_mov_b32 v3, {sT}")
        a(f"  v_cmp_eq_u32 vcc, 0, v{vLane}")
        a(f"  v_cndmask_b32 v{vTKo}, v{vTKo}, v3, vcc")
        a(f"  s_add_u32 s{srdT}, s26, {TK}")
        a(f"  s_addc_u32 s{srdT+1}, s27, 0")
        a(f"  s_mov_b32 s{srdT+2}, 65536")
        a(f"  s_mov_b32 s{srdT+3}, 0x20000")
        a(f"  buffer_load_dword v117, v{vTKo}, {srd(srdT)}, 0 offen sc1")
        a(f"  s_mov_b32 s{srdT+2}, 0")
    a(f"  s_lshl_b32 {sT}, {sB}, 5")
    a(f"  s_add_u32 {sT}, {sT}, {sH}")
    a(f"  s_mul_i32 {sOff}, {sT}, 1572864")
    sPool = "s69"
    if cfg.dyn >= 2:
        a(f"  s_add_u32 {sPool}, {sOff}, {8*cfg.S*3072}")
        a(f"  s_lshl_b32 {sT}, {sHalf}, 2")
        a(f"  s_add_u32 {sT}, {sT}, {sW}")
        a(f"  s_mul_i32 {sT}, {sT}, {cfg.S*3072}")
        a(f"  s_add_u32 {sOff}, {sOff}, {sT}")
        a(f"  s_mov_b32 {sStr}, 3072")
    elif not cfg.dyn:
        a(f"  s_mul_i32 {sT}, {sHalf}, 786432")
        a(f"  s_add_u32 {sOff}, {sOff}, {sT}")
        a(f"  s_mul_i32 {sT}, {sW}, 196608")
        a(f"  s_add_u32 {sOff}, {sOff}, {sT}")
        a(f"  s_mov_b32 {sStr}, 3072")
    else:
        a(f"  s_mul_i32 {sT}, {sW}, 393216")
        a(f"  s_add_u32 {sOff}, {sOff}, {sT}")
        a(f"  s_mul_i32 {sT}, {sHalf}, {393216-3072}")
        a(f"  s_add_u32 {sOff}, {sOff}, {sT}")
        a(f"  s_mul_i32 {sStr}, {sHalf}, -6144")
        a(f"  s_add_u32 {sStr}, {sStr}, 3072")
    def issueT(s):
        if cfg.dyn:
            a(f"  v_mov_b32 v{TKR+s}, 1")
            a(f"  buffer_atomic_add v{TKR+s}, v{vTKo}, {srd(srdT)}, 0 offen sc0 sc1")
    def issueK(s):
        for j in range(3):
            a(f"  buffer_load_dwordx4 v[{Kr(s,j)}:{Kr(s,j)+3}], v{vKV}, {srd(srdK)}, {sOff} offen offset:{128*j} {NT}")
    def issueV(s):
        for j in range(3):
            a(f"  buffer_load_dwordx4 v[{Vr(s,j)}:{Vr(s,j)+3}], v{vKV}, {srd(srdV)}, {sOff} offen offset:{128*j} {NT}")
        a(f"  s_add_u32 {sOff}, {sOff}, {sStr}")
    sLb = "s25"
    def issueL(k):
        for srdx, o in ((srdK, 0), (srdV, 3072)):
            for j in range(3):
                a(f"  s_add_u32 m0, {sLb}, {6144*k + o + 896*j}")
                a(f"  buffer_load_dwordx4 v{vKV}, {srd(srdx)}, {sOff} offen offset:{128*j} {NT} lds")
        a(f"  s_add_u32 {sOff}, {sOff}, {sStr}")
    NA = cfg.NA
    for s in range(NA):
        issueT(s); issueK(s); issueV(s)
    stamp("issued", "main")
    a(f"  s_cmp_ge_u32 {sU}, 6")
    a("  s_cbranch_scc1 L_xw2")
    a(f"  s_waitcnt vmcnt({10 + nb + CH*NA})")
    a("  s_branch L_xw3")
    a.label("L_xw2")
    a(f"  s_waitcnt vmcnt({nb + CH*NA})")
    a.label("L_xw3")
    stamp("xarr", "pro")
    layernorm(VX, 16)
    NA0 = NA
    if cfg.early1:
        issueT(NA); issueK(NA); issueV(NA)
        NA += 1
    vQa, vQb, vQp = 10, 44, 45
    a(f"  v_lshrrev_b32 v3, 4, v{vLane}")
    a(f"  v_and_b32 v47, 3, v{vLane}")
    a(f"  v_mul_u32_u24 v{vQa}, {XS}, v47")
    a(f"  v_lshl_add_u32 v{vQa}, v3, 4, v{vQa}")
    a(f"  s_mul_i32 {sT}, {sHalf}, 640")
    a(f"  v_add_u32 v{vQa}, {sT}, v{vQa}")
    a(f"  v_bfe_u32 v50, v{vLane}, 2, 2")
    a(f"  v_lshl_add_u32 v48, v3, 3, v50")
    a(f"  v_lshlrev_b32 v48, 7, v48")
    a(f"  v_lshl_add_u32 v48, v47, 3, v48")
    a(f"  s_lshl_b32 {sT}, {sW}, 5")
    a(f"  s_add_u32 {sT}, {sT}, {WQS}")
    a(f"  v_add_u32 v{vQb}, {sT}, v48")
    a(f"  s_mul_i32 {sT}, {sH}, 6")
    a(f"  s_add_u32 {sT}, {sT}, {sU}")
    a(f"  s_lshl_b32 {sT}, {sT}, 11")
    a(f"  s_lshl_b32 {sT2}, {sW}, 7")
    a(f"  s_add_u32 {sT}, {sT}, {sT2}")
    a(f"  s_add_u32 {sT}, {sT}, {QP3}")
    a(f"  v_lshlrev_b32 v{vQp}, 9, v3")
    a(f"  v_bfe_u32 v49, v{vLane}, 1, 3")
    a(f"  v_lshl_add_u32 v{vQp}, v49, 4, v{vQp}")
    a(f"  v_add_u32 v{vQp}, {sT}, v{vQp}")
    MQ = ("s[72:73]", "s[70:71]", "s[24:25]")
    quarter_masks(3, MQ)
    a(f"  s_waitcnt vmcnt({CH*NA}) lgkmcnt(0)")
    if cfg.dyn:
        a(f"  v_readfirstlane_b32 {sC0}, v117")
    if cfg.dyn == 3:
        a(f"  v_mov_b32 v52, 0")
        a(f"  v_lshlrev_b32 v53, 2, v{vLane}")
        a(f"  ds_write_b32 v53, v52 offset:{TQ}")
        a("  s_waitcnt lgkmcnt(0)")
    a(f"  s_add_u32 {T0}, s28, 1")
    a(f"  s_add_u32 {T1}, s29, 1")
    a("  s_barrier")
    stamp("bar1", "pro,pro2")
    a(f"  s_cmp_ge_u32 {sU}, 6")
    a("  s_cbranch_scc1 L_noq")
    QD0, QD1 = 96, 100
    for e in range(8): a(f"  v_mov_b32 v{QD0+e}, 0")
    def breg(st):
        if st < 5: return 76 + 4*st
        return (104, 108, 112, 36, 40)[st-5]
    def areg(st): return (16 + 4*st) if st < 5 else (56 + 4*(st-5))
    for st in range(10):
        a(f"  ds_read_b128 v[{areg(st)}:{areg(st)+3}], v{vQa} offset:{XN + 64*st}")
        a(f"  ds_read_b64_tr_b16 v[{breg(st)}:{breg(st)+1}], v{vQb} offset:{4096*st}")
        a(f"  ds_read_b64_tr_b16 v[{breg(st)+2}:{breg(st)+3}], v{vQb} offset:{4096*st + 512}")
    for st in range(10):
        if st % 2 == 0: a(f"  s_waitcnt lgkmcnt({min(15, 3*(10-st-2))})") if st < 8 else a("  s_waitcnt lgkmcnt(0)")
        D = QD0 if st % 2 == 0 else QD1
        a(f"  v_mfma_f32_16x16x32_bf16 v[{D}:{D+3}], v[{areg(st)}:{areg(st)+3}], v[{breg(st)}:{breg(st)+3}], v[{D}:{D+3}]")
    for e in range(4): a(f"  v_add_f32 v{QD0+e}, v{QD0+e}, v{QD1+e}")
    GP = 48
    a(f"  v_mov_b32 v{GP+1}, {T0}")
    a(f"  v_mov_b32 v{GP+3}, {T1}")
    select4(GP, QD0, QD0+1, QD0+2, QD0+3, MQ)
    a(f"  v_mov_b32 v{GP+2}, v{GP} quad_perm:[1,0,3,2] row_mask:0xf bank_mask:0xf")
    a("  s_mov_b32 exec_lo, 0x55555555")
    a("  s_mov_b32 exec_hi, 0x55555555")
    a(f"  global_store_dwordx4 v{vQp}, v[{GP}:{GP+3}], s[26:27] {cfg.qst}")
    a("  s_mov_b64 exec, -1")
    if cfg.qwait:
        stamp("qst", "pro2")
        a("  s_waitcnt vmcnt(0)")
        stamp("qack", "pro2")
    a.label("L_noq")
    stamp("qpub", "main,pro,dbg")
    pace_on = [cfg.pace > 0]
    orig_a = a
    class Paced:
        def __call__(self, text):
            if pace_on[0] and ("buffer_load_dwordx4" in text):
                orig_a(f"  s_waitcnt vmcnt({cfg.pace - 1})")
            orig_a(text)
        def label(self, n): orig_a.label(n)
        def finalize(self): return orig_a.finalize()
    a = Paced()
    mk_srd(srdG, 16, 1966080)
    mk_srd(srdU, 18, 1966080)
    mk_srd(srdD, 20, 1966080)
    vWo = 41
    a(f"  s_cmp_ge_u32 {sCj}, 8")
    a("  s_cbranch_scc1 L_nowo")
    def wo_stage():
        a(f"  v_lshrrev_b32 v3, 4, v{vLane}")
        a(f"  v_mul_u32_u24 v{vWo}, 1280, v3")
        a(f"  v_and_b32 v42, 15, v{vLane}")
        a(f"  v_lshl_add_u32 v{vWo}, v42, 4, v{vWo}")
        a(f"  s_mul_i32 {sT}, {sH}, 192")
        a(f"  s_mul_i32 {sT2}, {sW}, 48")
        a(f"  s_add_u32 {sT}, {sT}, {sT2}")
        a(f"  s_mul_i32 {sT}, {sT}, 1280")
        a(f"  s_lshl_b32 {sT3}, {sCj}, 8")
        a(f"  s_add_u32 {sT}, {sT}, {sT3}")
        a(f"  s_mul_i32 {sT2}, {sW}, {48*256}")
        a(f"  s_add_u32 {sT2}, {sT2}, {WO}")
        for i in range(12):
            a(f"  s_add_u32 m0, {sT2}, {1024*i}")
            a(f"  buffer_load_dwordx4 v{vWo}, {srd(srdO)}, {sT} offen {NT} lds")
            if i < 11: a(f"  s_add_u32 {sT}, {sT}, {4*1280}")
    if cfg.wotail:
        a(f"  v_lshrrev_b32 v3, 4, v{vLane}")
        a(f"  v_mul_u32_u24 v{vWo}, 1280, v3")
        a(f"  v_and_b32 v42, 15, v{vLane}")
        a(f"  v_lshl_add_u32 v{vWo}, v42, 4, v{vWo}")
        a(f"  s_lshl_b32 {sT3}, {sCj}, 8")
    else:
        wo_stage()
    if cfg.noffn != 1:
        a(f"  s_cmp_lt_u32 {sU}, 6")
        a("  s_cbranch_scc1 L_stg_done")
        a(f"  s_lshl_b32 {sT}, {sH}, 1")
        a(f"  s_add_u32 {sT}, {sT}, {sHalf}")
        a(f"  s_cmp_ge_u32 {sT}, 60")
        a("  s_cbranch_scc1 L_stg_done")
        a(f"  s_mul_i32 {sT2}, {sT}, 52")
        a(f"  s_lshr_b32 {sT2}, {sT2}, 8")
        a(f"  s_mul_i32 {sT3}, {sT2}, 5")
        a(f"  s_sub_u32 {sT3}, {sT}, {sT3}")
        a(f"  s_lshl_b32 {sT}, {sT2}, 7")
        a(f"  s_lshl_b32 {sT2}, {sW}, 5")
        a(f"  s_add_u32 {sT}, {sT}, {sT2}")
        a(f"  s_mul_i32 {sT}, {sT}, 1280")
        a(f"  s_lshl_b32 {sT3}, {sT3}, 8")
        a(f"  s_add_u32 {sT}, {sT}, {sT3}")
        a(f"  s_lshl_b32 {sT2}, {sW}, 13")
        a(f"  s_add_u32 {sT2}, {sT2}, {F2S}")
        for i in range(8):
            a(f"  s_add_u32 m0, {sT2}, {1024*i}")
            a(f"  buffer_load_dwordx4 v{vWo}, {srd(srdD)}, {sT} offen {NT} lds")
            if i < 7: a(f"  s_add_u32 {sT}, {sT}, {4*1280}")
    a("  s_branch L_stg_done")
    a.label("L_nowo")
    if cfg.noffn != 1:
        a(f"  s_mul_i32 {sT}, {sH}, 3")
        a(f"  s_add_u32 {sT}, {sT}, {sB}")
        a(f"  s_lshr_b32 {sT2}, {sT}, 2")
        a(f"  s_and_b32 {sT}, {sT}, 3")
        a(f"  s_mul_i32 {sT}, {sT}, 160")
        a(f"  s_mul_i32 {sT3}, {sW}, 40")
        a(f"  s_add_u32 {sT}, {sT}, {sT3}")
        a(f"  s_mul_i32 {sT}, {sT}, 3072")
        a(f"  s_lshl_b32 {sT2}, {sT2}, 7")
        a(f"  s_add_u32 {sT}, {sT}, {sT2}")
        a(f"  s_lshl_b32 {sT2}, {sT3}, 7")
        a(f"  s_add_u32 {sT2}, {sT2}, {F1S}")
        a(f"  v_mul_u32_u24 v{vWo}, 3072, v{vG}")
        a(f"  v_lshl_add_u32 v{vWo}, v{vC}, 4, v{vWo}")
        for i in range(5):
            a(f"  s_add_u32 m0, {sT2}, {1024*i}")
            a(f"  buffer_load_dwordx4 v{vWo}, {srd(srdG)}, {sT} offen {NT} lds")
            a(f"  s_add_u32 m0, {sT2}, {20480 + 1024*i}")
            a(f"  buffer_load_dwordx4 v{vWo}, {srd(srdU)}, {sT} offen {NT} lds")
            if i < 4: a(f"  s_add_u32 {sT}, {sT}, {8*3072}")
    a.label("L_stg_done")
    for s in range(NA, R):
        issueT(s); issueK(s); issueV(s)
    sLb_set = True
    if NL:
        a(f"  s_mul_i32 {sLb}, {sW}, {NL*6144}")
        a(f"  s_add_u32 {sLb}, {sLb}, {LA}")
    for k in range(NL): issueL(k)
    pace_on[0] = False
    pF, pFH, pMr, pMh, pMs, vH1, vH2, vTr, vP0, vSa, vOi, vXv, pGV, pOB1, pOB2, pAF = 56, 59, 60, 61, 62, 63, 64, 65, 66, 68, 69, 70, 71, 72, 73, 74
    a(f"  v_lshrrev_b32 v8, 4, v{vLane}")
    a(f"  v_mul_u32_u24 v9, 6, v8")
    a(f"  s_mul_i32 {sT}, {sW}, 800")
    a(f"  s_add_u32 {sT}, {sT}, {PART}")
    a(f"  v_lshl_add_u32 v10, v{vC}, 5, {sT}")
    for k in range(3):
        a(f"  v_add_u32 v11, {2*k}, v9")
        a(f"  v_lshrrev_b32 v12, 3, v11")
        a(f"  v_and_b32 v11, 7, v11")
        a(f"  v_lshlrev_b32 v12, 8, v12")
        a(f"  v_lshl_add_u32 v12, v11, 2, v12")
        a(f"  v_add_u32 v{pF+k}, v12, v10")
    a(f"  v_mov_b32 v{pFH}, {sT}")
    a(f"  v_lshlrev_b32 v{pMr}, 3, v{vTid}")
    a(f"  v_mov_b32 v{pMh}, {PART+768}")
    a(f"  s_lshl_b32 {sT}, {sH}, 3")
    a(f"  s_add_u32 {sT2}, {sT}, {sU}")
    a(f"  s_lshl_b32 {sT2}, {sT2}, 11")
    a(f"  s_add_u32 {sT2}, {sT2}, {AP}")
    a(f"  v_lshl_add_u32 v{pMs}, v{vTid}, 4, {sT2}")
    a(f"  s_lshl_b32 {sT2}, {sW}, 1")
    a(f"  s_add_u32 {sT}, {sT}, {sT2}")
    a(f"  s_lshl_b32 {sT}, {sT}, 11")
    a(f"  s_add_u32 {sT}, {sT}, {AP}")
    a(f"  v_lshlrev_b32 v9, 11, v{vHf}")
    a(f"  v_add_u32 v9, {sT}, v9")
    a(f"  v_lshl_add_u32 v{vH1}, v{vCc}, 4, v9")
    a(f"  v_add_u32 v{vH2}, {96*16}, v9")
    a(f"  v_bfe_u32 v9, v{vLane}, 2, 2")
    a(f"  v_lshl_add_u32 v10, v8, 3, v9")
    a(f"  v_lshlrev_b32 v10, 8, v10")
    a(f"  v_and_b32 v11, 3, v{vLane}")
    a(f"  v_lshl_add_u32 v10, v11, 3, v10")
    a(f"  s_lshl_b32 {sT}, {sW}, 6")
    a(f"  s_add_u32 {sT}, {sT}, {WO}")
    a(f"  v_add_u32 v{vTr}, {sT}, v10")
    a(f"  v_lshlrev_b32 v10, 12, v9")
    a(f"  v_and_b32 v12, 1, v8")
    a(f"  v_lshl_add_u32 v10, v12, 6, v10")
    a(f"  v_lshl_add_u32 v10, v11, 4, v10")
    a(f"  s_and_b32 {sT3}, {sCj}, 7")
    a(f"  s_lshl_b32 {sT}, {sT3}, 5")
    a(f"  s_lshl_b32 {sT2}, {sW}, 3")
    a(f"  s_add_u32 {sT}, {sT}, {sT2}")
    a(f"  s_lshl_b32 {sT}, {sT}, 12")
    a(f"  s_lshl_b32 {sT2}, {sH}, 7")
    a(f"  s_add_u32 {sT}, {sT}, {sT2}")
    a(f"  s_add_u32 {sT}, {sT}, {SP3}")
    a(f"  v_add_u32 v{vP0}, {sT}, v10")
    a(f"  v_add_u32 v{vP0+1}, {4*4096}, v{vP0}")
    a(f"  s_lshl_b32 {sT}, {sT3}, 5")
    a(f"  s_add_u32 {sT}, {sT}, {sH}")
    a(f"  s_lshl_b32 {sT}, {sT}, 12")
    a(f"  s_add_u32 {sT}, {sT}, {SP3}")
    a(f"  v_lshl_add_u32 v{vSa}, v{vLane}, 4, {sT}")
    a(f"  v_bfe_u32 v9, v{vLane}, 2, 1")
    a(f"  v_and_b32 v10, 1, v{vG}")
    a(f"  v_lshl_add_u32 v9, v9, 1, v10")
    a(f"  v_lshlrev_b32 v{pGV}, 4, v11")
    a(f"  v_lshl_add_u32 v{pGV}, v9, 2, v{pGV}")
    a(f"  v_mul_u32_u24 v9, 640, v9")
    a(f"  s_min_u32 {sT3}, {sT3}, 4")
    a(f"  s_lshl_b32 {sT}, {sT3}, 7")
    a(f"  s_lshl_b32 {sT2}, {sH}, 2")
    a(f"  s_add_u32 {sT}, {sT}, {sT2}")
    a(f"  v_add3_u32 v9, v9, v11, {sT}")
    a(f"  v_lshlrev_b32 v{vOi}, 1, v9")
    a(f"  global_load_ushort v{vXv}, v{vOi}, s[4:5]")
    a(f"  s_mul_i32 {sT}, {sW}, {OS}")
    a(f"  v_lshl_add_u32 v{pOB1}, v{vLane}, 2, {sT}")
    a(f"  v_lshl_add_u32 v{pOB2}, v{vCc}, 2, {sT}")
    a(f"  v_mul_u32_u24 v{pAF}, {OS}, v11")
    a(f"  v_lshl_add_u32 v{pAF}, v8, 4, v{pAF}")
    a(f"  v_lshlrev_b32 v3, 4, v{vC}")
    for t in range(24): a(f"  v_mov_b32 v{ACC+t}, 0")
    a(f"  v_mov_b32 v{vM}, 0xff800000")
    a(f"  v_mov_b32 v{vL}, 0")
    if not cfg.sflag: a(f"  s_waitcnt vmcnt({CH*(R-NA) + 6*NL + 1})")
    a("  s_barrier")
    for j in range(3):
        a(f"  ds_read_b128 v[{Q+4*j}:{Q+4*j+3}], v3 offset:{QB + 128*j}")
    LIM = (cfg.S if cfg.dyn else 64) - R - NL
    if cfg.dyn:
        P = 128 - 2 * cfg.S if cfg.dyn == 1 else 512 - 8 * cfg.S
        PG = P // 4
        assert cfg.S - NL >= 2 * R
        assert PG + 2 * R < 60
    a(f"  s_mov_b32 {sI}, 0")
    a(f"  s_mov_b32 {sNval}, {R}")
    a(f"  s_mov_b32 {sAlive}, 1")
    if NL: a(f"  s_mov_b32 {sFirst}, 1")
    if cfg.dyn == 3: a("  s_mov_b32 s101, 0")
    a("  s_waitcnt lgkmcnt(0)")
    stamp("qready", "main,pro,pro2,dbg")

    t0, t1, t2, sS, mn, al, ee, pl, ph = 100, 101, 102, 103, 104, 105, 106, 107, 108
    def scores(K0):
        for i in range(4):
            for j in range(3):
                a(f"  v_dot2c_f32_bf16 v{t0+j}, v{K0+4*j+i}, v{Q+4*j+i}")
    def softmax(tag):
        a(f"  v_add_f32 v{t0}, v{t0}, v{t1}")
        a(f"  v_add_f32 v{t0}, v{t0}, v{t2}")
        dpp("v_add_f32", t0, "quad_perm:[1,0,3,2]")
        dpp("v_add_f32", t0, "quad_perm:[2,3,0,1]")
        dpp("v_add_f32", t0, "row_half_mirror")
        bf16round(t1, t0)
        a(f"  v_mul_f32 v{t1}, {SCALE}, v{t1}")
        bf16round(sS, t1)
        if cfg.wmax:
            a(f"  v_max_f32 v{mn}, v{sS}, v{sS} row_ror:8 row_mask:0xf bank_mask:0xf")
            for sw in ("16", "32"):
                a(f"  v_mov_b32 v{al}, v{mn}")
                a(f"  v_permlane{sw}_swap_b32 v{mn}, v{al}")
                a(f"  v_max_f32 v{mn}, v{mn}, v{al}")
            a(f"  v_cmp_gt_f32 vcc, v{mn}, v{vM}")
            a(f"  v_max_f32 v{mn}, v{vM}, v{mn}")
        else:
            a(f"  v_max_f32 v{mn}, v{vM}, v{sS}")
            a(f"  v_cmp_gt_f32 vcc, v{sS}, v{vM}")
        a(f"  v_sub_f32 v{al}, v{vM}, v{mn}")
        a(f"  v_sub_f32 v{ee}, v{sS}, v{mn}")
        a(f"  v_mul_f32 v{al}, {LOG2E}, v{al}")
        a(f"  v_mul_f32 v{ee}, {LOG2E}, v{ee}")
        a(f"  v_exp_f32 v{al}, v{al}")
        a(f"  v_exp_f32 v{ee}, v{ee}")
        a(f"  v_mov_b32 v{vM}, v{mn}")
        a(f"  v_fma_f32 v{vL}, v{vL}, v{al}, v{ee}")
        if not cfg.pf32:
            a(f"  v_cvt_pk_bf16_f32 v{pl}, v{ee}, 0")
            a(f"  v_cvt_pk_bf16_f32 v{ph}, 0, v{ee}")
        a(f"  s_cbranch_vccz L_nors{tag}")
        for t in range(24): a(f"  v_mul_f32 v{ACC+t}, v{ACC+t}, v{al}")
        a.label(f"L_nors{tag}")
    def pv(V0):
        if cfg.pf32:
            tp = (110, 112, 114)
            items = [(j, i) for j in range(3) for i in range(4)]
            for n, (j, i) in enumerate(items):
                t = tp[n % 3]
                a(f"  v_lshlrev_b32 v{t}, 16, v{V0+4*j+i}")
                a(f"  v_and_b32 v{t+1}, 0xffff0000, v{V0+4*j+i}")
                if n >= 1:
                    jj, ii = items[n-1]; tt = tp[(n-1) % 3]; acc = ACC+8*jj+2*ii
                    a(f"  v_pk_fma_f32 v[{acc}:{acc+1}], v[{tt}:{tt+1}], v[{ee}:{ee+1}], v[{acc}:{acc+1}] op_sel_hi:[1,0,1]")
            jj, ii = items[-1]; tt = tp[11 % 3]; acc = ACC+8*jj+2*ii
            a(f"  v_pk_fma_f32 v[{acc}:{acc+1}], v[{tt}:{tt+1}], v[{ee}:{ee+1}], v[{acc}:{acc+1}] op_sel_hi:[1,0,1]")
            return
        for j in range(3):
            for i in range(4):
                a(f"  v_dot2c_f32_bf16 v{ACC+8*j+2*i}, v{V0+4*j+i}, v{pl}")
                a(f"  v_dot2c_f32_bf16 v{ACC+8*j+2*i+1}, v{V0+4*j+i}, v{ph}")
    def zero_t():
        for t in (t0, t1, t2): a(f"  v_mov_b32 v{t}, 0")
    a.label("L_loop")
    for s in range(R):
        zero_t()
        a(f"  s_waitcnt vmcnt({3 + CH*(R-1)})")
        if cfg.sflag and s == R - 1:
            a(f"  s_cmp_lg_u32 {sI}, {R-1}")
            a(f"  s_cbranch_scc1 L_nosig")
            a(f"  s_lshl_b32 {sT}, {sW}, 2")
            a(f"  v_mov_b32 v109, {sT}")
            a(f"  v_mov_b32 v110, 1")
            a(f"  ds_write_b32 v109, v110 offset:{TQ + 240}")
            a.label("L_nosig")
        if cfg.dyn:
            a(f"  v_readfirstlane_b32 {sT}, v{TKR+s}")
        scores(Kr(s, 0))
        if cfg.dyn == 3:
            a(f"  s_cmp_lt_u32 {sI}, {LIM}")
            a(f"  s_cbranch_scc1 L_st{s}")
            a(f"  s_cmp_eq_u32 {sAlive}, 0")
            a(f"  s_cbranch_scc1 L_st{s}")
            a(f"  s_sub_u32 {sT2}, {sI}, {LIM}")
            a(f"  s_lshl_b32 {sT2}, {sT2}, 2")
            a(f"  v_mov_b32 v109, {sT2}")
            a(f"  s_cmp_lg_u32 {sW}, 0")
            a(f"  s_cbranch_scc1 L_rd{s}")
            a(f"  s_sub_u32 {sT}, {sT}, {sC0}")
            a(f"  s_add_u32 {sT2}, {sT}, 1")
            a(f"  s_cmp_lt_u32 {sT}, {PG}")
            a(f"  s_cselect_b32 {sT}, {sT2}, 0xffff")
            a(f"  v_mov_b32 v110, {sT}")
            a(f"  ds_write_b32 v109, v110 offset:{TQ}")
            a(f"  s_branch L_hv{s}")
            a.label(f"L_rd{s}")
            a(f"  ds_read_b32 v110, v109 offset:{TQ}")
            a(f"  s_add_u32 s101, s101, 1")
            a(f"  s_cmp_gt_u32 s101, 0x400000")
            a("  s_cbranch_scc1 L_end")
            a("  s_waitcnt lgkmcnt(0)")
            a(f"  v_readfirstlane_b32 {sT}, v110")
            a(f"  s_cmp_eq_u32 {sT}, 0")
            a(f"  s_cbranch_scc1 L_rd{s}")
            a.label(f"L_hv{s}")
            a(f"  s_lshl_b32 {sT2}, {sT}, 2")
            a(f"  s_add_u32 {sT2}, {sT2}, {sW}")
            a(f"  s_sub_u32 {sT2}, {sT2}, 4")
            a(f"  s_mul_i32 {sT2}, {sT2}, 3072")
            a(f"  s_add_u32 {sOff}, {sT2}, {sPool}")
            a(f"  s_cmp_lg_u32 {sT}, 0xffff")
            a(f"  s_cselect_b32 {sAlive}, 1, 0")
            a.label(f"L_st{s}")
        elif cfg.dyn:
            a(f"  s_sub_u32 {sT}, {sT}, {sC0}")
            if cfg.dyn == 2:
                a(f"  s_mul_i32 {sT2}, {sT}, 3072")
                a(f"  s_add_u32 {sT2}, {sT2}, {sPool}")
            a(f"  s_cmp_lt_u32 {sT}, {P}")
            a(f"  s_cselect_b32 {sT}, {sAlive}, 0")
            a(f"  s_cmp_lt_u32 {sI}, {LIM}")
            a(f"  s_cselect_b32 {sAlive}, 1, {sT}")
            if cfg.dyn == 2:
                a(f"  s_cselect_b32 {sOff}, {sOff}, {sT2}")
        else:
            a(f"  s_cmp_lt_u32 {sI}, {LIM}")
            a(f"  s_cselect_b32 {sAlive}, 1, 0")
        a(f"  s_add_u32 {sNval}, {sNval}, {sAlive}")
        a(f"  s_cmp_eq_u32 {sAlive}, 0")
        a(f"  s_cselect_b32 s{srdK+2}, 0, s{srdK+2}")
        a(f"  s_cselect_b32 s{srdV+2}, 0, s{srdV+2}")
        if cfg.dyn:
            a(f"  s_cmp_ge_u32 {sI}, {LIM - R}")
            a(f"  s_cselect_b32 {sT}, {sAlive}, 0")
            if cfg.dyn == 3:
                a(f"  s_cmp_eq_u32 {sW}, 0")
                a(f"  s_cselect_b32 {sT}, {sT}, 0")
            a(f"  s_lshl_b32 s{srdT+2}, {sT}, 16")
            issueT(s)
        issueK(s)
        softmax(s)
        a(f"  s_waitcnt vmcnt({CH*(R-1) + (4 if cfg.dyn else 3)})")
        pv(Vr(s, 0))
        issueV(s)
        a(f"  s_add_u32 {sI}, {sI}, 1")
        a(f"  s_cmp_lt_u32 {sI}, {sNval}")
        if s < R - 1 or NL:
            a("  s_cbranch_scc0 L_tail")
        else:
            a("  s_cbranch_scc1 L_loop")
    if NL:
        a(f"  s_cmp_eq_u32 {sFirst}, 0")
        a("  s_cbranch_scc1 L_loop")
        LK = 16
        a(f"  s_mov_b32 {sFirst}, 0")
        a(f"  v_lshl_add_u32 v3, v{vLane}, 4, {sLb}")
        a(f"  s_waitcnt vmcnt({CH*R})")
        a(f"  s_mov_b32 {sT2}, 0")
        a.label("L_lds")
        for j in range(6):
            a(f"  ds_read_b128 v[{LK+4*j}:{LK+4*j+3}], v3 offset:{1024*j}")
        zero_t()
        a(f"  v_add_u32 v3, 6144, v3")
        a("  s_waitcnt lgkmcnt(3)")
        scores(LK)
        softmax("L")
        a("  s_waitcnt lgkmcnt(0)")
        pv(LK + 12)
        a(f"  s_add_u32 {sT2}, {sT2}, 1")
        a(f"  s_cmp_lt_u32 {sT2}, {NL}")
        a("  s_cbranch_scc1 L_lds")
        a("  s_branch L_loop")
    a.label("L_tail")
    stamp("loopend", "main,tail,tail2,tail3,pro2,dbg")

    vGv = 19
    assert cfg.wmax
    tA, tB = 100, 101
    a(f"  v_mov_b32 v{tA}, v{vM}")
    dpp("v_add_f32", vL, "row_ror:8")
    for t in range(12): a(f"  v_permlane32_swap_b32 v{ACC+t}, v{ACC+t+12}")
    a(f"  v_mov_b32 v{tB}, v{vL}")
    a(f"  v_permlane16_swap_b32 v{vL}, v{tB}")
    for t in range(12): a(f"  v_add_f32 v{ACC+t}, v{ACC+t}, v{ACC+t+12}")
    a(f"  v_add_f32 v{vL}, v{vL}, v{tB}")
    for t in range(6): a(f"  v_permlane16_swap_b32 v{ACC+t}, v{ACC+t+6}")
    a(f"  v_mov_b32 v{tB}, v{vL}")
    a(f"  v_permlane32_swap_b32 v{vL}, v{tB}")
    for t in range(6): a(f"  v_add_f32 v{ACC+t}, v{ACC+t}, v{ACC+t+6}")
    a(f"  v_add_f32 v{tB}, v{vL}, v{tB}")
    for t in range(6): dpp("v_add_f32", ACC+t, "row_ror:8")
    for k in range(3):
        a(f"  ds_write_b64 v{pF+k}, v[{ACC+2*k}:{ACC+2*k+1}]")
    a(f"  ds_write_b64 v{pFH}, v[{tA}:{tB}] offset:768")
    a("  s_waitcnt lgkmcnt(0)")
    a("  s_barrier")
    stamp("tbar1", "tail")
    a(f"  s_cmp_ge_u32 {sW}, 2")
    a("  s_cbranch_scc1 L_nomerge")
    MB = 100
    for w2 in range(4):
        a(f"  ds_read_b64 v[{MB+8+2*w2}:{MB+8+2*w2+1}], v{pMh} offset:{800*w2}")
    for w2 in range(4):
        a(f"  ds_read_b64 v[{MB+2*w2}:{MB+2*w2+1}], v{pMr} offset:{PART+800*w2}")
    a(f"  v_cmp_eq_u32 vcc, 96, v{vTid}")
    a(f"  s_mov_b64 s[70:71], vcc")
    a(f"  v_cmp_ge_u32 vcc, 96, v{vTid}")
    a(f"  s_mov_b64 s[72:73], vcc")
    a(f"  v_mov_b32 v77, {T0}")
    a(f"  v_mov_b32 v79, {T1}")
    a("  s_waitcnt lgkmcnt(4)")
    mM = [MB+8+2*w2 for w2 in range(4)]; mL = [x+1 for x in mM]
    a(f"  v_max_f32 v29, v{mM[0]}, v{mM[1]}")
    a(f"  v_max3_f32 v29, v29, v{mM[2]}, v{mM[3]}")
    for w2 in range(4): a(f"  v_sub_f32 v{mM[w2]}, v{mM[w2]}, v29")
    for w2 in range(4): a(f"  v_mul_f32 v{mM[w2]}, {LOG2E}, v{mM[w2]}")
    for w2 in range(4): a(f"  v_exp_f32 v{mM[w2]}, v{mM[w2]}")
    a(f"  v_mul_f32 v30, v{mL[0]}, v{mM[0]}")
    for w2 in range(1, 4): a(f"  v_fmac_f32 v30, v{mL[w2]}, v{mM[w2]}")
    a("  s_waitcnt lgkmcnt(0)")
    a(f"  v_mul_f32 v76, v{MB}, v{mM[0]}")
    a(f"  v_mul_f32 v78, v{MB+1}, v{mM[0]}")
    for w2 in range(1, 4):
        a(f"  v_fmac_f32 v76, v{MB+2*w2}, v{mM[w2]}")
        a(f"  v_fmac_f32 v78, v{MB+2*w2+1}, v{mM[w2]}")
    a(f"  v_cndmask_b32 v76, v76, v29, s[70:71]")
    a(f"  v_cndmask_b32 v78, v78, v30, s[70:71]")
    a(f"  s_mov_b64 exec, s[72:73]")
    restamp("stiss", "tail3")
    a(f"  global_store_dwordx4 v{pMs}, v[76:79], s[26:27] {cfg.tst}")
    if cfg.diag == "tail3":
        a("  s_waitcnt vmcnt(0)")
        restamp("stack", "tail3")
    a(f"  s_mov_b64 exec, -1")
    a.label("L_nomerge")
    stamp("apub", "main,tail,tail2,dbg")
    a(f"  s_cmp_ge_u32 {sCj}, 8")
    a("  s_cbranch_scc1 L_diag")
    HG = 80
    if cfg.wotail:
        vWo = 10
        wo_stage_t = wo_stage
        wo_stage_t()
    def h1_data():
        for k in range(3):
            a(f"  global_load_dwordx4 v[{HG+4*k}:{HG+4*k+3}], v{vH1}, s[26:27] offset:{512*k} {cfg.tld}")
    def h1_head():
        a(f"  global_load_dwordx4 v[{HG+12}:{HG+15}], v{vH2}, s[26:27] {cfg.tld}")
    restamp("h1iss", "tail2")
    if cfg.pp:
        a(f"  global_load_dwordx4 v[44:47], v{vH2}, s[26:27] {cfg.tld}")
        for k in range(3):
            a(f"  global_load_dwordx4 v[{32+4*k}:{35+4*k}], v{vH1}, s[26:27] offset:{512*k} {cfg.tld}")
    else:
        h1_head(); h1_data()
    BFt = (208, 232) if R <= 2 else (232, 32)
    assert R <= 3 and not (R > 2 and cfg.pp) and not (cfg.wotail and cfg.pp)
    def b_frags():
        for tt in range(2):
            for s in range(6):
                r = BFt[tt] + 4*s
                a(f"  ds_read_b64_tr_b16 v[{r}:{r+1}], v{vTr} offset:{8192*s + 32*tt}")
                a(f"  ds_read_b64_tr_b16 v[{r+2}:{r+3}], v{vTr} offset:{8192*s + 32*tt + 1024}")
    if not cfg.wotail: b_frags()
    a(f"  ds_read_b32 v{vGv}, v{pGV} offset:{GV}")
    if cfg.pp:
        def h1_issue(base):
            a(f"  global_load_dwordx4 v[{base+12}:{base+15}], v{vH2}, s[26:27] {cfg.tld}")
            for k in range(3):
                a(f"  global_load_dwordx4 v[{base+4*k}:{base+4*k+3}], v{vH1}, s[26:27] offset:{512*k} {cfg.tld}")
        pipelined_poll("h1", h1_issue, 4, 32, 120, HG, [0, 4, 8, 12], 20, True)
    else:
        a("  s_waitcnt vmcnt(0)")
        if cfg.wotail:
            a("  s_barrier")
            b_frags()
        check_tags([HG, HG+4, HG+8, HG+12], 20)
        a("  s_cbranch_vccz L_h1ok")
        a.label("L_h1hdr")
        spin_guard(cfg.sleep)
        if cfg.h1full:
            h1_head(); h1_data()
            a("  s_waitcnt vmcnt(0)")
            check_tags([HG, HG+4, HG+8, HG+12], 20)
            a("  s_cbranch_vccnz L_h1hdr")
        else:
            h1_head()
            a("  s_waitcnt vmcnt(0)")
            check_tags([HG+12], 20)
            a("  s_cbranch_vccnz L_h1hdr")
            h1_data()
            a("  s_waitcnt vmcnt(0)")
            check_tags([HG, HG+4, HG+8], 20)
            a("  s_cbranch_vccnz L_h1hdr")
    a.label("L_h1ok")
    stamp("h1ok", "tail,tail2")
    gm, gl = HG+12, HG+14
    a(f"  v_mov_b32 v20, v{gm}")
    a(f"  v_mov_b32 v21, v{gm}")
    a(f"  v_permlane32_swap_b32 v20, v21")
    a(f"  v_max_f32 v20, v20, v21")
    a(f"  v_sub_f32 v21, v{gm}, v20")
    a(f"  v_mul_f32 v21, {LOG2E}, v21")
    a(f"  v_exp_f32 v21, v21")
    a(f"  v_mul_f32 v24, v{gl}, v21")
    a(f"  v_mov_b32 v25, v24")
    a(f"  v_permlane32_swap_b32 v24, v25")
    a(f"  v_add_f32 v24, v24, v25")
    a(f"  v_rcp_f32 v24, v24")
    a(f"  v_mul_f32 v21, v21, v24")
    vals = [HG, HG+2, HG+4, HG+6, HG+8, HG+10]
    for r in vals: a(f"  v_mul_f32 v{r}, v{r}, v21")
    a(f"  v_permlane32_swap_b32 v{vals[0]}, v{vals[2]}")
    a(f"  v_permlane32_swap_b32 v{vals[1]}, v{vals[3]}")
    a(f"  v_mov_b32 v24, v{vals[4]}")
    a(f"  v_mov_b32 v25, v{vals[5]}")
    a(f"  v_add_f32 v{vals[0]}, v{vals[0]}, v{vals[2]}")
    a(f"  v_add_f32 v{vals[1]}, v{vals[1]}, v{vals[3]}")
    a(f"  v_permlane32_swap_b32 v{vals[4]}, v24")
    a(f"  v_permlane32_swap_b32 v{vals[5]}, v25")
    a(f"  v_cvt_pk_bf16_f32 v26, v{vals[0]}, v{vals[1]}")
    a(f"  v_add_f32 v{vals[4]}, v{vals[4]}, v24")
    a(f"  v_add_f32 v{vals[5]}, v{vals[5]}, v25")
    a(f"  v_cvt_pk_bf16_f32 v27, v{vals[4]}, v{vals[5]}")
    a(f"  ds_write_b32 v{pOB1}, v26 offset:{OB}")
    a(f"  ds_write_b32 v{pOB2}, v27 offset:{OB+256}")
    a(f"  v_and_b32 v8, 16, v{vLane}")
    a(f"  v_cmp_ne_u32 s[72:73], 0, v8")
    D0, D1 = 100, 104
    for e in range(8): a(f"  v_mov_b32 v{D0+e}, 0")
    a(f"  v_mov_b32 v109, {T0}")
    a(f"  v_mov_b32 v111, {T1}")
    a(f"  v_mov_b32 v113, {T0}")
    a(f"  v_mov_b32 v115, {T1}")
    a("  s_waitcnt lgkmcnt(0)")
    a("  s_barrier")
    AF = ACC
    for s in range(6):
        a(f"  ds_read_b128 v[{AF+4*s}:{AF+4*s+3}], v{pAF} offset:{OB+64*s}")
    a("  s_waitcnt lgkmcnt(4)")
    for s in range(6):
        if s in (2, 4): a(f"  s_waitcnt lgkmcnt({4 - s})")
        for tt, D in ((0, D0), (1, D1)):
            r = BFt[tt] + 4*s
            a(f"  v_mfma_f32_16x16x32_bf16 v[{D}:{D+3}], v[{AF+4*s}:{AF+4*s+3}], v[{r}:{r+3}], v[{D}:{D+3}]")
    for tt, D in ((0, D0), (1, D1)):
        g = 108 + 4*tt
        a(f"  v_cndmask_b32 v{g}, v{D}, v{D+2}, s[72:73]")
        a(f"  v_cndmask_b32 v{g+2}, v{D+1}, v{D+3}, s[72:73]")
    a("  s_mov_b32 exec_hi, 0")
    a(f"  global_store_dwordx4 v{vP0}, v[108:111], s[26:27] {cfg.tst}")
    a(f"  global_store_dwordx4 v{vP0+1}, v[112:115], s[26:27] {cfg.tst}")
    if cfg.diag == "tail3":
        restamp("st2iss", "tail3")
        a("  s_waitcnt vmcnt(0)")
        restamp("st2ack", "tail3")
    a("  s_mov_b32 exec_hi, -1")
    stamp("spub", "main,tail,tail2,dbg")
    a(f"  s_cmp_lg_u32 {sW}, 0")
    a("  s_cbranch_scc1 L_fin_end")
    SG = 80
    if cfg.pp:
        def s_issue(base):
            for i in range(4):
                a(f"  global_load_dwordx4 v[{base+4*i}:{base+4*i+3}], v{vSa}, s[26:27] offset:{1024*i} {cfg.tld}")
        pipelined_poll("h2", s_issue, 4, 32, 120, SG, [0, 4, 8, 12], 20, False)
    else:
        a.label("L_spoll")
        restamp("h2iss", "tail2")
        for i in range(4):
            a(f"  global_load_dwordx4 v[{SG+4*i}:{SG+4*i+3}], v{vSa}, s[26:27] offset:{1024*i} {cfg.tld}")
        a("  s_waitcnt vmcnt(0)")
        check_tags([SG, SG+4, SG+8, SG+12], 20)
        a("  s_cbranch_vccz L_sok")
        spin_guard(cfg.sleep)
        a("  s_branch L_spoll")
    a.label("L_sok")
    stamp("h2ok", "tail,tail2")
    for i in range(1, 4):
        a(f"  v_add_f32 v{SG}, v{SG}, v{SG+4*i}")
        a(f"  v_add_f32 v{SG+2}, v{SG+2}, v{SG+4*i+2}")
    reduce_hi([SG, SG+2], [20, 21])
    a(f"  v_and_b32 v20, 8, v{vLane}")
    a(f"  v_cmp_ne_u32 vcc, 0, v20")
    a(f"  v_cndmask_b32 v21, v{SG}, v{SG+2}, vcc")
    bf16round(21, 21)
    a(f"  v_mul_f32 v21, v21, v{vGv}")
    bf16round(21, 21)
    a(f"  v_lshlrev_b32 v22, 16, v{vXv}")
    a(f"  v_add_f32 v21, v21, v22")
    a(f"  v_cvt_pk_bf16_f32 v21, v21, v21")
    a("  s_mov_b64 exec, 0xffff")
    a(f"  global_store_short v{vOi}, v21, s[22:23] {cfg.ost}")
    a("  s_mov_b64 exec, -1")
    a(f"  s_add_u32 {sT}, {sH}, {sCj}")
    a(f"  s_cmp_lg_u32 {sT}, 0")
    a("  s_cbranch_scc1 L_fin_end")
    a(f"  v_mov_b32 v22, {T0}")
    a(f"  v_mov_b32 v23, {T1}")
    a(f"  v_mov_b32 v24, 0")
    a("  s_mov_b64 exec, 1")
    a(f"  global_store_dwordx2 v24, v[22:23], s[26:27] sc1")
    a("  s_mov_b64 exec, -1")
    a.label("L_fin_end")
    stamp("end", "main,tail,pro2")
    a("  s_branch L_diag")

    a.label("L_svc")
    a("  s_mov_b32 s101, 0")
    sCb, sS_ = "s61", "s62"
    qA = 8
    a(f"  v_lshlrev_b32 v3, 11, v{vHf}")
    a(f"  v_lshl_add_u32 v3, v{vCc}, 4, v3")
    a(f"  s_mul_i32 {sT}, {sH}, {6*2048}")
    a(f"  s_lshl_b32 {sT2}, {sB}, 9")
    a(f"  s_add_u32 {sT}, {sT}, {sT2}")
    a(f"  s_add_u32 {sT}, {sT}, {QP3}")
    a(f"  v_add_u32 v{qA}, {sT}, v3")
    a(f"  v_add_u32 v{qA+1}, 4096, v{qA}")
    a(f"  v_add_u32 v{qA+2}, 8192, v{qA}")
    a(f"  v_lshlrev_b32 v11, 2, v{vCc}")
    a("  s_waitcnt lgkmcnt(0)")
    a("  s_load_dwordx2 s[28:29], s[26:27], 0")
    mk_srd(srdG, 16, 1966080)
    mk_srd(srdU, 18, 1966080)
    mk_srd(srdD, 20, 1966080)
    a("  s_waitcnt lgkmcnt(0)")
    a(f"  s_add_u32 {T0}, s28, 1")
    a(f"  s_add_u32 {T1}, s29, 1")
    a("  s_barrier")
    GQ = 16
    if cfg.dyn:
        a(f"  s_lshl_b32 {sT}, {sH}, 3")
        a(f"  s_add_u32 {sT2}, {sT}, {sU}")
        a(f"  s_lshl_b32 {sT2}, {sT2}, 4")
        a(f"  s_add_u32 {sT2}, {sT2}, {RD}")
        a(f"  v_mov_b32 v12, {sT2}")
        a(f"  v_mov_b32 v40, 0")
        a(f"  v_mov_b32 v41, {T0}")
        a(f"  v_mov_b32 v42, 0")
        a(f"  v_mov_b32 v43, {T1}")
        a("  s_mov_b64 exec, 1")
        a(f"  global_store_dwordx4 v12, v[40:43], s[26:27] sc1")
        a("  s_mov_b64 exec, -1")
        a(f"  s_xor_b32 {sT2}, {sU}, 1")
        a(f"  s_add_u32 {sT2}, {sT2}, {sT}")
        a(f"  s_lshl_b32 {sT2}, {sT2}, 4")
        a(f"  s_add_u32 {sT2}, {sT2}, {RD}")
        a(f"  v_mov_b32 v12, {sT2}")
    if cfg.qpp:
        def q_issue(base):
            for k in range(3):
                a(f"  global_load_dwordx4 v[{base+4*k}:{base+4*k+3}], v{qA+k}, s[26:27] {cfg.qld}")
            a(f"  global_load_dwordx4 v[{base+12}:{base+15}], v12, s[26:27] sc1")
        assert cfg.dyn
        save = cfg.ppsleep; cfg.ppsleep = cfg.qppsleep
        pipelined_poll("q", q_issue, 4, 44, 60, GQ, [0, 4, 8, 12], 34, False)
        cfg.ppsleep = save
    else:
        a.label("L_qpoll")
        for k in range(3):
            a(f"  global_load_dwordx4 v[{GQ+4*k}:{GQ+4*k+3}], v{qA+k}, s[26:27] {cfg.qld}")
        if cfg.dyn:
            a(f"  global_load_dwordx4 v[{GQ+12}:{GQ+15}], v12, s[26:27] sc1")
        a("  s_waitcnt vmcnt(0)")
        check_tags([GQ, GQ+4, GQ+8] + ([GQ+12] if cfg.dyn else []), 34)
        a("  s_cbranch_vccz L_qgot")
        spin_guard()
        a("  s_branch L_qpoll")
    a.label("L_qgot")
    qv = [GQ, GQ+2, GQ+4, GQ+6, GQ+8, GQ+10]
    for r, t in zip(qv, range(34, 40)): a(f"  v_mov_b32 v{t}, v{r}")
    for r, t in zip(qv, range(34, 40)): a(f"  v_permlane32_swap_b32 v{r}, v{t}")
    for r, t in zip(qv, range(34, 40)): a(f"  v_add_f32 v{r}, v{r}, v{t}")
    for k in range(3): a(f"  v_cvt_pk_bf16_f32 v{34+k}, v{GQ+4*k}, v{GQ+4*k+2}")
    for k in range(3): a(f"  ds_write_b32 v11, v{34+k} offset:{QB + 128*k}")
    a("  s_waitcnt lgkmcnt(0)")
    a("  s_barrier")
    a("  s_waitcnt vmcnt(0)")
    stamp("fstart", "ffn")
    if cfg.noffn:
        a(f"  v_mov_b32 v8, 1.0")
        a(f"  v_mov_b32 v9, 1.0")
        a(f"  v_mov_b32 v10, 1.0")
        a(f"  v_mov_b32 v11, 1.0")
        a(f"  v_lshlrev_b32 v3, 4, v{vLane}")
        a("  s_mov_b64 exec, 0xf")
        a(f"  ds_write_b128 v3, v[8:11] offset:{GV}")
        a("  s_waitcnt lgkmcnt(0)")
        a("  s_branch L_end")
    fA, fB, fB2 = 10, 11, 12
    if cfg.sflag:
        a(f"  v_mov_b32 v3, {TQ + 240}")
        a.label("L_sfw")
        a("  s_sleep 2")
        a("  ds_read_b128 v[16:19], v3")
        a(f"  s_add_u32 s101, s101, 1")
        a(f"  s_cmp_gt_u32 s101, 0x400000")
        a("  s_cbranch_scc1 L_end")
        a("  s_waitcnt lgkmcnt(0)")
        a("  v_and_b32 v16, v16, v17")
        a("  v_and_b32 v18, v18, v19")
        a("  v_and_b32 v16, v16, v18")
        a("  v_readfirstlane_b32 s61, v16")
        a("  s_cmp_eq_u32 s61, 1")
        a("  s_cbranch_scc0 L_sfw")
    a(f"  s_cmp_lt_u32 {sCj}, 8")
    a("  s_cbranch_scc1 L_nof1")
    a(f"  s_mul_i32 {sI}, {sH}, 3")
    a(f"  s_add_u32 {sI}, {sI}, {sB}")
    a(f"  s_lshr_b32 {sCb}, {sI}, 2")
    a(f"  s_and_b32 {sS_}, {sI}, 3")
    a(f"  v_lshrrev_b32 v3, 4, v{vLane}")
    a(f"  v_and_b32 v13, 3, v{vLane}")
    a(f"  v_bfe_u32 v14, v{vLane}, 2, 2")
    a(f"  v_mul_u32_u24 v{fA}, {XS}, v13")
    a(f"  v_lshl_add_u32 v{fA}, v3, 4, v{fA}")
    a(f"  s_mul_i32 {sT}, {sS_}, 320")
    a(f"  v_add_u32 v{fA}, {sT}, v{fA}")
    a(f"  v_lshl_add_u32 v15, v3, 3, v14")
    a(f"  v_lshlrev_b32 v15, 7, v15")
    a(f"  v_lshl_add_u32 v{fB}, v13, 3, v15")
    a(f"  v_add_u32 v{fB}, {F1S}, v{fB}")
    FA, FB, FDd = 16, 40, 120
    for st in range(5):
        a(f"  ds_read_b128 v[{FA+4*st}:{FA+4*st+3}], v{fA} offset:{XN + 64*st}")
    for t in range(32): a(f"  v_mov_b32 v{FDd+t}, 0")
    quarter_masks(3, MQ)
    for mat in range(2):
        for t in range(4):
            for st in range(5):
                r = FB + 4*(5*t + st)
                a(f"  ds_read_b64_tr_b16 v[{r}:{r+1}], v{fB} offset:{20480*mat + 4096*st + 32*t}")
                a(f"  ds_read_b64_tr_b16 v[{r+2}:{r+3}], v{fB} offset:{20480*mat + 4096*st + 32*t + 512}")
            a("  s_waitcnt lgkmcnt(0)")
        for st in range(5):
            for t in range(4):
                r = FB + 4*(5*t + st); D = FDd + 4*(4*mat + t)
                a(f"  v_mfma_f32_16x16x32_bf16 v[{D}:{D+3}], v[{FA+4*st}:{FA+4*st+3}], v[{r}:{r+3}], v[{D}:{D+3}]")
    a(f"  s_lshl_b32 {sT}, {sI}, 11")
    a(f"  s_add_u32 {sT}, {sT}, {G1}")
    a(f"  v_lshl_add_u32 v13, v{vLane}, 4, {sT}")
    for mat in range(2):
        g = 32 + 4*mat
        for i in range(4):
            Dm = FDd + 16*mat + i
            select4(g+i, Dm, Dm+4, Dm+8, Dm+12, MQ)
        a(f"  global_store_dwordx4 v13, v[{g}:{g+3}], s[26:27] offset:{1024*mat} {cfg.hst}")
    def flag_store(vaddr):
        a("  v_mov_b32 v40, 0")
        a(f"  v_mov_b32 v41, {T0}")
        a("  v_mov_b32 v42, 0")
        a(f"  v_mov_b32 v43, {T1}")
        a("  s_waitcnt vmcnt(0)")
        a("  s_mov_b64 exec, 1")
        a(f"  global_store_dwordx4 v{vaddr}, v[40:43], s[26:27] {cfg.pst}")
        a("  s_mov_b64 exec, -1")
    a(f"  s_lshl_b32 {sT}, {sI}, 4")
    a(f"  s_add_u32 {sT}, {sT}, {F1}")
    a(f"  v_mov_b32 v14, {sT}")
    flag_store(14)
    stamp("f1pub", "ffn")
    if cfg.fstop == 1: a("  s_branch L_diag")
    a(f"  s_lshl_b32 {sT}, {sCb}, 6")
    a(f"  s_add_u32 {sT}, {sT}, {F1}")
    a(f"  v_and_b32 v15, 3, v{vLane}")
    a(f"  v_lshl_add_u32 v15, v15, 4, {sT}")
    a.label("L_f1poll")
    a(f"  global_load_dwordx4 v[44:47], v15, s[26:27] {cfg.pld}")
    a("  s_waitcnt vmcnt(0)")
    check_tags([44], 64)
    a("  s_cbranch_vccz L_f1ok")
    spin_guard(cfg.fsleep)
    a("  s_branch L_f1poll")
    a.label("L_f1ok")
    a(f"  s_lshl_b32 {sT}, {sCb}, 13")
    a(f"  s_lshl_b32 {sT2}, {sS_}, 8")
    a(f"  s_add_u32 {sT}, {sT}, {sT2}")
    a(f"  s_add_u32 {sT}, {sT}, {G1}")
    a(f"  v_lshrrev_b32 v3, 4, v{vLane}")
    a(f"  v_lshlrev_b32 v14, 11, v3")
    a(f"  v_and_b32 v15, 15, v{vLane}")
    a(f"  v_lshl_add_u32 v14, v15, 4, v14")
    a(f"  v_add_u32 v14, {sT}, v14")
    FGg = 48
    for mat in range(2):
        a(f"  global_load_dwordx4 v[{FGg+4*mat}:{FGg+4*mat+3}], v14, s[26:27] offset:{1024*mat} {cfg.hld}")
    a("  s_waitcnt vmcnt(0)")
    stamp("f1ok", "ffn")
    fv = list(range(FGg, FGg+8))
    reduce_hi(fv, list(range(64, 72)), rors=())
    select4(72, FGg, FGg+1, FGg+2, FGg+3, MQ)
    select4(73, FGg+4, FGg+5, FGg+6, FGg+7, MQ)
    bf16round(72, 72)
    bf16round(73, 73)
    a("  v_mul_f32 v74, v72, v72")
    a("  v_mul_f32 v74, v74, v72")
    a(f"  v_mul_f32 v74, {f32(0.044715)}, v74")
    a("  v_add_f32 v74, v72, v74")
    a(f"  v_mul_f32 v74, {f32(-2.0*0.7978845608028654*1.4426950408889634)}, v74")
    a("  v_exp_f32 v74, v74")
    a("  v_add_f32 v74, 1.0, v74")
    a("  v_rcp_f32 v74, v74")
    a("  v_mul_f32 v74, v72, v74")
    bf16round(74, 74)
    a("  v_mul_f32 v74, v74, v73")
    a("  v_cvt_pk_bf16_f32 v74, v74, v74")
    a("  v_mov_b32 v75, v74 quad_perm:[1,0,3,2] row_mask:0xf bank_mask:0xf")
    a(f"  v_perm_b32 v76, v75, v74, {sPermLo}")
    a("  v_mov_b32 v78, v76")
    a("  v_permlane16_swap_b32 v76, v78")
    a(f"  v_mov_b32 v77, {T0}")
    a(f"  v_mov_b32 v79, {T1}")
    a(f"  s_lshl_b32 {sT}, {sI}, 8")
    a(f"  s_add_u32 {sT}, {sT}, {G2}")
    a(f"  v_lshlrev_b32 v3, 7, v{vHf}")
    a(f"  v_lshl_add_u32 v3, v15, 3, v3")
    a(f"  v_add_u32 v3, {sT}, v3")
    a("  s_mov_b32 exec_lo, 0x00005555")
    a("  s_mov_b32 exec_hi, 0x00005555")
    a(f"  global_store_dwordx4 v3, v[76:79], s[26:27] {cfg.pst}")
    a("  s_mov_b64 exec, -1")
    a("  s_branch L_diag")
    a.label("L_nof1")
    if cfg.fstop:
        a(f"  v_mov_b32 v8, 1.0")
        a(f"  v_mov_b32 v9, 1.0")
        a(f"  v_mov_b32 v10, 1.0")
        a(f"  v_mov_b32 v11, 1.0")
        a(f"  v_lshlrev_b32 v3, 4, v{vLane}")
        a("  s_mov_b64 exec, 0xf")
        a(f"  ds_write_b128 v3, v[8:11] offset:{GV}")
        a("  s_mov_b64 exec, -1")
        a("  s_waitcnt lgkmcnt(0)")
        if cfg.fstop <= 2: a("  s_branch L_diag")
    a(f"  s_cmp_lt_u32 {sU}, 6")
    a("  s_cbranch_scc1 L_nof2")
    a(f"  s_lshl_b32 {sI}, {sH}, 1")
    a(f"  s_add_u32 {sI}, {sI}, {sHalf}")
    a(f"  s_cmp_ge_u32 {sI}, 60")
    a("  s_cbranch_scc1 L_nof2")
    a(f"  s_mul_i32 {sCb}, {sI}, 52")
    a(f"  s_lshr_b32 {sCb}, {sCb}, 8")
    a(f"  s_mul_i32 {sS_}, {sCb}, 5")
    a(f"  s_sub_u32 {sS_}, {sI}, {sS_}")
    a(f"  s_lshl_b32 {sT}, {sCb}, 11")
    a(f"  s_add_u32 {sT}, {sT}, {G2}")
    a(f"  v_lshl_add_u32 v14, v{vLane}, 4, {sT}")
    a(f"  v_lshrrev_b32 v3, 4, v{vLane}")
    a(f"  v_bfe_u32 v15, v{vLane}, 2, 2")
    a(f"  v_lshl_add_u32 v15, v3, 3, v15")
    a(f"  v_lshlrev_b32 v15, 8, v15")
    a(f"  v_and_b32 v13, 3, v{vLane}")
    a(f"  v_lshl_add_u32 v{fB2}, v13, 3, v15")
    a(f"  v_add_u32 v{fB2}, {F2S}, v{fB2}")
    a.label("L_f2poll")
    a(f"  global_load_dwordx4 v[48:51], v14, s[26:27] {cfg.pld}")
    a(f"  global_load_dwordx4 v[52:55], v14, s[26:27] offset:1024 {cfg.pld}")
    a("  s_waitcnt vmcnt(0)")
    check_tags([48, 52], 64)
    a("  s_cbranch_vccz L_f2ok")
    spin_guard(cfg.fsleep)
    a("  s_branch L_f2poll")
    a.label("L_f2ok")
    stamp("f2ok", "ffn")
    a(f"  v_and_b32 v3, 1, v{vG}")
    a(f"  v_mul_u32_u24 v3, {2*HS}, v3")
    a(f"  v_lshrrev_b32 v14, 4, v{vLane}")
    a(f"  v_lshl_add_u32 v3, v14, 5, v3")
    a(f"  v_lshl_add_u32 v3, v{vC}, 2, v3")
    a(f"  ds_write_b32 v3, v48 offset:{HID}")
    a(f"  ds_write_b32 v3, v50 offset:{HID+HS}")
    a(f"  ds_write_b32 v3, v52 offset:{HID+128}")
    a(f"  ds_write_b32 v3, v54 offset:{HID+HS+128}")
    a(f"  v_mul_u32_u24 v3, {HS}, v13")
    a(f"  v_lshl_add_u32 v3, v14, 4, v3")
    a("  s_waitcnt lgkmcnt(0)")
    F2A = 48
    for st in range(4):
        a(f"  ds_read_b128 v[{F2A+4*st}:{F2A+4*st+3}], v3 offset:{HID+64*st}")
    F2B = 80
    F2D = 144
    for t in range(32): a(f"  v_mov_b32 v{F2D+t}, 0")
    quarter_masks(14, MQ)
    a(f"  s_mul_i32 {sI}, {sS_}, 12")
    a(f"  s_add_u32 {sI}, {sI}, {sCb}")
    a(f"  s_lshl_b32 {sT}, {sI}, 11")
    a(f"  s_add_u32 {sT}, {sT}, {FP3}")
    a(f"  v_lshl_add_u32 v13, v{vLane}, 4, {sT}")
    for hf in range(2):
        for t in range(8):
            for st in range(2):
                r = F2B + 8*t + 4*st; sg = 2*hf + st
                a(f"  ds_read_b64_tr_b16 v[{r}:{r+1}], v{fB2} offset:{8192*sg + 32*t}")
                a(f"  ds_read_b64_tr_b16 v[{r+2}:{r+3}], v{fB2} offset:{8192*sg + 32*t + 1024}")
            if t % 2 == 1: a("  s_waitcnt lgkmcnt(0)")
        for st in range(2):
            for t in range(8):
                r = F2B + 8*t + 4*st; D = F2D + 4*t; sg = 2*hf + st
                a(f"  v_mfma_f32_16x16x32_bf16 v[{D}:{D+3}], v[{F2A+4*sg}:{F2A+4*sg+3}], v[{r}:{r+3}], v[{D}:{D+3}]")
        if hf == 0: a("  s_nop 7")
    for rr in range(2):
        g = 32 + 4*rr
        for i in range(4):
            Dm = F2D + 16*rr + i
            select4(g+i, Dm, Dm+4, Dm+8, Dm+12, MQ)
        a(f"  global_store_dwordx4 v13, v[{g}:{g+3}], s[26:27] offset:{1024*rr} {cfg.hst}")
    a(f"  s_lshl_b32 {sT}, {sS_}, 9")
    a(f"  s_lshl_b32 {sT2}, {sCb}, 4")
    a(f"  s_add_u32 {sT}, {sT}, {sT2}")
    a(f"  s_add_u32 {sT}, {sT}, {F3}")
    a(f"  v_mov_b32 v14, {sT}")
    flag_store(14)
    a.label("L_nof2")
    if cfg.fstop == 3: a("  s_branch L_diag")
    stamp("f2pub", "ffn")
    a(f"  s_lshl_b32 {sT}, {sCj}, 9")
    a(f"  s_add_u32 {sT}, {sT}, {F3}")
    a(f"  v_min_u32 v3, 11, v{vLane}")
    a(f"  v_lshl_add_u32 v15, v3, 4, {sT}")
    a.label("L_f3poll")
    a(f"  global_load_dwordx4 v[44:47], v15, s[26:27] {cfg.pld}")
    a("  s_waitcnt vmcnt(0)")
    check_tags([44], 64)
    a("  s_cbranch_vccz L_f3ok")
    spin_guard(cfg.fsleep3)
    a("  s_branch L_f3poll")
    a.label("L_f3ok")
    a(f"  s_mul_i32 {sT}, {sCj}, {12*2048}")
    a(f"  s_lshl_b32 {sT2}, {sH}, 6")
    a(f"  s_add_u32 {sT}, {sT}, {sT2}")
    a(f"  s_add_u32 {sT}, {sT}, {FP3}")
    a(f"  v_lshrrev_b32 v3, 2, v{vLane}")
    a(f"  v_lshlrev_b32 v3, 11, v3")
    a(f"  v_and_b32 v13, 3, v{vLane}")
    a(f"  v_lshl_add_u32 v3, v13, 4, v3")
    a(f"  v_add_u32 v14, {sT}, v3")
    for e in range(4): a(f"  v_mov_b32 v{48+e}, 0")
    a("  s_mov_b32 exec_hi, 0xffff")
    a(f"  global_load_dwordx4 v[48:51], v14, s[26:27] {cfg.hld}")
    a("  s_mov_b32 exec_hi, -1")
    a("  s_waitcnt vmcnt(0)")
    reduce_hi([48, 49, 50, 51], [56, 57, 58, 59], rors=(4, 8))
    for e in range(4):
        r = 48 + e
        bf16round(r, r)
        a(f"  v_mul_f32 v{56+e}, {f32(-1.4426950408889634)}, v{r}")
    for e in range(4): a(f"  v_exp_f32 v{56+e}, v{56+e}")
    for e in range(4): a(f"  v_add_f32 v{56+e}, 1.0, v{56+e}")
    for e in range(4): a(f"  v_rcp_f32 v{56+e}, v{56+e}")
    for e in range(4): a(f"  v_mul_f32 v{48+e}, v{48+e}, v{56+e}")
    for e in range(4): bf16round(48+e, 48+e)
    a(f"  v_lshlrev_b32 v3, 4, v13")
    a("  s_mov_b64 exec, 0xf")
    a(f"  ds_write_b128 v3, v[48:51] offset:{GV}")
    a("  s_mov_b64 exec, -1")
    a("  s_waitcnt lgkmcnt(0)")
    stamp("fend", "ffn")
    a.label("L_diag")
    if cfg.diag == "dbg":
        a(f"  s_cmp_lg_u32 {sW}, 0")
        a("  s_cbranch_scc1 L_end")
        a(f"  s_cmp_ge_u32 {sCj}, 8")
        a("  s_cbranch_scc1 L_end")
        a("  s_load_dwordx2 s[24:25], s[0:1], 80")
        a("  s_memrealtime s[98:99]")
        a("  s_waitcnt lgkmcnt(0)")
        a("  s_mov_b64 exec, 1")
        a("  s_not_b32 s64, s84")
        vals = ["s64"] + [f"s{84+2*i}" for i in range(1, nst[0])] + ["s98"]
        for i, r in enumerate(vals):
            a(f"  v_mov_b32 v3, {4*i}")
            a(f"  v_mov_b32 v4, {r}")
            a(f"  global_atomic_umax v3, v4, s[24:25] sc1")
            a("  s_nop 1")
    elif cfg.diag:
        a("  s_waitcnt lgkmcnt(0)")
        a(f"  s_mul_i32 {sT}, s2, 5")
        a(f"  s_add_u32 {sT}, {sT}, {sW}")
        a(f"  s_lshl_b32 {sT}, {sT}, 7")
        a(f"  s_add_u32 {sT}, {sT}, {STAMP}")
        a(f"  v_mov_b32 v3, {sT}")
        a("  s_mov_b64 exec, 1")
        for i in range(8):
            a(f"  v_mov_b32 v4, s{84+2*i}")
            a(f"  v_mov_b32 v5, s{85+2*i}")
            a(f"  global_store_dwordx2 v3, v[4:5], s[26:27] offset:{8*i}")
            a("  s_nop 1")
        a("  s_getreg_b32 s84, hwreg(HW_REG_HW_ID)")
        a("  s_getreg_b32 s85, hwreg(HW_REG_XCC_ID)")
        a(f"  v_mov_b32 v4, s84")
        a(f"  v_mov_b32 v5, s85")
        a(f"  global_store_dwordx2 v3, v[4:5], s[26:27] offset:64")
        a("  s_nop 1")
        a(f"  v_mov_b32 v4, {sNval}")
        a(f"  v_mov_b32 v5, {sU}")
        a(f"  global_store_dwordx2 v3, v[4:5], s[26:27] offset:72")
    a.label("L_end")
    a("  s_endpgm")
    a('.section .rodata,"a"')
    a(".p2align 6")
    a(f".amdhsa_kernel {KN}")
    a("  .amdhsa_next_free_vgpr 256")
    a("  .amdhsa_next_free_sgpr 102")
    a("  .amdhsa_accum_offset 256")
    a("  .amdhsa_group_segment_fixed_size 0")
    a("  .amdhsa_kernarg_size 96")
    a("  .amdhsa_user_sgpr_count 2")
    a("  .amdhsa_user_sgpr_kernarg_segment_ptr 1")
    a("  .amdhsa_system_sgpr_workgroup_id_x 1")
    a(".end_amdhsa_kernel")
    body = a.finalize()
    if cfg.diag: hdr.append("; stamps: " + ",".join(names))
    return "\n".join(hdr) + "\n" + body

if __name__ == "__main__":
    ap = argparse.ArgumentParser()
    ap.add_argument("-o", default="recurrent_scan__mha_block_cached__geglu_ffn__decode.s")
    for k, v in vars(Cfg).items():
        if k.startswith("_"): continue
        if isinstance(v, bool): ap.add_argument("--" + k, type=int, default=int(v))
        else: ap.add_argument("--" + k, type=type(v), default=v)
    ap.add_argument("--wo_late", type=int, default=0)
    args = ap.parse_args()
    cfg = Cfg()
    for k, v in vars(args).items(): setattr(cfg, k, v)
    open(args.o, "w").write(build(cfg))
    print("wrote", args.o)
```
